```python
import torch

def _softmax(x, axis=-1):
    return torch.softmax(x, dim=axis)
def _gelu(x):
    return torch.nn.functional.gelu(x, approximate="tanh")
def _silu(x):
    return torch.nn.functional.silu(x)
def _sigmoid(x):
    return torch.sigmoid(x)
def _layernorm(x, axis=-1, eps=1e-5):
    m = x.mean(dim=axis, keepdim=True)
    v = x.var(dim=axis, keepdim=True, unbiased=False)
    return (x - m) / torch.sqrt(v + eps)
def _scatter_add(tgt, idx, src, axis=0):
    return tgt.clone().index_add_(axis, idx, src)
def _segment_sum(src, seg, n):
    out = torch.zeros((n,) + src.shape[1:], dtype=src.dtype)
    return out.index_add_(0, seg, src)
def _pad(x, pw):
    flat = tuple(v for pair in reversed(pw) for v in pair)
    return torch.nn.functional.pad(x, flat)

kernel_name = 'gated_mix__spectral_gfnet__dense_activation_gelu__prompt'

def setup_inputs():

    _w = (lambda a: (lambda t: t.to(torch.bfloat16) if t.is_floating_point() else t)(torch.as_tensor(a)))
    def _A_setup():
        B, S, D = 1, 2048, 512
        Df = D // 2 + 1
        return {
            "x": _w((lambda *s: torch.randn(*s, dtype=torch.bfloat16) * 0.05)(B, S, D)),
            "w_r": _w((lambda *s: torch.randn(*s, dtype=torch.bfloat16) * 1.6)(S, Df) * 0.02),
            "w_i": _w((lambda *s: torch.randn(*s, dtype=torch.bfloat16) * 1.6)(S, Df) * 0.02),
        }
    _A_in = _A_setup()

    def _B_setup():
        B, S, D, F = 1, 2048, 512, 1376
        return {
            "x": _w((lambda *s: torch.randn(*s, dtype=torch.bfloat16) * 0.05)(B, S, D)),
            "w1": _w((lambda *s: torch.randn(*s, dtype=torch.bfloat16) * 3.2)(D, F) * (D ** -0.5)),
            "b1": _w((lambda *s: torch.randn(*s, dtype=torch.bfloat16) * 3.2)(F) * 0.01),
            "w2": _w((lambda *s: torch.randn(*s, dtype=torch.bfloat16) * 0.05)(F, D) * (F ** -0.5)),
            "b2": _w((lambda *s: torch.randn(*s, dtype=torch.bfloat16) * 0.1)(D) * 0.01),
        }
    _B_in = _B_setup()

    return {
        "A_x": _A_in["x"],
        "A_w_r": _A_in["w_r"],
        "A_w_i": _A_in["w_i"],
        "B_x": _B_in["x"],
        "B_w1": _B_in["w1"],
        "B_b1": _B_in["b1"],
        "B_w2": _B_in["w2"],
        "B_b2": _B_in["b2"],
        "gate_w": _w((lambda *s: torch.randn(*s, dtype=torch.bfloat16) * 0.05)(512) * 16.0),
    }

def reference(A_x, A_w_r, A_w_i, B_x, B_w1, B_b1, B_w2, B_b2, gate_w):
    def _A_ref(x, w_r, w_i):
        B, S, D = x.shape
        X = (lambda x, axes=(-2,-1): torch.fft.rfft2(x.float(), dim=axes))(x, axes=(-2, -1))
        W = w_r + 1j * w_i
        X = X * W
        y = (lambda x, s, axes=(-2,-1): torch.fft.irfft2(x, s=s, dim=axes).to(torch.bfloat16))(X, (S, D), axes=(-2, -1))
        return y

    def _B_ref(x, w1, b1, w2, b2):
        h = torch.einsum("bsd,df->bsf", x, w1) + b1
        h = _gelu(h)
        return torch.einsum("bsf,fd->bsd", h, w2) + b2

    x = A_x
    g = _sigmoid((x * gate_w).sum(-1, keepdims=True))
    a = _A_ref(x, A_w_r, A_w_i)
    b = _B_ref(x, B_w1, B_b1, B_w2, B_b2)
    return g * a + (1 - g) * b
```

```python
import re

def vr(b, n=1, f='v'):
    return f"{f}{b}" if n == 1 else f"{f}[{b}:{b+n-1}]"
def sr(b, n=1): return vr(b, n, 's')
def ar(b, n=1): return vr(b, n, 'a')

TRANS = ("v_exp_f32", "v_log_f32", "v_rcp_f32", "v_rsq_f32", "v_sqrt_f32", "v_sin_f32", "v_cos_f32", "v_rcp_iflag_f32",
         "v_exp_f16", "v_log_f16", "v_rcp_f16", "v_rsq_f16", "v_sqrt_f16", "v_sin_f16", "v_cos_f16")
REG_RE = re.compile(r"^(-|abs\(|\|)?([vsa])(\d+|\[(\d+):(\d+)\])\)?\|?$")

def parse_reg(tok):
    tok = tok.strip()
    if tok in ("vcc",): return {("s", "vcc")}
    if tok in ("vcc_lo", "vcc_hi"): return {("s", "vcc")}
    if tok in ("exec", "exec_lo", "exec_hi"): return {("s", "exec")}
    if tok == "m0": return {("s", "m0")}
    m = REG_RE.match(tok)
    if not m: return set()
    f = m.group(2)
    if m.group(4) is not None:
        return {(f, i) for i in range(int(m.group(4)), int(m.group(5)) + 1)}
    return {(f, int(m.group(3)))}

class Ins:
    __slots__ = ("text", "op", "kind", "wr", "rd", "passes", "srcC", "srcAB", "label", "target", "store_data", "states", "trans", "opsel", "dpp")
    def __init__(self, text):
        self.text = text
        self.label = None; self.target = None
        self.wr = set(); self.rd = set(); self.passes = 0; self.srcC = set(); self.srcAB = set()
        self.store_data = set(); self.states = 1; self.trans = False; self.opsel = False; self.dpp = False
        t = text.split(";")[0].split("//")[0].strip()
        if not t:
            self.kind = "none"; self.op = ""; self.states = 0; return
        if t.endswith(":"):
            self.kind = "label"; self.label = t[:-1]; self.op = ""; self.states = 0; return
        if t.startswith("."):
            self.kind = "none"; self.op = ""; self.states = 0; return
        parts = t.split(None, 1)
        op = parts[0]; self.op = op
        rest = parts[1] if len(parts) > 1 else ""
        ops = [x.strip() for x in re.split(r",(?![^\[]*\])", rest)] if rest else []
        mods = ""
        if ops:
            sp = ops[-1].split(None, 1)
            ops[-1] = sp[0]
            if len(sp) > 1: mods = sp[1]
        R = [parse_reg(o) for o in ops]
        base = re.sub(r"_(e32|e64|sdwa|dpp)$", "", op)
        if op.startswith("v_mfma") or op.startswith("v_smfmac"):
            self.kind = "mfma"
            self.passes = 8 if "32x32" in op else 4
            self.wr = R[0]; self.srcAB = R[1] | R[2]; self.srcC = R[3]; self.rd = R[1] | R[2] | R[3]
        elif op.startswith("v_"):
            self.kind = "valu"
            self.trans = base in TRANS
            self.opsel = ("op_sel" in mods and not op.startswith("v_pk_")) or "dst_sel" in mods
            self.dpp = any(x in mods for x in ("quad_perm", "row_shl", "row_shr", "row_ror", "row_bcast", "row_mirror", "row_half_mirror", "wave_sh", "wave_ro", "row_newbcast")) or op.endswith("_dpp")
            if base.startswith("v_cmpx"):
                self.wr = R[0] | {("s", "exec")}; self.rd = set().union(*R[1:])
            elif base.startswith("v_cmp"):
                self.wr = R[0]; self.rd = set().union(*R[1:])
            elif base in ("v_add_co_u32", "v_sub_co_u32", "v_subrev_co_u32"):
                self.wr = R[0] | R[1]; self.rd = set().union(*R[2:])
            elif base in ("v_addc_co_u32", "v_subb_co_u32", "v_subbrev_co_u32"):
                self.wr = R[0] | R[1]; self.rd = set().union(*R[2:])
            elif base == "v_mad_u64_u32":
                self.wr = R[0] | R[1]; self.rd = set().union(*R[2:])
            elif base.startswith("v_permlane") and "swap" in base:
                self.wr = R[0] | R[1]; self.rd = R[0] | R[1]
            elif base in ("v_fmac_f32", "v_pk_fmac_f16", "v_dot2c_f32_bf16", "v_writelane_b32", "v_fmac_f16", "v_mac_f32", "v_dot2c_f32_f16"):
                self.wr = R[0]; self.rd = set().union(*R)
            elif base == "v_nop":
                pass
            else:
                self.wr = R[0]; self.rd = set().union(*R[1:]) if len(R) > 1 else set()
                if "UNUSED_PRESERVE" in mods: self.rd |= R[0]
            if base.startswith("v_cndmask") and len(R) == 3:
                self.rd |= {("s", "vcc")}
        elif op.startswith("buffer_") or op.startswith("global_") or op.startswith("flat_"):
            self.kind = "vmem"
            islds = (" lds" in (" " + mods)) or "_lds_" in op
            if op.startswith("buffer_"):
                if op.startswith(("buffer_wbl2", "buffer_inv")):
                    pass
                elif "load" in op:
                    if islds:
                        self.rd = set().union(*R) | {("s", "m0")}
                    else:
                        self.wr = R[0]; self.rd = set().union(*R[1:])
                elif "store" in op:
                    self.rd = set().union(*R)
                    if "x3" in op or "x4" in op: self.store_data = R[0]
                else:
                    self.rd = set().union(*R)
                    if "sc0" in mods: self.wr = R[0]
            else:
                if "load" in op:
                    if islds: self.rd = set().union(*R) | {("s", "m0")}
                    else: self.wr = R[0]; self.rd = set().union(*R[1:])
                elif "store" in op:
                    self.rd = set().union(*R)
                    if "x3" in op or "x4" in op: self.store_data = R[1]
                else:
                    if "sc0" in mods: self.wr = R[0]; self.rd = set().union(*R[1:])
                    else: self.rd = set().union(*R)
        elif op.startswith("ds_"):
            self.kind = "ds"
            if op.startswith(("ds_read", "ds_bpermute", "ds_permute", "ds_swizzle")) or "_rtn" in op:
                self.wr = R[0]; self.rd = set().union(*R[1:]) if len(R) > 1 else set()
            else:
                self.rd = set().union(*R)
        elif op.startswith("s_"):
            if op == "s_nop":
                self.kind = "nop"; self.states = int(ops[0], 0) + 1
            elif op in ("s_branch",) or op.startswith("s_cbranch"):
                self.kind = "branch"; self.target = ops[0]
            elif op == "s_endpgm":
                self.kind = "end"
            elif op.startswith("s_load") or op.startswith("s_memtime") or op.startswith("s_memrealtime") or op.startswith("s_buffer_load"):
                self.kind = "smem"; self.wr = R[0]; self.rd = set().union(*R[1:]) if len(R) > 1 else set()
            elif op.startswith("s_cmp") or op.startswith("s_bitcmp") or op in ("s_waitcnt", "s_barrier", "s_sleep", "s_setprio", "s_sethalt"):
                self.kind = "salu"; self.rd = set().union(*R) if R else set()
            else:
                self.kind = "salu"; self.wr = R[0] if R else set(); self.rd = set().union(*R[1:]) if len(R) > 1 else set()
                if "saveexec" in op: self.wr = self.wr | {("s", "exec")}; self.rd |= {("s", "exec")}
                if op in ("s_addk_i32", "s_mulk_i32", "s_bitset1_b32", "s_bitset0_b32"): self.rd |= R[0]
        else:
            raise ValueError("unknown instruction: " + text)

def isv(r): return r[0] in ("v", "a")

def need(p, c):
    n = 0
    pv = {r for r in p.wr if isv(r)}
    if p.kind == "valu":
        if c.kind == "mfma" and pv & c.rd: n = max(n, 2)
        if p.op.startswith("v_dot") and pv & (c.rd | c.wr) and c.kind in ("valu", "vmem", "ds", "mfma"):
            same = c.op == p.op and c.text.split(";")[0].split(",")[-1].strip().split()[0] in p.text.split(None,1)[1].split(",")[0].strip()
            ab = c.op == p.op and any(p.text.split(None,1)[1].split(",")[0].strip() == o.strip() for o in c.text.split(None,1)[1].split(",")[1:3])
            if not same or ab: n = max(n, 3)
        if c.kind == "valu":
            if (p.trans or p.opsel) and pv & (c.rd | (c.wr if p.opsel else set())): n = max(n, 1)
            if pv & c.rd:
                if c.op.startswith(("v_readlane", "v_readfirstlane")): n = max(n, 1)
                if c.op.startswith("v_permlane"): n = max(n, 2)
                if c.dpp: n = max(n, 2)
            ps = {r for r in p.wr if r[0] == "s"}
            if ps & c.rd:
                n = max(n, 4 if c.op.startswith(("v_readlane", "v_writelane")) else 2)
            if ("s", "exec") in p.wr: n = max(n, 5 if c.dpp else 4)
        if c.kind in ("vmem", "ds") and (p.trans or p.opsel) and pv & c.rd: n = max(n, 1)
        if c.kind == "vmem":
            ps = {r for r in p.wr if r[0] == "s"}
            if ps & c.rd: n = max(n, 5)
        if c.kind in ("salu", "smem", "branch"):
            ps = {r for r in p.wr if r[0] == "s"}
            if ps & c.rd: n = max(n, 1)
            if c.kind == "branch" and (("s", "vcc") in ps) and "vcc" in c.op: n = max(n, 5)
        if c.kind == "mfma" and ("s", "exec") in p.wr: n = max(n, 4)
    elif p.kind == "mfma":
        big = p.passes == 8
        if c.kind == "mfma":
            if p.wr & c.srcAB: n = max(n, 12 if big else 8)
            if p.wr & c.srcC:
                if not (p.wr == c.srcC and p.passes == c.passes): n = max(n, 10 if big else 6)
            if p.wr & c.wr and not (p.wr & c.srcC): n = max(n, 10 if big else 6)
        elif c.kind in ("valu", "vmem", "ds"):
            if p.wr & (c.rd | c.wr): n = max(n, 12 if big else 8)
            if c.kind == "valu" and (p.srcC & c.wr): n = max(n, 7 if big else 3)
    elif p.kind == "salu":
        if ("s", "m0") in p.wr and c.kind in ("vmem", "ds") and ("s", "m0") in c.rd: n = max(n, 1)
    if p.store_data:
        if c.kind == "valu" and p.store_data & c.wr: n = max(n, 2)
        elif c.kind in ("vmem", "ds", "mfma") and p.store_data & c.wr: n = max(n, 1)
    return n

MAXD = 13

def pad_hazards(lines):
    ins = [Ins(l) for l in lines]
    total = 0
    for _it in range(50):
        labels = {x.label: i for i, x in enumerate(ins) if x.kind == "label"}
        N = len(ins)
        fix = {}
        def succ(i):
            x = ins[i]
            if x.kind == "end": return []
            if x.kind == "branch":
                t = labels.get(x.target)
                s = [] if x.op == "s_branch" else ([i + 1] if i + 1 < N else [])
                if t is not None: s = s + [t]
                return s
            return [i + 1] if i + 1 < N else []
        for i, p in enumerate(ins):
            if p.kind not in ("valu", "mfma", "salu", "vmem"): continue
            if p.kind == "salu" and ("s", "m0") not in p.wr: continue
            if p.kind == "vmem" and not p.store_data: continue
            maxd = 12 if p.kind == "mfma" else 5
            stack = [(j, 0) for j in succ(i)]
            seen = {}
            while stack:
                j, d = stack.pop()
                if d >= maxd: continue
                if seen.get(j, 99) <= d: continue
                seen[j] = d
                c = ins[j]
                if c.states > 0 and c.kind not in ("nop",):
                    n = need(p, c)
                    if n > d:
                        fix[j] = max(fix.get(j, 0), n - d)
                for k in succ(j): stack.append((k, d + c.states))
        if not fix: break
        out = []; last = -100
        for i, x in enumerate(ins):
            if i in fix and i - last > MAXD:
                n = fix[i]
                while n > 0:
                    k = min(n, 16)
                    out.append(Ins(f"    s_nop {k-1}"))
                    n -= k; total += k
                last = i
            out.append(x)
        ins = out
    else:
        raise RuntimeError("hazard padding did not converge")
    return [x.text for x in ins], total

class K:
    gid = 0
    def __init__(self):
        self.l = []
        self.uid = 0
    def __call__(self, s):
        for x in s.split("\n"):
            x = x.strip()
            if not x: continue
            self.l.append(x if x.endswith(":") else "    " + x)
    def c(self, s): self.l.append("    ; " + s)
    def label(self, n): self.l.append(n + ":")
    def newlabel(self, p="L"):
        K.gid += 1
        return f"{p}_{K.gid}"
    def srd(self, d, lo, hi, nbytes):
        self(f"s_mov_b32 s{d}, s{lo}")
        self(f"s_and_b32 s{d+1}, s{hi}, 0xffff")
        self(f"s_mov_b32 s{d+2}, {nbytes:#x}")
        self(f"s_mov_b32 s{d+3}, 0x20000")

def count_regs(lines):
    mv = -1; ma = -1; ms = -1
    for l in lines:
        x = Ins(l)
        for f, i in (x.wr | x.rd):
            if isinstance(i, int):
                if f == "v": mv = max(mv, i)
                elif f == "a": ma = max(ma, i)
                else: ms = max(ms, i)
    return mv + 1, ma + 1, ms + 1

def kernel_text(name, body_lines, nv=None, na=None):
    body, nops = pad_hazards(body_lines)
    mv, ma, ms = count_regs(body)
    if nv: mv = max(mv, nv)
    acc = max(4, (mv + 3) // 4 * 4)
    tot = acc + ma if ma > 0 else max(mv, 1)
    txt = [f".globl {name}", ".p2align 8", f".type {name},@function", f"{name}:"] + body
    desc = [f".amdhsa_kernel {name}",
            f"  .amdhsa_next_free_vgpr {tot}",
            f"  .amdhsa_next_free_sgpr {max(ms, 16) if ms < 102 else 102}",
            f"  .amdhsa_accum_offset {acc}",
            "  .amdhsa_group_segment_fixed_size 0",
            "  .amdhsa_kernarg_size 96",
            "  .amdhsa_user_sgpr_count 2",
            "  .amdhsa_user_sgpr_kernarg_segment_ptr 1",
            "  .amdhsa_system_sgpr_workgroup_id_x 1",
            ".end_amdhsa_kernel"]
    info = f"; {name}: vgpr {mv} agpr {ma} sgpr {ms} instrs {sum(1 for b in body if Ins(b).states>0)} nops {nops}"
    return txt, desc, info

HEADER = open("gated_mix__spectral_gfnet__dense_activation_gelu__prompt.s.ref").read().split("; Override launch")[0]

def make_file(kernels, launches):
    out = [HEADER.rstrip()]
    if len(launches) == 1 and launches[0][0] is None:
        _, g, b, lds = launches[0]
        out.append(f"; @launch grid=({g},1,1) block=({b},1,1) lds={lds}")
    else:
        for n, g, b, lds in launches:
            out.append(f"; @launch kernel={n} grid=({g},1,1) block=({b},1,1) lds={lds}")
    out += ['.amdgcn_target "amdgcn-amd-amdhsa--gfx950"', ".text"]
    descs = []
    infos = []
    for n, lines, *rest in kernels:
        t, d, info = kernel_text(n, lines, *rest)
        out += t; descs += [".p2align 6"] + d; infos.append(info)
    out += ['.section .rodata,"a"'] + descs
    return "\n".join(out) + "\n", infos
```

```python
from asmlib import *

H_OFF = 0x0; H_CLS = 4 * 43 * 2048
R_OFF = 0x600000
T3_OFF = 0x800000
GP_OFF = 0xA00000
ST_OFF = 0xB00000
WS_SIZE = 0x1000000
NST = 8

S_WG = 2
S_WAVE = 3
S_PX, S_PWR, S_PWI = 4, 6, 8
S_PW1, S_PB1, S_PW2, S_PB2 = 12, 14, 16, 18
S_PGW, S_POUT, S_PDBG, S_PWS = 20, 22, 24, 26
SRD_WS = 28
SRD_A = 32
SRD_B = 36
SRD_C = 40
SRD_D = 44
S_T = 48
S_STAMP = 80

def prologue(k):
    k("s_load_dwordx4 s[4:7], s[0:1], 0")
    k("s_load_dwordx2 s[8:9], s[0:1], 16")
    k("s_load_dwordx8 s[12:19], s[0:1], 32")
    k("s_load_dwordx8 s[20:27], s[0:1], 64")
    k("v_lshrrev_b32 v1, 6, v0")
    k("v_and_b32 v0, 63, v0")
    k("v_readfirstlane_b32 s3, v1")
    k("s_waitcnt lgkmcnt(0)")
    k.srd(SRD_WS, S_PWS, S_PWS + 1, WS_SIZE)

def stamp(k, i, on=True):
    if on: k(f"s_memrealtime s[{S_STAMP+2*i}:{S_STAMP+2*i+1}]")

def stamps_clear(k):
    for i in range(NST):
        k(f"s_mov_b64 s[{S_STAMP+2*i}:{S_STAMP+2*i+1}], 0")

def stamps_store(k):
    L = k.newlabel("nost")
    k("s_cmp_lg_u32 s3, 0")
    k(f"s_cbranch_scc1 {L}")
    k("s_waitcnt lgkmcnt(0)")
    k(f"s_mul_i32 s48, s2, {NST*8}")
    k(f"s_add_u32 s48, s48, {ST_OFF}")
    for i in range(0, NST, 2):
        for j in range(4):
            k(f"v_mov_b32 v{4+j}, s{S_STAMP+2*i+j}")
        k(f"v_mov_b32 v8, {i*8}")
        k("v_cmp_eq_u32 vcc, 0, v0")
        k("s_and_saveexec_b64 s[50:51], vcc")
        k(f"buffer_store_dwordx4 v[4:7], v8, s[{SRD_WS}:{SRD_WS+3}], s48 offen")
        k("s_mov_b64 exec, s[50:51]")
    k("s_waitcnt vmcnt(0)")
    k.label(L)

GELU_C0 = -2.0 * 0.7978845608028654 * 1.4426950408889634
GELU_C1 = GELU_C0 * 0.044715
import struct
def f2u(f): return struct.unpack("<I", struct.pack("<f", f))[0]

def gemm1(k, s_cls, s_fb, st=False, sc1=False, nocomp=False, nodma=False, noepi=False, order=False, touch=0):
    SX, SW, SB = SRD_A, SRD_B, SRD_C
    k.srd(SX, S_PX, S_PX + 1, 2048 * 512 * 2)
    k.srd(SW, S_PW1, S_PW1 + 1, 512 * 1376 * 2)
    k.srd(SB, S_PB1, S_PB1 + 1, 1376 * 2)
    vXo = [2, 3]; vWo = [4, 5]
    vBa = 6
    vAa = 18
    vT = 24
    vB = 32
    vA = 48
    ACC = 80
    vBias = 112
    vE = 128
    sM0 = S_T
    k.c("x dma offsets")
    k(f"s_lshl_b32 s50, s3, 1")
    for i in range(2):
        k(f"v_lshrrev_b32 v{vT}, 3, v0")
        k(f"s_add_u32 s51, s50, {i}")
        k(f"s_lshl_b32 s51, s51, 3")
        k(f"v_add_u32 v{vT}, s51, v{vT}")
        k(f"v_lshlrev_b32 v{vT}, 14, v{vT}")
        k(f"v_lshrrev_b32 v{vT+1}, 4, v0")
        k(f"v_add_u32 v{vT+1}, {4*i}, v{vT+1}")
        k(f"v_and_b32 v{vT+2}, 7, v0")
        k(f"v_xor_b32 v{vT+1}, v{vT+1}, v{vT+2}")
        k(f"v_lshl_add_u32 v{vT}, v{vT+1}, 4, v{vT}")
        k(f"s_lshl_b32 s51, {s_cls}, 10")
        k(f"v_add_u32 v{vXo[i]}, s51, v{vT}")
    k.c("w1 dma offsets")
    for i in range(2):
        k(f"s_add_u32 s51, s50, {i}")
        k(f"s_lshl_b32 s51, s51, 2")
        k(f"v_lshrrev_b32 v{vT}, 4, v0")
        k(f"v_lshlrev_b32 v{vT+1}, 2, v{vT}")
        k(f"v_and_b32 v{vT+2}, 15, v0")
        k(f"v_xor_b32 v{vT+1}, v{vT+1}, v{vT+2}")
        k(f"v_lshlrev_b32 v{vT+1}, 4, v{vT+1}")
        k(f"s_lshl_b32 s52, {s_fb}, 8")
        k(f"v_add_u32 v{vT+1}, s52, v{vT+1}")
        k(f"v_min_u32 v{vT+1}, {2752-16}, v{vT+1}")
        k(f"v_add_u32 v{vT}, s51, v{vT}")
        k(f"v_mul_u32_u24 v{vT}, 2752, v{vT}")
        k(f"v_add_u32 v{vWo[i]}, v{vT}, v{vT+1}")
    k(f"s_lshl_b32 s48, s3, 11")
    k(f"s_add_u32 s49, s48, 16384")
    def dma(c):
        slot = c % 5
        for i in range(2):
            k(f"s_add_u32 m0, s48, {slot*32768 + i*1024}")
            k(f"s_mov_b32 s53, {c*128}")
            k(f"buffer_load_dwordx4 v{vXo[i]}, s[{SX}:{SX+3}], s53 offen lds")
        for i in range(2):
            k(f"s_add_u32 m0, s49, {slot*32768 + i*1024}")
            k(f"s_mov_b32 s53, {c*64*2752}")
            k(f"buffer_load_dwordx4 v{vWo[i]}, s[{SW}:{SW+3}], s53 offen lds")
    if touch:
        nx = (16384 + touch - 1) // touch; nw = (11008 + touch - 1) // touch
        k(f"s_mul_i32 s58, s2, {nx}")
        k(f"s_lshl_b32 s59, s3, 6")
        k(f"v_add_u32 v{vT+4}, s59, v0")
        k(f"v_cmp_gt_u32 vcc, {nx}, v{vT+4}")
        k(f"v_add_u32 v{vT+5}, s58, v{vT+4}")
        k(f"v_lshlrev_b32 v{vT+5}, 7, v{vT+5}")
        k("s_and_saveexec_b64 s[60:61], vcc")
        k(f"buffer_load_dword v{vE}, v{vT+5}, s[{SX}:{SX+3}], 0 offen")
        k("s_mov_b64 exec, s[60:61]")
        k(f"s_mul_i32 s58, s2, {nw}")
        k(f"v_subrev_u32 v{vT+4}, 256, v{vT+4}")
        k(f"v_cmp_gt_u32 vcc, {nw}, v{vT+4}")
        k(f"v_add_u32 v{vT+5}, s58, v{vT+4}")
        k(f"v_lshlrev_b32 v{vT+5}, 7, v{vT+5}")
        k("s_and_saveexec_b64 s[60:61], vcc")
        k(f"buffer_load_dword v{vE+1}, v{vT+5}, s[{SW}:{SW+3}], 0 offen")
        k("s_mov_b64 exec, s[60:61]")
    k.c("bias loads (first so that vmcnt accounting is simple)")
    k(f"s_lshr_b32 s54, s3, 2")
    k(f"s_lshl_b32 s55, s54, 7")
    k(f"s_lshl_b32 s52, {s_fb}, 8")
    k(f"s_add_u32 s55, s55, s52")
    k(f"v_lshrrev_b32 v{vT}, 5, v0")
    k(f"v_lshl_add_u32 v{vT}, v{vT}, 3, s55")
    for e in range(2):
        for g in range(4):
            k(f"buffer_load_dwordx2 v[{vBias+e*8+g*2}:{vBias+e*8+g*2+1}], v{vT}, s[{SB}:{SB+3}], 0 offen offset:{e*64+g*16}")
    for c in range(5):
        dma(c)
        if order and c < 4: k("s_barrier")
    stamp(k, 1, st)
    k.c("LDS read addresses")
    k(f"s_and_b32 s56, s3, 3")
    k(f"s_lshl_b32 s57, s56, 12")
    k(f"v_and_b32 v{vT}, 31, v0")
    k(f"v_lshrrev_b32 v{vT+1}, 1, v{vT}")
    k(f"v_and_b32 v{vT+1}, 7, v{vT+1}")
    k(f"v_lshrrev_b32 v{vT+2}, 5, v0")
    k(f"v_xor_b32 v{vT+1}, v{vT+1}, v{vT+2}")
    k(f"v_lshlrev_b32 v{vT}, 7, v{vT}")
    k(f"v_add_u32 v{vT}, s57, v{vT}")
    for ks in range(4):
        k(f"v_xor_b32 v{vT+2}, {2*ks}, v{vT+1}")
        k(f"v_lshl_add_u32 v{vBa+ks}, v{vT+2}, 4, v{vT}")
        k(f"v_add_u32 v{vBa+4+ks}, 0x10000, v{vBa+ks}")
        k(f"v_add_u32 v{vBa+8+ks}, 0x20000, v{vBa+ks}")
    k(f"v_bfe_u32 v{vT}, v0, 2, 2")
    k(f"v_lshrrev_b32 v{vT+1}, 5, v0")
    k(f"v_lshl_add_u32 v{vT+1}, v{vT+1}, 3, v{vT}")
    k(f"v_lshlrev_b32 v{vT+1}, 8, v{vT+1}")
    k(f"v_bfe_u32 v{vT+2}, v0, 4, 1")
    k(f"v_bfe_u32 v{vT+3}, v0, 1, 1")
    k(f"v_lshl_add_u32 v{vT+2}, v{vT+2}, 1, v{vT+3}")
    k(f"v_and_b32 v{vT+3}, 1, v0")
    k(f"v_lshlrev_b32 v{vT+3}, 3, v{vT+3}")
    k(f"v_add3_u32 v{vT+1}, v{vT+1}, v{vT+3}, 0")
    k(f"v_add_u32 v{vT+1}, 16384, v{vT+1}")
    for e in range(2):
        k(f"s_lshl_b32 s58, s54, 1")
        k(f"s_add_u32 s58, s58, {e}")
        k(f"v_xor_b32 v{vT+4}, s58, v{vT}")
        k(f"v_lshl_add_u32 v{vT+4}, v{vT+4}, 2, v{vT+2}")
        k(f"v_lshl_add_u32 v{vAa+e}, v{vT+4}, 4, v{vT+1}")
        k(f"v_add_u32 v{vAa+2+e}, 0x10000, v{vAa+e}")
        k(f"v_add_u32 v{vAa+4+e}, 0x20000, v{vAa+e}")
    k.c("acc init from bias")
    k("s_waitcnt vmcnt(20)")
    for e in range(2):
        for g in range(4):
            for h in range(2):
                src = vBias + e*8 + g*2 + h
                d = ACC + e*16 + g*4 + h*2
                k(f"v_lshlrev_b32 v{d}, 16, v{src}")
                k(f"v_and_b32 v{d+1}, 0xffff0000, v{src}")
    waits = {0: 16, 1: 12, 2: 12, 3: 12, 4: 12, 5: 8, 6: 4, 7: 0}
    for c in range(8):
        slot = c % 5
        grp = slot // 2; so = (slot % 2) * 32768
        k.c(f"chunk {c}")
        k(f"s_waitcnt vmcnt({waits[c] if not nodma else (waits[c] if c < 1 else 0)})")
        k("s_barrier")
        if c == 0: stamp(k, 2, st)
        if 1 <= c <= 3 and not nodma: dma(c + 4)
        def reads(ks):
            k(f"ds_read_b128 v[{vB+4*ks}:{vB+4*ks+3}], v{vBa+4*grp+ks} offset:{so}")
            for e in range(2):
                for h in range(2):
                    r = vA + e*16 + ks*4 + h*2
                    k(f"ds_read_b64_tr_b16 v[{r}:{r+1}], v{vAa+2*grp+e} offset:{so + ks*4096 + h*1024}")
        def mf(ks):
            for e in range(2):
                k(f"v_mfma_f32_32x32x16_bf16 v[{ACC+16*e}:{ACC+16*e+15}], v[{vA+e*16+ks*4}:{vA+e*16+ks*4+3}], v[{vB+4*ks}:{vB+4*ks+3}], v[{ACC+16*e}:{ACC+16*e+15}]")
        if nocomp: continue
        reads(0); reads(1); reads(2)
        k("s_waitcnt lgkmcnt(10)"); mf(0)
        reads(3)
        k("s_waitcnt lgkmcnt(10)"); mf(1)
        k("s_waitcnt lgkmcnt(5)"); mf(2)
        k("s_waitcnt lgkmcnt(0)"); mf(3)
    stamp(k, 3, st)
    k.c("epilogue: gelu + store")
    k(f"s_mov_b32 s60, {f2u(GELU_C0):#x}")
    k(f"s_mov_b32 s61, s60")
    k(f"s_mov_b32 s62, {f2u(GELU_C1):#x}")
    k(f"s_mov_b32 s63, s62")
    k(f"v_mov_b32 v{vT+6}, s60")
    k(f"v_mov_b32 v{vT+7}, s60")
    k(f"s_mul_i32 s64, {s_cls}, {H_CLS}")
    k(f"s_mul_i32 s65, s56, {43*2048}")
    k(f"s_add_u32 s64, s64, s65")
    k(f"s_lshl_b32 s65, {s_fb}, 2")
    k(f"s_lshl_b32 s66, s54, 1")
    k(f"s_add_u32 s65, s65, s66")
    k(f"s_lshl_b32 s66, s65, 11")
    k(f"s_add_u32 s64, s64, s66")
    k(f"s_add_u32 s64, s64, {H_OFF}")
    k(f"v_lshlrev_b32 v{vT}, 4, v0")
    fl = " sc1" if sc1 else ""
    for e in range(2):
        Lskip = k.newlabel("g1skip")
        if e == 1:
            k("s_cmp_ge_u32 s65, 42")
            k(f"s_cbranch_scc1 {Lskip}")
        else:
            k("s_cmp_ge_u32 s65, 43")
            k(f"s_cbranch_scc1 {Lskip}")
        for stp in range(2):
            a = ACC + 16*e + 8*stp
            E = vE + (e*2+stp)*16
            P = vE + 64 + (e*2+stp)*4
            for p in range(4):
                u = a + 2*p; t = E + 2*p
                k(f"v_pk_mul_f32 v[{t}:{t+1}], v[{u}:{u+1}], v[{u}:{u+1}]")
            for p in range(4):
                t = E + 2*p
                k(f"v_pk_fma_f32 v[{t}:{t+1}], v[{t}:{t+1}], s[62:63], v[{vT+6}:{vT+7}]")
            for p in range(4):
                u = a + 2*p; t = E + 2*p
                k(f"v_pk_mul_f32 v[{t}:{t+1}], v[{t}:{t+1}], v[{u}:{u+1}]")
            for p in range(8): k(f"v_exp_f32 v{E+p}, v{E+p}")
            for p in range(4):
                t = E + 2*p
                k(f"v_pk_add_f32 v[{t}:{t+1}], v[{t}:{t+1}], 1.0 op_sel_hi:[1,0]")
            for p in range(8): k(f"v_rcp_f32 v{E+p}, v{E+p}")
            for p in range(4):
                u = a + 2*p; t = E + 2*p
                k(f"v_pk_mul_f32 v[{t}:{t+1}], v[{t}:{t+1}], v[{u}:{u+1}]")
            for p in range(4):
                k(f"v_cvt_pk_bf16_f32 v{P+p}, v{E+2*p}, v{E+2*p+1}")
            k(f"buffer_store_dwordx4 v[{P}:{P+3}], v{vT}, s[{SRD_WS}:{SRD_WS+3}], s64 offen offset:{e*2048+stp*1024}{fl}")
        k.label(Lskip)
    stamp(k, 4, st)
    k("s_waitcnt vmcnt(0)")
    stamp(k, 5, st)

FM = "v_fmamk_f32"
def fhex(f): return f"{f2u(f):#x}"

def p1(k, s_s2, s_db, st=False, sc1=False):
    SX, SG = SRD_A, SRD_B
    fl = " sc1" if sc1 else ""
    k.srd(SX, S_PX, S_PX + 1, 2048 * 512 * 2)
    k.srd(SG, S_PGW, S_PGW + 1, 1024)
    vT = 2
    vXo = 16
    vAa = 17
    vGW = 20
    vCB = 36
    vAng = 68
    vA = 84
    ACC = 148
    vQ = 180
    vR = 196
    k.c("x DMA")
    k(f"v_lshrrev_b32 v{vT}, 4, v0")
    k(f"v_lshlrev_b32 v{vT+1}, 2, v{vT}")
    k(f"v_and_b32 v{vT+2}, 15, v0")
    k(f"v_xor_b32 v{vT+1}, v{vT+1}, v{vT+2}")
    k(f"v_lshlrev_b32 v{vT+1}, 4, v{vT+1}")
    k(f"v_lshl_add_u32 v{vXo}, v{vT}, 14, v{vT+1}")
    k(f"s_lshl_b32 s50, {s_s2}, 10")
    k(f"s_lshl_b32 s51, {s_db}, 8")
    k(f"s_add_u32 s50, s50, s51")
    k(f"s_lshl_b32 s51, s3, 18")
    k(f"s_add_u32 s50, s50, s51")
    k(f"s_lshl_b32 s52, s3, 12")
    for i in range(4):
        k(f"s_add_u32 m0, s52, {i*1024}")
        k(f"s_add_u32 s53, s50, {i*4*16384}")
        k(f"buffer_load_dwordx4 v{vXo}, s[{SX}:{SX+3}], s53 offen lds")
    k.c("gate weights: 64 contiguous bytes per thread")
    k(f"v_and_b32 v{vT}, 3, v0")
    k(f"v_lshlrev_b32 v{vT}, 6, v{vT}")
    k(f"s_lshl_b32 s51, {s_db}, 8")
    for e in range(4):
        k(f"buffer_load_dwordx4 v[{vGW+4*e}:{vGW+4*e+3}], v{vT}, s[{SG}:{SG+3}], s51 offen offset:{16*e}")
    stamp(k, 1, st)
    k.c("B constants")
    k("s_and_b32 s54, s3, 3")
    k("s_lshr_b32 s55, s3, 2")
    k(f"v_bfe_u32 v{vT}, v0, 1, 4")
    k("s_lshl_b32 s56, s54, 4")
    k(f"v_add_u32 v{vT}, s56, v{vT}")
    k(f"v_cvt_f32_u32 v{vT+1}, v{vT}")
    k(f"v_mul_f32 v{vT+2}, {fhex(1/128)}, v{vT+1}")
    k(f"v_cvt_f32_u32 v{vT+3}, {s_s2}")
    k(f"v_mul_f32 v{vT+3}, {fhex(1/2048)}, v{vT+3}")
    k(f"v_mul_f32 v{vT+3}, v{vT+3}, v{vT+1}")
    k(f"v_and_b32 v{vT+4}, 1, v0")
    k(f"v_cvt_f32_u32 v{vT+5}, v{vT+4}")
    k(f"v_fmac_f32 v{vT+3}, 0.25, v{vT+5}")
    k(f"v_lshl_or_b32 v{vT+6}, v{vT}, 1, v{vT+4}")
    k(f"v_cmp_eq_u32 vcc, 1, v{vT+6}")
    k(f"v_mov_b32 v{vT+7}, 0.5")
    k(f"v_cndmask_b32 v{vT+2}, v{vT+2}, v{vT+7}, vcc")
    k(f"v_mov_b32 v{vT+7}, 0")
    k(f"v_cndmask_b32 v{vT+3}, v{vT+3}, v{vT+7}, vcc")
    k(f"v_lshrrev_b32 v{vT+4}, 5, v0")
    k(f"v_lshlrev_b32 v{vT+4}, 3, v{vT+4}")
    k(f"v_cvt_f32_u32 v{vT+4}, v{vT+4}")
    k(f"v_fmac_f32 v{vT+3}, v{vT+4}, v{vT+2}")
    vD, vA0 = vT + 2, vT + 3
    for t in range(8):
        for j in range(8):
            kk = 16 * t + j
            if kk == 0: k(f"v_mov_b32 v{vAng+j}, v{vA0}")
            else: k(f"{FM} v{vAng+j}, v{vD}, {fhex(float(kk))}, v{vA0}")
        for j in range(8): k(f"v_cos_f32 v{vAng+j}, v{vAng+j}")
        for j in range(4): k(f"v_cvt_pk_bf16_f32 v{vCB+4*t+j}, v{vAng+2*j}, v{vAng+2*j+1}")
    k.c("A frag addresses")
    k(f"v_bfe_u32 v{vT}, v0, 2, 2")
    k(f"v_lshrrev_b32 v{vT+1}, 5, v0")
    k(f"v_lshl_add_u32 v{vT+1}, v{vT+1}, 3, v{vT}")
    k(f"v_lshlrev_b32 v{vT+1}, 8, v{vT+1}")
    k(f"v_bfe_u32 v{vT+4}, v0, 4, 1")
    k(f"v_bfe_u32 v{vT+5}, v0, 1, 1")
    k(f"v_lshl_add_u32 v{vT+4}, v{vT+4}, 1, v{vT+5}")
    k(f"v_and_b32 v{vT+5}, 1, v0")
    k(f"v_lshl_add_u32 v{vT+1}, v{vT+5}, 3, v{vT+1}")
    for e in range(2):
        k(f"s_lshl_b32 s58, s55, 1")
        k(f"s_add_u32 s58, s58, {e}")
        k(f"v_xor_b32 v{vT+6}, s58, v{vT}")
        k(f"v_lshl_add_u32 v{vT+6}, v{vT+6}, 2, v{vT+4}")
        k(f"v_lshl_add_u32 v{vAa+e}, v{vT+6}, 4, v{vT+1}")
    k("s_waitcnt vmcnt(4)")
    k("s_barrier")
    stamp(k, 2, st)
    def rd(t):
        for e in range(2):
            for h in range(2):
                r = vA + e*32 + t*4 + h*2
                k(f"ds_read_b64_tr_b16 v[{r}:{r+1}], v{vAa+e} offset:{t*4096 + h*1024}")
    def mf(t):
        for e in range(2):
            c = "0" if t == 0 else f"v[{ACC+16*e}:{ACC+16*e+15}]"
            k(f"v_mfma_f32_32x32x16_bf16 v[{ACC+16*e}:{ACC+16*e+15}], v[{vA+e*32+t*4}:{vA+e*32+t*4+3}], v[{vCB+4*t}:{vCB+4*t+3}], {c}")
    rd(0); rd(1); rd(2)
    for t in range(8):
        if t + 3 < 8:
            k("s_waitcnt lgkmcnt(8)"); mf(t); rd(t + 3)
        else:
            k(f"s_waitcnt lgkmcnt({4*(7-t)})"); mf(t)
    stamp(k, 3, st)
    k.c("pack, transpose through LDS")
    k(f"v_and_b32 v{vT}, 31, v0")
    k(f"s_lshl_b32 s58, s54, 5")
    k(f"v_add_u32 v{vT}, s58, v{vT}")
    k(f"v_mul_u32_u24 v{vT}, 272, v{vT}")
    k(f"v_lshrrev_b32 v{vT+1}, 5, v0")
    k(f"v_lshl_add_u32 v{vT}, v{vT+1}, 4, v{vT}")
    k(f"s_lshl_b32 s58, s55, 7")
    k(f"s_add_u32 s58, s58, 32768")
    k(f"v_add_u32 v{vT}, s58, v{vT}")
    for e in range(2):
        for g in range(4):
            for h in range(2):
                k(f"v_cvt_pk_bf16_f32 v{vQ+e*8+g*2+h}, v{ACC+16*e+4*g+2*h}, v{ACC+16*e+4*g+2*h+1}")
        for pr in range(2):
            q = vQ + e*8 + pr*4
            k(f"v_permlane32_swap_b32 v{q}, v{q+2}")
            k(f"v_permlane32_swap_b32 v{q+1}, v{q+3}")
            k(f"ds_write_b128 v{vT}, v[{q}:{q+3}] offset:{e*64 + pr*32}")
    k("s_waitcnt lgkmcnt(0)")
    k("s_barrier")
    k(f"v_lshrrev_b32 v{vT}, 4, v0")
    k(f"s_lshl_b32 s58, s3, 4")
    k(f"v_add_u32 v{vT+1}, s58, v{vT}")
    k(f"v_mul_u32_u24 v{vT+1}, 272, v{vT+1}")
    k(f"v_and_b32 v{vT+2}, 15, v0")
    k(f"v_lshl_add_u32 v{vT+1}, v{vT+2}, 4, v{vT+1}")
    k(f"v_add_u32 v{vT+1}, 32768, v{vT+1}")
    for i in range(4):
        k(f"ds_read_b128 v[{vR+4*i}:{vR+4*i+3}], v{vT+1} offset:{i*4*272}")
    k(f"v_lshrrev_b32 v{vT+3}, 1, v{vT}")
    k(f"v_lshlrev_b32 v{vT+3}, 15, v{vT+3}")
    k(f"v_and_b32 v{vT+4}, 1, v{vT}")
    k(f"v_lshl_add_u32 v{vT+3}, v{vT+4}, 10, v{vT+3}")
    k(f"v_lshl_add_u32 v{vT+3}, v{vT+2}, 4, v{vT+3}")
    k(f"s_lshl_b32 s58, s3, 18")
    k(f"s_lshl_b32 s59, {s_s2}, 11")
    k(f"s_add_u32 s58, s58, s59")
    k(f"s_lshl_b32 s59, {s_db}, 8")
    k(f"s_add_u32 s58, s58, s59")
    k(f"s_add_u32 s58, s58, {R_OFF}")
    for i in range(4):
        k(f"s_waitcnt lgkmcnt({3-i})")
        k(f"s_add_u32 s59, s58, {i*2*32768}")
        k(f"buffer_store_dwordx4 v[{vR+4*i}:{vR+4*i+3}], v{vT+3}, s[{SRD_WS}:{SRD_WS+3}], s59 offen{fl}")
    stamp(k, 4, st)
    k.c("gate partials")
    k(f"v_lshrrev_b32 v{vT}, 2, v0")
    k(f"s_lshl_b32 s58, s3, 4")
    k(f"v_add_u32 v{vT}, s58, v{vT}")
    k(f"v_and_b32 v{vT+1}, 3, v0")
    k(f"v_and_b32 v{vT+2}, 3, v{vT}")
    k(f"v_xor_b32 v{vT+1}, v{vT+1}, v{vT+2}")
    k(f"v_lshlrev_b32 v{vT+1}, 6, v{vT+1}")
    k(f"v_lshl_add_u32 v{vT+1}, v{vT}, 8, v{vT+1}")
    for e in range(4):
        k(f"ds_read_b128 v[{vA+4*e}:{vA+4*e+3}], v{vT+1} offset:{16*e}")
    k(f"v_mov_b32 v{vT+2}, 0")
    k("s_waitcnt lgkmcnt(0)")
    for e in range(16):
        k(f"v_dot2_f32_bf16 v{vT+2}, v{vA+e}, v{vGW+e}, v{vT+2}")
    k(f"v_add_f32_dpp v{vT+2}, v{vT+2}, v{vT+2} quad_perm:[1,0,3,2] row_mask:0xf bank_mask:0xf")
    k(f"v_add_f32_dpp v{vT+2}, v{vT+2}, v{vT+2} quad_perm:[2,3,0,1] row_mask:0xf bank_mask:0xf")
    k(f"s_lshl_b32 s58, {s_db}, 4")
    k(f"s_add_u32 s58, s58, {s_s2}")
    k(f"s_lshl_b32 s58, s58, 9")
    k(f"s_add_u32 s58, s58, {GP_OFF}")
    k(f"v_lshlrev_b32 v{vT}, 2, v{vT}")
    k(f"v_and_b32 v{vT+1}, 3, v0")
    k(f"v_cmp_eq_u32 vcc, 0, v{vT+1}")
    k("s_and_saveexec_b64 s[60:61], vcc")
    k(f"buffer_store_dword v{vT+2}, v{vT}, s[{SRD_WS}:{SRD_WS+3}], s58 offen{fl}")
    k("s_mov_b64 exec, s[60:61]")
    k("s_waitcnt vmcnt(0)")
    stamp(k, 5, st)


def interleave(a, b):
    out = []; na, nb = len(a), len(b); j = 0
    for i, x in enumerate(a):
        out.append(x)
        tgt = (i + 1) * nb // na
        while j < tgt:
            out.append(b[j]); j += 1
    out += b[j:]
    return out

def sincos_set(k, vang0, vdelta, vt, dst_c, dst_s, scale=None):
    pass

PK = False
EXP = None
P2_SLAB = 0; P2_E1 = 32768; P2_E2 = 65536; P2_PITCH = 1056

def p2_pre(k, s_task, R):
    SWR, SWI = SRD_A, SRD_B
    k.srd(SWR, S_PWR, S_PWR + 1, 2048 * 514)
    k.srd(SWI, S_PWI, S_PWI + 1, 2048 * 514)
    vT = R["T"]; W = R["W"]; WX = R["WX"]; WA = R["work"]
    vN, vQ = R["n"], R["q"]
    k(f"v_and_b32 v{vN}, 15, v0")
    k(f"v_lshrrev_b32 v{vQ}, 4, v0")
    k.c("W loads")
    k(f"v_lshlrev_b32 v{vT}, 1, v{vN}")
    k(f"v_lshl_add_u32 v{vT}, v{vQ}, 8, v{vT}")
    k(f"v_sub_u32 v{vT+1}, 1024, v{vT}")
    k(f"v_cmp_gt_u32 vcc, 32, v0")
    k(f"v_mov_b32 v{vT+2}, -32")
    k(f"v_mov_b32 v{vT+3}, 32")
    k(f"v_cndmask_b32 v{vT+2}, v{vT+2}, v{vT+3}, vcc")
    k(f"v_and_b32 v{vT+3}, 31, v0")
    k(f"v_cmp_eq_u32 s[62:63], 0, v{vT+3}")
    for row in range(2):
        k(f"s_lshl_b32 s50, s3, 1")
        k(f"s_add_u32 s50, s50, {row}")
        k(f"s_lshl_b32 s50, s50, 7")
        k(f"s_add_u32 s50, s50, {s_task}")
        k(f"s_sub_u32 s51, 2048, s50")
        k(f"s_and_b32 s51, s51, 2047")
        k(f"s_mul_i32 s50, s50, 514")
        k(f"s_mul_i32 s51, s51, 514")
        k(f"v_add_u32 v{vT+4}, s50, v{vT}")
        k(f"v_add_u32 v{vT+5}, s51, v{vT+1}")
        k(f"v_cndmask_b32 v{vT+4}, v{vT+5}, v{vT+4}, vcc")
        k(f"s_add_u32 s52, s50, 512")
        k(f"v_mov_b32 v{vT+5}, s52")
        k(f"v_mov_b32 v{vT+6}, s51")
        k(f"v_cndmask_b32 v{vT+5}, v{vT+5}, v{vT+6}, vcc")
        k(f"v_cndmask_b32 v{vT+5}, v{vT+4}, v{vT+5}, s[62:63]")
        for m in range(1, 8):
            k(f"v_mad_i32_i24 v{WA+8*row+m}, v{vT+2}, {m}, v{vT+4}")
        for t in range(2):
            for i in range(4):
                m = t + 2 * i
                a = vT + 4 if m == 0 else WA + 8*row + m
                k(f"buffer_load_ushort v{W+16*row+8*t+i}, v{a}, s[{SWR}:{SWR+3}], 0 offen")
                k(f"buffer_load_ushort v{W+16*row+8*t+4+i}, v{a}, s[{SWI}:{SWI+3}], 0 offen")
        k(f"buffer_load_ushort v{WX+2*row}, v{vT+5}, s[{SWR}:{SWR+3}], 0 offen")
        k(f"buffer_load_ushort v{WX+2*row+1}, v{vT+5}, s[{SWI}:{SWI+3}], 0 offen")

def p2_consts(k, s_task, R):
    vT = R["T"]; vN, vQ = R["n"], R["q"]; WA = R["work"]
    FS, F16, A1, B5 = R["FS"], R["F16"], R["A1"], R["B5"]
    TW1C, TW1S, TW2C, TW2S = R["TW1C"], R["TW1S"], R["TW2C"], R["TW2S"]
    nf, q4 = vT, vT + 1
    k(f"v_cvt_f32_u32 v{nf}, v{vN}")
    k(f"v_lshlrev_b32 v{q4}, 2, v{vQ}")
    k(f"v_cvt_f32_u32 v{q4}, v{q4}")
    k(f"s_cmp_eq_u32 {s_task}, 64")
    k(f"s_cselect_b32 s54, 0x3f800000, 0")
    an = WA; cs = WA + 4; sn = WA + 8
    def cset(vdelta, va0, C01, C23, S01, S23):
        for j in range(4):
            if j == 0: k(f"v_mov_b32 v{an}, v{va0}")
            else: k(f"v_fma_f32 v{an+j}, v{vdelta}, {float(j)}, v{va0}" if j != 3 else f"v_fmamk_f32 v{an+j}, v{vdelta}, {fhex(3.0)}, v{va0}")
        for j in range(4): k(f"v_cos_f32 v{cs+j}, v{an+j}")
        for j in range(4): k(f"v_sin_f32 v{sn+j}, v{an+j}")
        k(f"v_cvt_pk_bf16_f32 v{C01}, v{cs}, v{cs+1}")
        k(f"v_cvt_pk_bf16_f32 v{C23}, v{cs+2}, v{cs+3}")
        k(f"v_cvt_pk_bf16_f32 v{S01}, v{sn}, v{sn+1}")
        k(f"v_cvt_pk_bf16_f32 v{S23}, v{sn+2}, v{sn+3}")
    d, a0 = vT + 2, vT + 3
    k.c("F32 sets")
    k(f"v_mul_f32 v{d}, {fhex(1/32)}, v{nf}")
    k(f"v_mul_f32 v{a0}, v{d}, v{q4}")
    cset(d, a0, FS + 2, FS + 3, FS + 4, FS + 5)
    k(f"v_xor_b32 v{FS}, 0x80008000, v{FS+4}")
    k(f"v_xor_b32 v{FS+1}, 0x80008000, v{FS+5}")
    k(f"v_and_b32 v{vT+4}, 1, v{vN}")
    k(f"v_mul_u32_u24 v{vT+4}, 0x8000, v{vT+4}")
    k(f"v_lshl_or_b32 v{vT+4}, v{vT+4}, 16, v{vT+4}")
    k(f"v_xor_b32 v{vT+5}, 0x80000000, v{vT+4}")
    for r in range(6):
        k(f"v_xor_b32 v{FS+6+r}, v{vT+4}, v{FS+r}")
        k(f"v_xor_b32 v{FS+12+r}, 0x80000000, v{FS+r}")
        k(f"v_xor_b32 v{FS+18+r}, v{vT+5}, v{FS+r}")
    k.c("F16 set")
    k(f"v_mul_f32 v{d}, {fhex(1/16)}, v{nf}")
    k(f"v_mul_f32 v{a0}, v{d}, v{q4}")
    cset(d, a0, F16 + 2, F16 + 3, F16 + 4, F16 + 5)
    k(f"v_xor_b32 v{F16}, 0x80008000, v{F16+4}")
    k(f"v_xor_b32 v{F16+1}, 0x80008000, v{F16+5}")
    k.c("A1: angle (4q+j)(2n+e)/32")
    k(f"v_fma_f32 v{d}, v{nf}, 2.0, s54")
    k(f"v_mul_f32 v{d}, {fhex(1/32)}, v{d}")
    k(f"v_mul_f32 v{a0}, v{d}, v{q4}")
    t0 = WA + 12
    cset(d, a0, t0, t0 + 1, t0 + 2, t0 + 3)
    k(f"v_xor_b32 v{t0+4}, 0x80008000, v{t0+2}")
    k(f"v_xor_b32 v{t0+5}, 0x80008000, v{t0+3}")
    L0, L64, Lj = k.newlabel("a1_0"), k.newlabel("a1_64"), k.newlabel("a1_j")
    C01, C23, S01, S23, N01, N23 = [f"v{t0+i}" for i in range(6)]
    def setA(vals):
        for r, x in enumerate(vals): k(f"v_mov_b32 v{A1+r}, {x}")
    k(f"s_cmp_eq_u32 {s_task}, 0"); k(f"s_cbranch_scc1 {L0}")
    k(f"s_cmp_eq_u32 {s_task}, 64"); k(f"s_cbranch_scc1 {L64}")
    setA([C01, C23, S01, S23, N01, N23, C01, C23]); k(f"s_branch {Lj}")
    k.label(L0); setA([C01, C23, 0, 0, N01, N23, 0, 0]); k(f"s_branch {Lj}")
    k.label(L64); setA([0, 0, C01, C23, 0, 0, N01, N23])
    k.label(Lj)
    k.c("B5: angle n(2u2+e)/32")
    k(f"v_mul_f32 v{d}, {fhex(1/16)}, v{nf}")
    k(f"v_mul_f32 v{a0}, s54, v{nf}")
    k(f"v_mul_f32 v{a0}, {fhex(1/32)}, v{a0}")
    k(f"v_fmac_f32 v{a0}, v{d}, v{q4}")
    cset(d, a0, B5, B5 + 2, B5 + 1, B5 + 3)
    k(f"v_mov_b32 v{B5+4}, v{B5+1}")
    k(f"v_xor_b32 v{B5+5}, 0x80008000, v{B5}")
    k(f"v_mov_b32 v{B5+6}, v{B5+3}")
    k(f"v_xor_b32 v{B5+7}, 0x80008000, v{B5+2}")
    k.c("twiddles")
    k(f"s_and_b32 s55, {s_task}, 63")
    k(f"s_cmp_eq_u32 s55, 0")
    k(f"s_mov_b32 s56, {fhex(2.0**-19)}")
    k(f"s_cselect_b32 s55, {fhex(2.0**-20)}, s56")
    for t in range(2):
        k(f"v_add_f32 v{d}, {fhex(16.0*t)}, v{nf}" if t else f"v_mov_b32 v{d}, v{nf}")
        k(f"v_mul_f32 v{d}, {fhex(1/512)}, v{d}")
        k(f"v_mul_f32 v{a0}, v{d}, v{q4}")
        for j in range(4):
            if j == 0: k(f"v_mov_b32 v{an}, v{a0}")
            elif j == 3: k(f"v_fmamk_f32 v{an+j}, v{d}, {fhex(3.0)}, v{a0}")
            else: k(f"v_fma_f32 v{an+j}, v{d}, {float(j)}, v{a0}")
        for j in range(4): k(f"v_cos_f32 v{TW1C+4*t+j}, v{an+j}")
        for j in range(4): k(f"v_sin_f32 v{TW1S+4*t+j}, v{an+j}")
        k(f"v_mul_f32 v{d}, {fhex(1/512)}, v{nf}")
        k(f"v_add_f32 v{a0}, {fhex(16.0*t)}, v{q4}" if t else f"v_mov_b32 v{a0}, v{q4}")
        k(f"v_mul_f32 v{a0}, v{a0}, v{d}")
        for j in range(4):
            if j == 0: k(f"v_mov_b32 v{an}, v{a0}")
            elif j == 3: k(f"v_fmamk_f32 v{an+j}, v{d}, {fhex(3.0)}, v{a0}")
            else: k(f"v_fma_f32 v{an+j}, v{d}, {float(j)}, v{a0}")
        for j in range(4): k(f"v_cos_f32 v{cs+j}, v{an+j}")
        for j in range(4): k(f"v_sin_f32 v{sn+j}, v{an+j}")
        for j in range(4): k(f"v_mul_f32 v{TW2C+4*t+j}, s55, v{cs+j}")
        for j in range(4): k(f"v_mul_f32 v{TW2S+4*t+j}, s55, v{sn+j}")

def p2_wfix(k, R):
    vT = R["T"]; W = R["W"]; WX = R["WX"]
    k(f"v_cmp_gt_u32 vcc, 32, v0")
    k(f"v_mov_b32 v{vT}, 0x80000000")
    k(f"v_mov_b32 v{vT+1}, 0")
    k(f"v_cndmask_b32 v{vT}, v{vT}, v{vT+1}, vcc")
    k(f"v_and_b32 v{vT+1}, 31, v0")
    k(f"v_cmp_eq_u32 vcc, 0, v{vT+1}")
    k(f"v_xor_b32 v{vT+1}, 0x80000000, v{vT}")
    k(f"v_cndmask_b32 v{vT+1}, v{vT}, v{vT+1}, vcc")
    for row in range(2):
        for t in range(2):
            for i in range(4):
                r = W + 16*row + 8*t + i
                k(f"v_lshlrev_b32 v{r}, 16, v{r}")
                k(f"v_lshl_add_u32 v{r+4}, v{r+4}, 16, v{vT}")
        k(f"v_lshlrev_b32 v{WX+2*row}, 16, v{WX+2*row}")
        k(f"v_lshl_add_u32 v{WX+2*row+1}, v{WX+2*row+1}, 16, v{vT+1}")
        r = W + 16*row
        k(f"v_add_f32 v{r}, v{r}, v{WX+2*row}")
        k(f"v_add_f32 v{r+4}, v{r+4}, v{WX+2*row+1}")
        k(f"v_mul_f32 v{r}, 0.5, v{r}")
        k(f"v_mul_f32 v{r+4}, 0.5, v{r+4}")

def p2_regs():
    R = dict(T=2, n=16, q=17, FS=20, F16=44, A1=50, B5=58, TW1C=66, TW1S=74, TW2C=82, TW2S=90, W=98, WX=130,
             dma=134, tr=136, e1w=140, e1r=141, e2w=142, e2r=143, t3=145, work=148)
    return R

def p2_addr(k, s_task, R):
    vT = R["T"]; vN, vQ = R["n"], R["q"]
    k.c("LDS addresses")
    k(f"v_bfe_u32 v{vT}, v0, 2, 2")
    k(f"v_lshl_add_u32 v{vT}, v{vQ}, 2, v{vT}")
    k(f"v_and_b32 v{vT+1}, 7, v{vT}")
    k(f"v_lshlrev_b32 v{vT+1}, 1, v{vT+1}")
    k(f"v_bfe_u32 v{vT+2}, v0, 1, 1")
    k(f"s_lshl_b32 s50, s3, 3")
    k(f"v_or_b32 v{vT+2}, s50, v{vT+2}")
    k(f"v_xor_b32 v{vT+2}, v{vT+2}, v{vT+1}")
    k(f"v_lshlrev_b32 v{vT+2}, 4, v{vT+2}")
    k(f"v_lshl_add_u32 v{vT+2}, v{vT}, 11, v{vT+2}")
    k(f"v_and_b32 v{vT+3}, 1, v0")
    k(f"v_lshl_add_u32 v{R['tr']}, v{vT+3}, 3, v{vT+2}")
    if P2_SLAB: k(f"v_add_u32 v{R['tr']}, {P2_SLAB}, v{R['tr']}")
    for dd in range(1, 4):
        k(f"v_xor_b32 v{R['tr']+dd}, {dd*32}, v{R['tr']}")
    k(f"v_lshlrev_b32 v{vT}, 13, v{vQ}")
    k(f"v_lshl_add_u32 v{vT}, v{vN}, 4, v{vT}")
    k(f"s_lshl_b32 s50, s3, 8")
    k(f"s_add_u32 s50, s50, {P2_E1}")
    k(f"v_add_u32 v{R['e1w']}, s50, v{vT}")
    k(f"s_lshl_b32 s50, s3, 12")
    k(f"s_add_u32 s50, s50, {P2_E1}")
    k(f"v_lshl_add_u32 v{R['e1r']}, v0, 4, s50")
    k(f"v_mul_u32_u24 v{vT}, {4*P2_PITCH}, v{vQ}")
    k(f"v_lshl_add_u32 v{vT}, v{vN}, 3, v{vT}")
    k(f"s_lshl_b32 s50, s3, 7")
    k(f"s_add_u32 s50, s50, {P2_E2}")
    k(f"v_add_u32 v{R['e2w']}, s50, v{vT}")
    k(f"v_lshrrev_b32 v{vT}, 3, v{vN}")
    k(f"s_lshl_b32 s50, s3, 2")
    k(f"v_add_u32 v{vT}, s50, v{vT}")
    k(f"v_mul_u32_u24 v{vT}, {P2_PITCH}, v{vT}")
    k(f"v_lshl_add_u32 v{vT}, v{vQ}, 8, v{vT}")
    k(f"v_bfe_u32 v{vT+1}, v0, 2, 1")
    k(f"v_lshl_add_u32 v{vT}, v{vT+1}, 6, v{vT}")
    k(f"v_and_b32 v{vT+1}, 3, v0")
    k(f"v_lshl_add_u32 v{vT}, v{vT+1}, 3, v{vT}")
    k(f"v_add_u32 v{R['e2r']}, {P2_E2}, v{vT}")
    k(f"v_add_u32 v{R['e2r']+1}, {P2_E2 + 2*P2_PITCH}, v{vT}")
    k(f"v_lshlrev_b32 v{vT}, 17, v{vN}")
    k(f"v_lshl_add_u32 v{vT}, v{vQ}, 4, v{vT}")
    k(f"s_lshl_b32 s50, s3, 7")
    k(f"v_add_u32 v{R['t3']}, s50, v{vT}")

def p2_slab_dma(k, s_task, R, sc1=False):
    vT = R["T"]
    fl = " sc1" if sc1 else ""
    k.c("R slab DMA")
    k(f"s_and_b32 s50, {s_task}, 63")
    k(f"s_lshl_b32 s50, s50, 15")
    k(f"s_add_u32 s50, s50, {R_OFF}")
    k(f"s_lshl_b32 s51, s3, 12")
    k(f"s_add_u32 s50, s50, s51")
    k(f"s_add_u32 s51, s51, {P2_SLAB}")
    for h in range(2):
        k(f"s_lshl_b32 s52, s3, 1")
        k(f"s_add_u32 s52, s52, {h}")
        k(f"s_and_b32 s52, s52, 7")
        k(f"s_lshl_b32 s52, s52, 1")
        k(f"v_xor_b32 v{R['dma']+h}, s52, v0")
        k(f"v_lshlrev_b32 v{R['dma']+h}, 4, v{R['dma']+h}")
    for r in range(4):
        k(f"s_add_u32 m0, s51, {r*1024}")
        k(f"s_add_u32 s53, s50, {r*1024}")
        k(f"buffer_load_dwordx4 v{R['dma']+(r>>1)}, s[{SRD_WS}:{SRD_WS+3}], s53 offen lds{fl}")

def p2_main(k, s_task, R, st=False, sc1=False, stbase=3):
    fl = " sc1" if sc1 else ""
    FS, F16, A1, B5 = R["FS"], R["F16"], R["A1"], R["B5"]
    TW1C, TW1S, TW2C, TW2S = R["TW1C"], R["TW1S"], R["TW2C"], R["TW2S"]
    W = R["W"]; WA = R["work"]
    BF = WA; D = WA + 16; P = WA + 48; X = WA + 64
    def fs(t, g, cp): return FS + 6*(2*t+g) + (2 if cp == 0 else 0)
    def f16(cp): return F16 + (2 if cp == 0 else 0)
    def mf(d, a, b, c=None):
        cc = "0" if c is None else f"v[{c}:{c+3}]"
        return f"v_mfma_f32_16x16x32_bf16 v[{d}:{d+3}], v[{a}:{a+3}], v[{b}:{b+3}], {cc}"
    k.c("stage (i)")
    for dd in range(4):
        for c in range(2):
            r = BF + 4*dd + 2*c
            k(f"ds_read_b64_tr_b16 v[{r}:{r+1}], v{R['tr']+dd} offset:{c*1024}")
    for dd in range(4):
        k(f"s_waitcnt lgkmcnt({6-2*dd})")
        for cp in range(2):
            k(mf(D + 8*dd + 4*cp, A1 + 4*cp, BF + 4*dd))
    for i in range(4):
        for cp in range(2):
            for h in range(2):
                k(f"v_cvt_pk_bf16_f32 v{P+4*i+2*cp+h}, v{D+8*(2*h)+4*cp+i}, v{D+8*(2*h+1)+4*cp+i}")
        k(f"ds_write_b128 v{R['e1w']}, v[{P+4*i}:{P+4*i+3}] offset:{i*2048}")
    k("s_waitcnt lgkmcnt(0)")
    k("s_barrier")
    stamp(k, stbase, st == 1)
    stamp(k, 7, st == 2)
    k.c("step A")
    AF = WA
    for row in range(2):
        for g in range(2):
            r = AF + 8*row + 4*g
            k(f"ds_read_b128 v[{r}:{r+3}], v{R['e1r']} offset:{row*2048 + g*1024}")
    def d1(row, t, cp): return D + 16*row + 8*t + 4*cp
    def frag(row, t): return P + 8*row + 4*t
    def stepA(row):
        o = []
        for g in range(2):
            for t in range(2):
                for cp in range(2):
                    o.append(mf(d1(row, t, cp), AF + 8*row + 4*g, fs(t, g, cp), None if g == 0 else d1(row, t, cp)))
        return o
    def cmul(row, C, S, kind):
        o = []
        for t in range(2):
            re, im = d1(row, t, 0), d1(row, t, 1)
            x = X + 8*t
            c_, s_ = C(t), S(t)
            def pr(a, h): return f"v[{a+2*h}:{a+2*h+1}]"
            if not PK:
                if kind == "tw":
                    for i in range(4): o.append(f"v_mul_f32 v{x+i}, v{re+i}, v{c_+i}")
                    for i in range(4): o.append(f"v_mul_f32 v{x+4+i}, v{im+i}, v{c_+i}")
                    for i in range(4): o.append(f"v_fmac_f32 v{x+i}, v{im+i}, v{s_+i}")
                    for i in range(4): o.append(f"v_fma_f32 v{x+4+i}, -v{re+i}, v{s_+i}, v{x+4+i}")
                else:
                    for i in range(4): o.append(f"v_mul_f32 v{x+i}, v{re+i}, v{c_+i}")
                    for i in range(4): o.append(f"v_mul_f32_e64 v{x+4+i}, -v{re+i}, v{s_+i}")
                    for i in range(4): o.append(f"v_fma_f32 v{x+i}, -v{im+i}, v{s_+i}, v{x+i}")
                    for i in range(4): o.append(f"v_fma_f32 v{x+4+i}, -v{im+i}, v{c_+i}, v{x+4+i}")
            elif kind == "tw":
                for h in range(2): o.append(f"v_pk_mul_f32 {pr(x,h)}, {pr(re,h)}, {pr(c_,h)}")
                for h in range(2): o.append(f"v_pk_mul_f32 {pr(x+4,h)}, {pr(im,h)}, {pr(c_,h)}")
                for h in range(2): o.append(f"v_pk_fma_f32 {pr(x,h)}, {pr(im,h)}, {pr(s_,h)}, {pr(x,h)}")
                for h in range(2): o.append(f"v_pk_fma_f32 {pr(x+4,h)}, {pr(re,h)}, {pr(s_,h)}, {pr(x+4,h)} neg_lo:[1,0,0] neg_hi:[1,0,0]")
            else:
                for h in range(2): o.append(f"v_pk_mul_f32 {pr(x,h)}, {pr(re,h)}, {pr(c_,h)}")
                for h in range(2): o.append(f"v_pk_mul_f32 {pr(x+4,h)}, {pr(re,h)}, {pr(s_,h)} neg_lo:[1,0] neg_hi:[1,0]")
                for h in range(2): o.append(f"v_pk_fma_f32 {pr(x,h)}, {pr(im,h)}, {pr(s_,h)}, {pr(x,h)} neg_lo:[1,0,0] neg_hi:[1,0,0]")
                for h in range(2): o.append(f"v_pk_fma_f32 {pr(x+4,h)}, {pr(im,h)}, {pr(c_,h)}, {pr(x+4,h)} neg_lo:[1,0,0] neg_hi:[1,0,0]")
            f = frag(row, t)
            for h in range(2): o.append(f"v_cvt_pk_bf16_f32 v{f+h}, v{x+2*h}, v{x+2*h+1}")
            for h in range(2): o.append(f"v_cvt_pk_bf16_f32 v{f+2+h}, v{x+4+2*h}, v{x+4+2*h+1}")
        return o
    tw1 = lambda row: cmul(row, lambda t: TW1C + 4*t, lambda t: TW1S + 4*t, "tw")
    wm = lambda row: cmul(row, lambda t: W + 16*row + 8*t, lambda t: W + 16*row + 8*t + 4, "w")
    tw2 = lambda row: cmul(row, lambda t: TW2C + 4*t, lambda t: TW2S + 4*t, "tw")
    def stepB(row):
        return [mf(d1(row, t, cp), f16(cp), frag(row, t)) for t in range(2) for cp in range(2)]
    def stepBp(row):
        return [mf(d1(row, t, cp), frag(row, t), f16(cp)) for t in range(2) for cp in range(2)]
    def stepAp(row):
        o = []
        for t in range(2):
            for tp in range(2):
                for cp in range(2):
                    o.append(mf(d1(row, tp, cp), fs(tp, t, cp), frag(row, t), None if t == 0 else d1(row, tp, cp)))
        return o
    def emit(l):
        for x in l:
            if EXP == "nomfma" and "mfma" in x: continue
            if EXP == "novalu" and "mfma" not in x: continue
            k(x)
    k("s_waitcnt lgkmcnt(2)")
    emit(stepA(0))
    k("s_waitcnt lgkmcnt(0)")
    emit(interleave(stepA(1), tw1(0)))
    emit(interleave(stepB(0), tw1(1)))
    emit(interleave(stepB(1), wm(0)))
    emit(interleave(stepBp(0), wm(1)))
    emit(interleave(stepBp(1), tw2(0)))
    emit(interleave(stepAp(0), tw2(1)))
    emit(stepAp(1))
    stamp(k, stbase + 1, st)
    k.c("E2 write")
    for tp in range(2):
        for i in range(4):
            p = P + 2*(4*tp + i)
            k(f"v_cvt_pk_bf16_f32 v{p}, v{d1(0,tp,0)+i}, v{d1(1,tp,0)+i}")
            k(f"v_cvt_pk_bf16_f32 v{p+1}, v{d1(0,tp,1)+i}, v{d1(1,tp,1)+i}")
            k(f"ds_write_b64 v{R['e2w']}, v[{p}:{p+1}] offset:{(16*tp+i)*P2_PITCH}")
    k("s_waitcnt lgkmcnt(0)")
    stamp(k, 1, st == 2)
    k("s_barrier")
    stamp(k, 2, st == 2)
    k.c("stage (v)")
    for r in range(4):
        o = 4*(r & 1)
        k(f"ds_read2_b64 v[{AF+4*r}:{AF+4*r+3}], v{R['e2r']+(r>>1)} offset0:{o} offset1:{o+16}")
    for r in range(4):
        k(f"s_waitcnt lgkmcnt({3-r})")
        for cp in range(2):
            k(mf(D + 8*r + 4*cp, AF + 4*r, B5 + 4*cp))
    stamp(k, 3, st == 2)
    k(f"s_and_b32 s50, {s_task}, 63")
    k(f"s_lshl_b32 s50, s50, 11")
    k(f"s_lshr_b32 s51, {s_task}, 6")
    k(f"s_lshl_b32 s51, s51, 10")
    k(f"s_add_u32 s50, s50, s51")
    k(f"s_add_u32 s50, s50, {T3_OFF}")
    Lsk = k.newlabel("p2sk")
    for cp in range(2):
        if cp == 1:
            k(f"s_and_b32 s51, {s_task}, 63")
            k(f"s_cmp_eq_u32 s51, 0")
            k(f"s_cbranch_scc1 {Lsk}")
        for hb in range(2):
            p = P + 8*cp + 4*hb
            for rr in range(2):
                r = 2*hb + rr
                for h in range(2):
                    k(f"v_cvt_pk_bf16_f32 v{p+2*rr+h}, v{D+8*r+4*cp+2*h}, v{D+8*r+4*cp+2*h+1}")
            k(f"buffer_store_dwordx4 v[{p}:{p+3}], v{R['t3']}, s[{SRD_WS}:{SRD_WS+3}], s50 offen offset:{cp*1024+hb*64}{fl}")
    k.label(Lsk)
    stamp(k, stbase + 2, st)

def p2(k, s_task, st=False, sc1=False):
    R = p2_regs()
    k(f"v_and_b32 v{R['n']}, 15, v0")
    p2_slab_dma(k, s_task, R, sc1)
    p2_pre(k, s_task, R)
    stamp(k, 1, st == 1)
    p2_consts(k, s_task, R)
    p2_addr(k, s_task, R)
    k("s_waitcnt vmcnt(0)")
    p2_wfix(k, R)
    k("s_barrier")
    stamp(k, 2, st == 1)
    p2_main(k, s_task, R, st, sc1)
    k("s_waitcnt vmcnt(0)")
    stamp(k, 6, st)


class VM:
    def __init__(self, k): self.k = k; self.q = []; self.seen = set()
    def issue(self, text, tag):
        self.k(text); self.q.append(tag); self.seen.add(tag)
    def wait(self, tag):
        assert tag in self.seen, tag
        if tag not in self.q: return
        idx = max(i for i, t in enumerate(self.q) if t == tag)
        n = len(self.q) - 1 - idx
        self.k(f"s_waitcnt vmcnt({min(n, 63)})")
        self.q = self.q[idx + 1:]
    def wait_all(self):
        self.k("s_waitcnt vmcnt(0)"); self.q = []

LOG2E = 1.4426950408889634

def final_regs():
    return dict(T=2, g=16, og=17, dma=18, h=19, tr=20, xw=26, xr=27, out=28, b2=30, gp=34, TB=40, AF=48, ACC=72, HB=104, XR=192)

def final_setup(k, s_cls, s_hf, s_db, R):
    vT = R["T"]
    SW2 = SRD_A
    k.srd(SW2, S_PW2, S_PW2 + 1, 1376 * 1024)
    k("s_and_b32 s64, s3, 1")
    k("s_lshr_b32 s65, s3, 1")
    k(f"v_lshrrev_b32 v{vT}, 3, v0")
    k(f"v_bfe_u32 v{vT+1}, v0, 4, 1")
    k(f"v_lshlrev_b32 v{vT+1}, 2, v{vT+1}")
    k(f"v_and_b32 v{vT+2}, 7, v0")
    k(f"v_xor_b32 v{vT+1}, v{vT+1}, v{vT+2}")
    k(f"v_lshlrev_b32 v{vT+1}, 4, v{vT+1}")
    k(f"v_lshl_add_u32 v{R['dma']}, v{vT}, 10, v{vT+1}")
    k("s_mul_i32 s66, s65, 352")
    k("s_lshl_b32 s67, s64, 4")
    k("s_add_u32 s66, s66, s67")
    k("s_lshl_b32 s66, s66, 10")
    k(f"s_lshl_b32 s67, {s_db}, 7")
    k("s_add_u32 s66, s66, s67")
    k("s_lshl_b32 s68, s65, 12")
    k("s_lshl_b32 s67, s64, 11")
    k("s_add_u32 s68, s68, s67")

def final_w2_dma(k, vm, R, j, slot):
    for ii in range(2):
        k(f"s_add_u32 m0, s68, {slot*16384 + ii*1024}")
        k(f"s_add_u32 s67, s66, {j*32768 + ii*8192}")
        vm.issue(f"buffer_load_dwordx4 v{R['dma']}, s[{SRD_A}:{SRD_A+3}], s67 offen lds", f"w2_{j}")

def final_addr(k, s_cls, s_hf, s_db, R):
    vT = R["T"]
    k.c("tr-read addresses")
    k(f"v_bfe_u32 v{vT}, v0, 2, 2")
    k(f"v_lshrrev_b32 v{vT+1}, 5, v0")
    k(f"v_lshl_add_u32 v{vT+1}, v{vT+1}, 2, v{vT}")
    k(f"v_lshlrev_b32 v{vT+1}, 7, v{vT+1}")
    k(f"v_bfe_u32 v{vT+2}, v0, 4, 1")
    k(f"v_and_b32 v{vT+3}, 1, v0")
    k(f"v_lshl_add_u32 v{vT+2}, v{vT+2}, 1, v{vT+3}")
    k(f"v_bfe_u32 v{vT+3}, v0, 3, 1")
    k(f"v_lshl_add_u32 v{vT+2}, v{vT+3}, 2, v{vT+2}")
    k(f"v_lshl_add_u32 v{vT+1}, v{vT+2}, 4, v{vT+1}")
    k(f"v_bfe_u32 v{vT+3}, v0, 1, 1")
    k(f"v_lshl_add_u32 v{vT+1}, v{vT+3}, 3, v{vT+1}")
    k("s_lshl_b32 s67, s65, 12")
    k(f"v_add_u32 v{R['tr']}, s67, v{vT+1}")
    k(f"v_xor_b32 v{R['tr']+1}, 64, v{R['tr']}")
    for grp in range(1, 3):
        for e in range(2):
            k(f"v_add_u32 v{R['tr']+2*grp+e}, {grp*65536}, v{R['tr']+e}")
    k(f"v_lshlrev_b32 v{R['h']}, 4, v0")
    k("s_mul_i32 s67, s64, 24576")
    k("s_add_u32 s67, s67, 32768")
    k(f"v_add_u32 v{R['xw']}, s67, v{R['h']}")
    k("s_mul_i32 s69, s65, 6144")
    k(f"v_add_u32 v{R['xr']}, s69, v{R['xw']}")
    k(f"s_lshl_b32 s69, {s_hf}, 6")
    k("s_lshl_b32 s67, s64, 5")
    k("s_add_u32 s69, s69, s67")
    k(f"v_and_b32 v{vT}, 31, v0")
    k(f"v_add_u32 v{vT}, s69, v{vT}")
    k(f"v_lshlrev_b32 v{R['gp']}, 2, v{vT}")
    k(f"v_lshlrev_b32 v{vT+1}, 4, v{vT}")
    k(f"v_add_u32 v{vT+1}, {s_cls}, v{vT+1}")
    k(f"v_cvt_f32_u32 v{R['out']+1}, v{vT+1}")
    k(f"v_lshlrev_b32 v{vT+1}, 10, v{vT+1}")
    k(f"v_lshrrev_b32 v{vT+2}, 5, v0")
    k(f"v_lshlrev_b32 v{vT+2}, 4, v{vT+2}")
    k(f"s_lshl_b32 s67, {s_db}, 7")
    k("s_lshl_b32 s69, s65, 5")
    k("s_add_u32 s67, s67, s69")
    k(f"v_add_u32 v{vT+2}, s67, v{vT+2}")
    k(f"v_add_u32 v{R['out']}, v{vT+1}, v{vT+2}")
    k(f"v_mov_b32 v{R['b2']}, v{vT+2}")

def final_small_loads(k, vm, s_cls, R, sc1=False):
    fl = " sc1" if sc1 else ""
    k.srd(SRD_B, S_PB2, S_PB2 + 1, 1024)
    vm.issue(f"buffer_load_dwordx4 v[{R['b2']}:{R['b2']+3}], v{R['b2']}, s[{SRD_B}:{SRD_B+3}], 0 offen", "b2")

def final_gp_loads(k, vm, s_cls, R, sc1=False):
    fl = " sc1" if sc1 else ""
    k(f"s_lshl_b32 s67, {s_cls}, 9")
    k(f"s_add_u32 s67, s67, {GP_OFF}")
    k(f"v_mov_b32 v{R['T']}, v{R['gp']}")
    for d in range(4):
        if d: k("s_add_u32 s67, s67, 8192")
        vm.issue(f"buffer_load_dword v{R['gp']+d}, v{R['T']}, s[{SRD_WS}:{SRD_WS+3}], s67 offen{fl}", "gp")

def final_gate(k, R):
    vT = R["T"]; G = R["gp"]; TB = R["TB"]; sf = R["out"] + 1
    k(f"v_add_f32 v{G}, v{G}, v{G+1}")
    k(f"v_add_f32 v{G+2}, v{G+2}, v{G+3}")
    k(f"v_add_f32 v{G}, v{G}, v{G+2}")
    k(f"v_mul_f32 v{G}, {fhex(-LOG2E)}, v{G}")
    k(f"v_exp_f32 v{G}, v{G}")
    k(f"v_add_f32 v{G}, 1.0, v{G}")
    k(f"v_rcp_f32 v{R['g']}, v{G}")
    k(f"v_sub_f32 v{R['og']}, 1.0, v{R['g']}")
    k(f"v_mul_f32 v{vT}, {fhex(1/2048)}, v{sf}")
    k(f"v_lshrrev_b32 v{vT+1}, 5, v0")
    k(f"v_lshlrev_b32 v{vT+1}, 1, v{vT+1}")
    k("s_lshl_b32 s67, s65, 4")
    k(f"v_add_u32 v{vT+1}, s67, v{vT+1}")
    k(f"v_cvt_f32_u32 v{vT+1}, v{vT+1}")
    k(f"v_mul_f32 v{vT+1}, v{vT+1}, v{vT}")
    k(f"v_sub_f32 v{vT+2}, 0, v{R['g']}")
    an = vT + 4
    C = R["XR"]; S = R["XR"] + 8
    idx = 0
    for st in range(2):
        for h in range(2):
            for p in range(2):
                off = 8*st + 4*h + p
                if off == 0: k(f"v_mov_b32 v{an+idx}, v{vT+1}")
                else: k(f"v_fmamk_f32 v{an+idx}, v{vT}, {fhex(float(off))}, v{vT+1}")
                idx += 1
    for i in range(8): k(f"v_cos_f32 v{C+i}, v{an+i}")
    for i in range(8): k(f"v_sin_f32 v{S+i}, v{an+i}")
    for i in range(8): k(f"v_mul_f32 v{C+i}, v{R['g']}, v{C+i}")
    for i in range(8): k(f"v_mul_f32 v{S+i}, v{vT+2}, v{S+i}")
    L = k.newlabel("nosp")
    k("s_cmp_lg_u32 s65, 0")
    k(f"s_cbranch_scc1 {L}")
    k(f"v_lshlrev_b32 v{vT+3}, 31, v0")
    k(f"v_xor_b32 v{vT+3}, v{vT+3}, v{R['g']}")
    k("v_cmp_gt_u32 vcc, 32, v0")
    k(f"v_cndmask_b32 v{S}, v{S}, v{vT+3}, vcc")
    k.label(L)
    for i in range(8):
        k(f"v_cvt_pk_bf16_f32 v{TB+i}, v{C+i}, v{S+i}")

def final_main(k, s_cls, s_hf, s_db, R, vm, st=False, hook_t3=None, sc1=False, stb=2):
    fl = " sc1" if sc1 else ""
    AF, ACC, HB = R["AF"], R["ACC"], R["HB"]
    k.c("h fragment loads")
    k(f"s_mul_i32 s70, {s_cls}, {H_CLS}")
    k(f"s_lshl_b32 s71, {s_hf}, 1")
    k("s_add_u32 s71, s71, s64")
    k(f"s_mul_i32 s71, s71, {43*2048}")
    k("s_add_u32 s70, s70, s71")
    k(f"s_mul_i32 s71, s65, {11*2048}")
    k("s_add_u32 s70, s70, s71")
    if H_OFF: k(f"s_add_u32 s70, s70, {H_OFF}")
    for j in range(11):
        if j == 10:
            k("s_cmp_eq_u32 s65, 3")
            k(f"s_mov_b32 s71, {10*2048}")
            k(f"s_cselect_b32 s71, {9*2048}, s71")
            k("s_add_u32 s71, s70, s71")
        else:
            k(f"s_add_u32 s71, s70, {j*2048}")
        for stp in range(2):
            vm.issue(f"buffer_load_dwordx4 v[{HB+8*j+4*stp}:{HB+8*j+4*stp+3}], v{R['h']}, s[{SRD_WS}:{SRD_WS+3}], s71 offen offset:{stp*1024}{fl}", f"h_{j}")
    stamp(k, stb, st)
    steps = [(j, s) for j in range(11) for s in range(2)]
    def slot_of(j): return 0 if j == 10 else j
    def reads(idx, slot, stp):
        buf = AF + 8*(idx % 3)
        grp, so = slot // 4, (slot % 4) * 16384
        for e in range(2):
            for h in range(2):
                r = buf + 4*e + 2*h
                k(f"ds_read_b64_tr_b16 v[{r}:{r+1}], v{R['tr']+2*grp+e} offset:{so + stp*2048 + h*1024}")
    def mfm(idx, b, first=False):
        buf = AF + 8*(idx % 3)
        for e in range(2):
            c = "0" if first else f"v[{ACC+16*e}:{ACC+16*e+15}]"
            k(f"v_mfma_f32_32x32x16_bf16 v[{ACC+16*e}:{ACC+16*e+15}], v[{buf+4*e}:{buf+4*e+3}], v[{b}:{b+3}], {c}")
    vm.wait("w2_9")
    k("s_barrier")
    stamp(k, stb + 1, st)
    def run(seq, first):
        n = len(seq)
        for a in range(min(2, n)): reads(seq[a][0], seq[a][1], seq[a][2])
        for a in range(n):
            idx, slot, stp, b, htag = seq[a]
            if a + 2 < n: reads(*seq[a + 2][:3])
            rem = min(2, n - 1 - a)
            if htag and stp == 0: vm.wait(htag)
            k(f"s_waitcnt lgkmcnt({4*rem})")
            mfm(idx, b, first and a == 0)
    seq = [(2*j + s, j, s, HB + 8*j + 4*s, f"h_{j}") for j in range(2) for s in range(2)]
    run(seq, True)
    k("s_barrier")
    k("s_cmp_eq_u32 s65, 3")
    k(f"s_mov_b32 s71, {10*32768}")
    k(f"s_cselect_b32 s71, {9*32768}, s71")
    for ii in range(2):
        k(f"s_add_u32 m0, s68, {ii*1024}")
        k(f"s_add_u32 s67, s66, s71")
        if ii: k("s_add_u32 s67, s67, 8192")
        vm.issue(f"buffer_load_dwordx4 v{R['dma']}, s[{SRD_A}:{SRD_A+3}], s67 offen lds", "w2_10")
    seq = [(2*j + s, j, s, HB + 8*j + 4*s, f"h_{j}") for j in range(2, 10) for s in range(2)]
    run(seq, False)
    stamp(k, stb + 2, st)
    if hook_t3: hook_t3()
    vm.wait("w2_10")
    k("s_barrier")
    k.c("T3 tile DMA -> slot 1")
    k(f"s_lshl_b32 s70, {s_cls}, 17")
    k("s_lshl_b32 s71, s65, 15")
    k("s_add_u32 s70, s70, s71")
    k("s_lshl_b32 s71, s64, 14")
    k("s_add_u32 s70, s70, s71")
    k(f"s_lshl_b32 s71, {s_db}, 7")
    k("s_add_u32 s70, s70, s71")
    k(f"s_add_u32 s70, s70, {T3_OFF}")
    for ii in range(2):
        k(f"s_add_u32 m0, s68, {16384 + ii*1024}")
        k(f"s_add_u32 s67, s70, {ii*8192}")
        vm.issue(f"buffer_load_dwordx4 v{R['dma']}, s[{SRD_WS}:{SRD_WS+3}], s67 offen lds{fl}", "t3")
    L = k.newlabel("no10")
    k("s_cmp_eq_u32 s65, 3")
    k(f"s_cbranch_scc1 {L}")
    seq = [(20 + s, 0, s, HB + 80 + 4*s, None) for s in range(2)]
    run(seq, False)
    k.label(L)
    for r in range(32):
        k(f"v_mul_f32 v{ACC+r}, v{R['og']}, v{ACC+r}")
    vm.wait("t3")
    k("s_barrier")
    stamp(k, stb + 3, st)
    seq = [(22 + s, 1, s, R["TB"] + 4*s, None) for s in range(2)]
    run(seq, False)
    k.c("reduction")
    Ls = [k.newlabel("red") for _ in range(4)]; Lj = k.newlabel("redj")
    OWN = AF
    for q in range(4):
        if q < 3:
            k(f"s_cmp_lg_u32 s65, {q}")
            k(f"s_cbranch_scc1 {Ls[q+1]}")
        for x in range(1, 4):
            dst = q ^ x
            src = ACC + 16*(dst >> 1) + 8*(dst & 1)
            for h in range(2):
                k(f"ds_write_b128 v{R['xw']}, v[{src+4*h}:{src+4*h+3}] offset:{dst*6144 + (x-1)*2048 + h*1024}")
        own = ACC + 16*(q >> 1) + 8*(q & 1)
        for i in range(8): k(f"v_mov_b32 v{OWN+i}, v{own+i}")
        if q < 3:
            k(f"s_branch {Lj}")
            k.label(Ls[q+1])
    k.label(Lj)
    k("s_waitcnt lgkmcnt(0)")
    k("s_barrier")
    XR = R["XR"]
    for x in range(3):
        for h in range(2):
            k(f"ds_read_b128 v[{XR+8*x+4*h}:{XR+8*x+4*h+3}], v{R['xr']} offset:{x*2048 + h*1024}")
    B2 = R["HB"]
    for i in range(4):
        k(f"v_lshlrev_b32 v{B2+2*i}, 16, v{R['b2']+i}")
        k(f"v_and_b32 v{B2+2*i+1}, 0xffff0000, v{R['b2']+i}")
    for i in range(8): k(f"v_fmac_f32 v{OWN+i}, v{R['og']}, v{B2+i}")
    for x in range(3):
        k(f"s_waitcnt lgkmcnt({4-2*x})")
        for i in range(8): k(f"v_add_f32 v{OWN+i}, v{OWN+i}, v{XR+8*x+i}")
    for i in range(4): k(f"v_cvt_pk_bf16_f32 v{XR+i}, v{OWN+2*i}, v{OWN+2*i+1}")
    k.srd(SRD_B, S_POUT, S_POUT + 1, 2048 * 1024)
    k(f"buffer_store_dwordx4 v[{XR}:{XR+3}], v{R['out']}, s[{SRD_B}:{SRD_B+3}], 0 offen")
    stamp(k, stb + 4, st)

def final(k, s_cls, s_hf, s_db, st=False):
    R = final_regs(); vm = VM(k)
    final_setup(k, s_cls, s_hf, s_db, R)
    for j in range(10): final_w2_dma(k, vm, R, j, j)
    final_addr(k, s_cls, s_hf, s_db, R)
    final_small_loads(k, vm, s_cls, R)
    final_gp_loads(k, vm, s_cls, R)
    stamp(k, 1, st)
    vm.wait("gp")
    final_gate(k, R)
    final_main(k, s_cls, s_hf, s_db, R, vm, st)
    k("s_waitcnt vmcnt(0)")
    stamp(k, 7, st)
```

```python
import roles, sys
from roles import *
NAME = "gated_mix__spectral_gfnet__dense_activation_gelu__prompt_kernel"
def k1(st):
    k = K()
    k("s_cmp_ge_u32 s2, 240")
    k("s_cbranch_scc1 L_end_k1")
    if st: stamps_clear(k); stamp(k, 0)
    prologue(k)
    k("s_cmp_ge_u32 s2, 176")
    k("s_cbranch_scc1 L_p1")
    k("s_and_b32 s70, s2, 7")
    k("s_lshr_b32 s71, s2, 3")
    k("s_and_b32 s72, s71, 1")
    k("s_lshl_b32 s70, s70, 1")
    k("s_add_u32 s70, s70, s72")
    k("s_lshr_b32 s71, s71, 1")
    gemm1(k, "s70", "s71", st=st)
    k("s_branch L_k1_done")
    k.label("L_p1")
    k("s_sub_u32 s72, s2, 176")
    k("s_and_b32 s70, s72, 15")
    k("s_lshr_b32 s71, s72, 4")
    p1(k, "s70", "s71", st=st)
    k.label("L_k1_done")
    if st: stamps_store(k)
    k.label("L_end_k1")
    k("s_endpgm")
    return k.l
def k2(st):
    k = K()
    k("s_cmp_ge_u32 s2, 65")
    k("s_cbranch_scc1 L_end_k2")
    if st: stamps_clear(k); stamp(k, 0)
    prologue(k)
    k("s_mov_b32 s70, s2")
    p2(k, "s70", st=1 if st else 0)
    if st: stamps_store(k)
    k.label("L_end_k2")
    k("s_endpgm")
    return k.l
def k3(st):
    k = K()
    k("s_cmp_ge_u32 s2, 256")
    k("s_cbranch_scc1 L_end_k3")
    if st: stamps_clear(k); stamp(k, 0)
    prologue(k)
    k("s_and_b32 s72, s2, 7")
    k("s_lshr_b32 s73, s2, 3")
    k("s_and_b32 s76, s73, 7")
    k("s_lshr_b32 s73, s73, 3")
    k("s_lshl_b32 s72, s72, 2")
    k("s_add_u32 s72, s72, s73")
    k("s_lshr_b32 s74, s72, 1")
    k("s_and_b32 s75, s72, 1")
    final(k, "s74", "s75", "s76", st=st)
    if st: stamps_store(k)
    k.label("L_end_k3")
    k("s_endpgm")
    return k.l
def build(fn, st1=False, st2=False, st3=False):
    txt, info = make_file([(NAME, k1(st1)), ("p2_kernel", k2(st2)), ("fin_kernel", k3(st3))],
                          [(NAME, 240, 512, 163840), ("p2_kernel", 65, 512, 163840), ("fin_kernel", 256, 512, 163840)])
    open(fn, "w").write(txt); print(info)
build("t_all3.s")
build("t_all3_st3.s", st3=True)
```

```python
from asmlib import *

H_OFF = 0x0; H_CLS = 4 * 43 * 2048
R_OFF = 0x600000
T3_OFF = 0x800000
GP_OFF = 0xA00000
ST_OFF = 0xB00000
WS_SIZE = 0x1000000
NST = 8
STWAVE = 0

S_WG = 2
S_WAVE = 3
S_PX, S_PWR, S_PWI = 4, 6, 8
S_PW1, S_PB1, S_PW2, S_PB2 = 12, 14, 16, 18
S_PGW, S_POUT, S_PDBG, S_PWS = 20, 22, 24, 26
SRD_WS = 28
SRD_A = 32
SRD_B = 36
SRD_C = 40
SRD_D = 44
S_T = 48
S_STAMP = 80

def prologue(k):
    k("s_load_dwordx4 s[4:7], s[0:1], 0")
    k("s_load_dwordx2 s[8:9], s[0:1], 16")
    k("s_load_dwordx8 s[12:19], s[0:1], 32")
    k("s_load_dwordx8 s[20:27], s[0:1], 64")
    k("v_lshrrev_b32 v1, 6, v0")
    k("v_and_b32 v0, 63, v0")
    k("v_readfirstlane_b32 s3, v1")
    k("s_waitcnt lgkmcnt(0)")
    k.srd(SRD_WS, S_PWS, S_PWS + 1, WS_SIZE)

def stamp(k, i, on=True):
    if on: k(f"s_memrealtime s[{S_STAMP+2*i}:{S_STAMP+2*i+1}]")

def stamps_clear(k):
    for i in range(NST):
        k(f"s_mov_b64 s[{S_STAMP+2*i}:{S_STAMP+2*i+1}], 0")

def stamps_store(k):
    L = k.newlabel("nost")
    k(f"s_cmp_lg_u32 s3, {STWAVE}")
    k(f"s_cbranch_scc1 {L}")
    k("s_waitcnt lgkmcnt(0)")
    k(f"s_mul_i32 s48, s2, {NST*8}")
    k(f"s_add_u32 s48, s48, {ST_OFF}")
    for i in range(0, NST, 2):
        for j in range(4):
            k(f"v_mov_b32 v{4+j}, s{S_STAMP+2*i+j}")
        k(f"v_mov_b32 v8, {i*8}")
        k("v_cmp_eq_u32 vcc, 0, v0")
        k("s_and_saveexec_b64 s[50:51], vcc")
        k(f"buffer_store_dwordx4 v[4:7], v8, s[{SRD_WS}:{SRD_WS+3}], s48 offen")
        k("s_mov_b64 exec, s[50:51]")
    k("s_waitcnt vmcnt(0)")
    k.label(L)

GELU_C0 = -2.0 * 0.7978845608028654 * 1.4426950408889634
GELU_C1 = GELU_C0 * 0.044715
import struct
def f2u(f): return struct.unpack("<I", struct.pack("<f", f))[0]

def gemm1(k, s_cls, s_fb, st=False, sc1=False, nocomp=False, nodma=False, noepi=False, order=False, touch=0, tail_wait=True, pre_epi=None):
    SX, SW, SB = SRD_A, SRD_B, SRD_C
    k.srd(SX, S_PX, S_PX + 1, 2048 * 512 * 2)
    k.srd(SW, S_PW1, S_PW1 + 1, 512 * 1376 * 2)
    k.srd(SB, S_PB1, S_PB1 + 1, 1376 * 2)
    vXo = [2, 3]; vWo = [4, 5]
    vBa = 6
    vAa = 18
    vT = 24
    vB = 32
    vA = 48
    ACC = 80
    vBias = 112
    vE = 128
    sM0 = S_T
    k.c("x dma offsets")
    k(f"s_lshl_b32 s50, s3, 1")
    for i in range(2):
        k(f"v_lshrrev_b32 v{vT}, 3, v0")
        k(f"s_add_u32 s51, s50, {i}")
        k(f"s_lshl_b32 s51, s51, 3")
        k(f"v_add_u32 v{vT}, s51, v{vT}")
        k(f"v_lshlrev_b32 v{vT}, 14, v{vT}")
        k(f"v_lshrrev_b32 v{vT+1}, 4, v0")
        k(f"v_add_u32 v{vT+1}, {4*i}, v{vT+1}")
        k(f"v_and_b32 v{vT+2}, 7, v0")
        k(f"v_xor_b32 v{vT+1}, v{vT+1}, v{vT+2}")
        k(f"v_lshl_add_u32 v{vT}, v{vT+1}, 4, v{vT}")
        k(f"s_lshl_b32 s51, {s_cls}, 10")
        k(f"v_add_u32 v{vXo[i]}, s51, v{vT}")
    k.c("w1 dma offsets")
    for i in range(2):
        k(f"s_add_u32 s51, s50, {i}")
        k(f"s_lshl_b32 s51, s51, 2")
        k(f"v_lshrrev_b32 v{vT}, 4, v0")
        k(f"v_lshlrev_b32 v{vT+1}, 2, v{vT}")
        k(f"v_and_b32 v{vT+2}, 15, v0")
        k(f"v_xor_b32 v{vT+1}, v{vT+1}, v{vT+2}")
        k(f"v_lshlrev_b32 v{vT+1}, 4, v{vT+1}")
        k(f"s_lshl_b32 s52, {s_fb}, 8")
        k(f"v_add_u32 v{vT+1}, s52, v{vT+1}")
        k(f"v_min_u32 v{vT+1}, {2752-16}, v{vT+1}")
        k(f"v_add_u32 v{vT}, s51, v{vT}")
        k(f"v_mul_u32_u24 v{vT}, 2752, v{vT}")
        k(f"v_add_u32 v{vWo[i]}, v{vT}, v{vT+1}")
    k(f"s_lshl_b32 s48, s3, 11")
    k(f"s_add_u32 s49, s48, 16384")
    def dma(c):
        slot = c % 5
        for i in range(2):
            k(f"s_add_u32 m0, s48, {slot*32768 + i*1024}")
            k(f"s_mov_b32 s53, {c*128}")
            k(f"buffer_load_dwordx4 v{vXo[i]}, s[{SX}:{SX+3}], s53 offen lds")
        for i in range(2):
            k(f"s_add_u32 m0, s49, {slot*32768 + i*1024}")
            k(f"s_mov_b32 s53, {c*64*2752}")
            k(f"buffer_load_dwordx4 v{vWo[i]}, s[{SW}:{SW+3}], s53 offen lds")
    if touch:
        nx = (16384 + touch - 1) // touch; nw = (11008 + touch - 1) // touch
        k(f"s_mul_i32 s58, s2, {nx}")
        k(f"s_lshl_b32 s59, s3, 6")
        k(f"v_add_u32 v{vT+4}, s59, v0")
        k(f"v_cmp_gt_u32 vcc, {nx}, v{vT+4}")
        k(f"v_add_u32 v{vT+5}, s58, v{vT+4}")
        k(f"v_lshlrev_b32 v{vT+5}, 7, v{vT+5}")
        k("s_and_saveexec_b64 s[60:61], vcc")
        k(f"buffer_load_dword v{vE}, v{vT+5}, s[{SX}:{SX+3}], 0 offen")
        k("s_mov_b64 exec, s[60:61]")
        k(f"s_mul_i32 s58, s2, {nw}")
        k(f"v_subrev_u32 v{vT+4}, 256, v{vT+4}")
        k(f"v_cmp_gt_u32 vcc, {nw}, v{vT+4}")
        k(f"v_add_u32 v{vT+5}, s58, v{vT+4}")
        k(f"v_lshlrev_b32 v{vT+5}, 7, v{vT+5}")
        k("s_and_saveexec_b64 s[60:61], vcc")
        k(f"buffer_load_dword v{vE+1}, v{vT+5}, s[{SW}:{SW+3}], 0 offen")
        k("s_mov_b64 exec, s[60:61]")
    k.c("bias loads (first so that vmcnt accounting is simple)")
    k(f"s_lshr_b32 s54, s3, 2")
    k(f"s_lshl_b32 s55, s54, 7")
    k(f"s_lshl_b32 s52, {s_fb}, 8")
    k(f"s_add_u32 s55, s55, s52")
    k(f"v_lshrrev_b32 v{vT}, 5, v0")
    k(f"v_lshl_add_u32 v{vT}, v{vT}, 3, s55")
    for e in range(2):
        for g in range(4):
            k(f"buffer_load_dwordx2 v[{vBias+e*8+g*2}:{vBias+e*8+g*2+1}], v{vT}, s[{SB}:{SB+3}], 0 offen offset:{e*64+g*16}")
    for c in range(5):
        dma(c)
        if order and c < 4: k("s_barrier")
    stamp(k, 1, st)
    k.c("LDS read addresses")
    k(f"s_and_b32 s56, s3, 3")
    k(f"s_lshl_b32 s57, s56, 12")
    k(f"v_and_b32 v{vT}, 31, v0")
    k(f"v_lshrrev_b32 v{vT+1}, 1, v{vT}")
    k(f"v_and_b32 v{vT+1}, 7, v{vT+1}")
    k(f"v_lshrrev_b32 v{vT+2}, 5, v0")
    k(f"v_xor_b32 v{vT+1}, v{vT+1}, v{vT+2}")
    k(f"v_lshlrev_b32 v{vT}, 7, v{vT}")
    k(f"v_add_u32 v{vT}, s57, v{vT}")
    for ks in range(4):
        k(f"v_xor_b32 v{vT+2}, {2*ks}, v{vT+1}")
        k(f"v_lshl_add_u32 v{vBa+ks}, v{vT+2}, 4, v{vT}")
        k(f"v_add_u32 v{vBa+4+ks}, 0x10000, v{vBa+ks}")
        k(f"v_add_u32 v{vBa+8+ks}, 0x20000, v{vBa+ks}")
    k(f"v_bfe_u32 v{vT}, v0, 2, 2")
    k(f"v_lshrrev_b32 v{vT+1}, 5, v0")
    k(f"v_lshl_add_u32 v{vT+1}, v{vT+1}, 3, v{vT}")
    k(f"v_lshlrev_b32 v{vT+1}, 8, v{vT+1}")
    k(f"v_bfe_u32 v{vT+2}, v0, 4, 1")
    k(f"v_bfe_u32 v{vT+3}, v0, 1, 1")
    k(f"v_lshl_add_u32 v{vT+2}, v{vT+2}, 1, v{vT+3}")
    k(f"v_and_b32 v{vT+3}, 1, v0")
    k(f"v_lshlrev_b32 v{vT+3}, 3, v{vT+3}")
    k(f"v_add3_u32 v{vT+1}, v{vT+1}, v{vT+3}, 0")
    k(f"v_add_u32 v{vT+1}, 16384, v{vT+1}")
    for e in range(2):
        k(f"s_lshl_b32 s58, s54, 1")
        k(f"s_add_u32 s58, s58, {e}")
        k(f"v_xor_b32 v{vT+4}, s58, v{vT}")
        k(f"v_lshl_add_u32 v{vT+4}, v{vT+4}, 2, v{vT+2}")
        k(f"v_lshl_add_u32 v{vAa+e}, v{vT+4}, 4, v{vT+1}")
        k(f"v_add_u32 v{vAa+2+e}, 0x10000, v{vAa+e}")
        k(f"v_add_u32 v{vAa+4+e}, 0x20000, v{vAa+e}")
    k.c("acc init from bias")
    k("s_waitcnt vmcnt(20)")
    for e in range(2):
        for g in range(4):
            for h in range(2):
                src = vBias + e*8 + g*2 + h
                d = ACC + e*16 + g*4 + h*2
                k(f"v_lshlrev_b32 v{d}, 16, v{src}")
                k(f"v_and_b32 v{d+1}, 0xffff0000, v{src}")
    waits = {0: 16, 1: 12, 2: 12, 3: 12, 4: 12, 5: 8, 6: 4, 7: 0}
    for c in range(8):
        slot = c % 5
        grp = slot // 2; so = (slot % 2) * 32768
        k.c(f"chunk {c}")
        k(f"s_waitcnt vmcnt({waits[c] if not nodma else (waits[c] if c < 1 else 0)})")
        k("s_barrier")
        if c == 0: stamp(k, 2, st)
        if 1 <= c <= 3 and not nodma: dma(c + 4)
        def reads(ks):
            k(f"ds_read_b128 v[{vB+4*ks}:{vB+4*ks+3}], v{vBa+4*grp+ks} offset:{so}")
            for e in range(2):
                for h in range(2):
                    r = vA + e*16 + ks*4 + h*2
                    k(f"ds_read_b64_tr_b16 v[{r}:{r+1}], v{vAa+2*grp+e} offset:{so + ks*4096 + h*1024}")
        def mf(ks):
            for e in range(2):
                k(f"v_mfma_f32_32x32x16_bf16 v[{ACC+16*e}:{ACC+16*e+15}], v[{vA+e*16+ks*4}:{vA+e*16+ks*4+3}], v[{vB+4*ks}:{vB+4*ks+3}], v[{ACC+16*e}:{ACC+16*e+15}]")
        if nocomp: continue
        reads(0); reads(1); reads(2)
        k("s_waitcnt lgkmcnt(10)"); mf(0)
        reads(3)
        k("s_waitcnt lgkmcnt(10)"); mf(1)
        k("s_waitcnt lgkmcnt(5)"); mf(2)
        k("s_waitcnt lgkmcnt(0)"); mf(3)
    stamp(k, 3, st)
    if pre_epi: pre_epi()
    k.c("epilogue: gelu + store")
    k(f"s_mov_b32 s60, {f2u(GELU_C0):#x}")
    k(f"s_mov_b32 s61, s60")
    k(f"s_mov_b32 s62, {f2u(GELU_C1):#x}")
    k(f"s_mov_b32 s63, s62")
    k(f"v_mov_b32 v{vT+6}, s60")
    k(f"v_mov_b32 v{vT+7}, s60")
    k(f"s_mul_i32 s64, {s_cls}, {H_CLS}")
    k(f"s_mul_i32 s65, s56, {43*2048}")
    k(f"s_add_u32 s64, s64, s65")
    k(f"s_lshl_b32 s65, {s_fb}, 2")
    k(f"s_lshl_b32 s66, s54, 1")
    k(f"s_add_u32 s65, s65, s66")
    k(f"s_lshl_b32 s66, s65, 11")
    k(f"s_add_u32 s64, s64, s66")
    k(f"s_add_u32 s64, s64, {H_OFF}")
    k(f"v_lshlrev_b32 v{vT}, 4, v0")
    fl = " sc1" if sc1 else ""
    for e in range(2):
        Lskip = k.newlabel("g1skip")
        if e == 1:
            k("s_cmp_ge_u32 s65, 42")
            k(f"s_cbranch_scc1 {Lskip}")
        else:
            k("s_cmp_ge_u32 s65, 43")
            k(f"s_cbranch_scc1 {Lskip}")
        for stp in range(2):
            a = ACC + 16*e + 8*stp
            E = vE + (e*2+stp)*16
            P = vE + 64 + (e*2+stp)*4
            for p in range(4):
                u = a + 2*p; t = E + 2*p
                k(f"v_pk_mul_f32 v[{t}:{t+1}], v[{u}:{u+1}], v[{u}:{u+1}]")
            for p in range(4):
                t = E + 2*p
                k(f"v_pk_fma_f32 v[{t}:{t+1}], v[{t}:{t+1}], s[62:63], v[{vT+6}:{vT+7}]")
            for p in range(4):
                u = a + 2*p; t = E + 2*p
                k(f"v_pk_mul_f32 v[{t}:{t+1}], v[{t}:{t+1}], v[{u}:{u+1}]")
            for p in range(8): k(f"v_exp_f32 v{E+p}, v{E+p}")
            for p in range(4):
                t = E + 2*p
                k(f"v_pk_add_f32 v[{t}:{t+1}], v[{t}:{t+1}], 1.0 op_sel_hi:[1,0]")
            for p in range(8): k(f"v_rcp_f32 v{E+p}, v{E+p}")
            for p in range(4):
                u = a + 2*p; t = E + 2*p
                k(f"v_pk_mul_f32 v[{t}:{t+1}], v[{t}:{t+1}], v[{u}:{u+1}]")
            for p in range(4):
                k(f"v_cvt_pk_bf16_f32 v{P+p}, v{E+2*p}, v{E+2*p+1}")
            k(f"buffer_store_dwordx4 v[{P}:{P+3}], v{vT}, s[{SRD_WS}:{SRD_WS+3}], s64 offen offset:{e*2048+stp*1024}{fl}")
        k.label(Lskip)
    stamp(k, 4, st)
    if tail_wait:
        k("s_waitcnt vmcnt(0)")
        stamp(k, 5, st)

FM = "v_fmamk_f32"
def fhex(f): return f"{f2u(f):#x}"

def p1(k, s_s2, s_db, st=False, sc1=False, lb=0, tail_wait=True, pre_epi=None):
    SX, SG = SRD_A, SRD_B
    fl = " sc1" if sc1 else ""
    k.srd(SX, S_PX, S_PX + 1, 2048 * 512 * 2)
    k.srd(SG, S_PGW, S_PGW + 1, 1024)
    vT = 2
    vXo = 16
    vAa = 17
    vGW = 20
    vCB = 36
    vAng = 68
    vA = 84
    ACC = 148
    vQ = 180
    vR = 196
    k.c("x DMA")
    k(f"v_lshrrev_b32 v{vT}, 4, v0")
    k(f"v_lshlrev_b32 v{vT+1}, 2, v{vT}")
    k(f"v_and_b32 v{vT+2}, 15, v0")
    k(f"v_xor_b32 v{vT+1}, v{vT+1}, v{vT+2}")
    k(f"v_lshlrev_b32 v{vT+1}, 4, v{vT+1}")
    k(f"v_lshl_add_u32 v{vXo}, v{vT}, 14, v{vT+1}")
    k(f"s_lshl_b32 s50, {s_s2}, 10")
    k(f"s_lshl_b32 s51, {s_db}, 8")
    k(f"s_add_u32 s50, s50, s51")
    k(f"s_lshl_b32 s51, s3, 18")
    k(f"s_add_u32 s50, s50, s51")
    k(f"s_lshl_b32 s52, s3, 12")
    if lb: k(f"s_add_u32 s52, s52, {lb}")
    for i in range(4):
        k(f"s_add_u32 m0, s52, {i*1024}")
        k(f"s_add_u32 s53, s50, {i*4*16384}")
        k(f"buffer_load_dwordx4 v{vXo}, s[{SX}:{SX+3}], s53 offen lds")
    k.c("gate weights: 64 contiguous bytes per thread")
    k(f"v_and_b32 v{vT}, 3, v0")
    k(f"v_lshlrev_b32 v{vT}, 6, v{vT}")
    k(f"s_lshl_b32 s51, {s_db}, 8")
    for e in range(4):
        k(f"buffer_load_dwordx4 v[{vGW+4*e}:{vGW+4*e+3}], v{vT}, s[{SG}:{SG+3}], s51 offen offset:{16*e}")
    stamp(k, 1, st)
    k.c("B constants")
    k("s_and_b32 s54, s3, 3")
    k("s_lshr_b32 s55, s3, 2")
    k(f"v_bfe_u32 v{vT}, v0, 1, 4")
    k("s_lshl_b32 s56, s54, 4")
    k(f"v_add_u32 v{vT}, s56, v{vT}")
    k(f"v_cvt_f32_u32 v{vT+1}, v{vT}")
    k(f"v_mul_f32 v{vT+2}, {fhex(1/128)}, v{vT+1}")
    k(f"v_cvt_f32_u32 v{vT+3}, {s_s2}")
    k(f"v_mul_f32 v{vT+3}, {fhex(1/2048)}, v{vT+3}")
    k(f"v_mul_f32 v{vT+3}, v{vT+3}, v{vT+1}")
    k(f"v_and_b32 v{vT+4}, 1, v0")
    k(f"v_cvt_f32_u32 v{vT+5}, v{vT+4}")
    k(f"v_fmac_f32 v{vT+3}, 0.25, v{vT+5}")
    k(f"v_lshl_or_b32 v{vT+6}, v{vT}, 1, v{vT+4}")
    k(f"v_cmp_eq_u32 vcc, 1, v{vT+6}")
    k(f"v_mov_b32 v{vT+7}, 0.5")
    k(f"v_cndmask_b32 v{vT+2}, v{vT+2}, v{vT+7}, vcc")
    k(f"v_mov_b32 v{vT+7}, 0")
    k(f"v_cndmask_b32 v{vT+3}, v{vT+3}, v{vT+7}, vcc")
    k(f"v_lshrrev_b32 v{vT+4}, 5, v0")
    k(f"v_lshlrev_b32 v{vT+4}, 3, v{vT+4}")
    k(f"v_cvt_f32_u32 v{vT+4}, v{vT+4}")
    k(f"v_fmac_f32 v{vT+3}, v{vT+4}, v{vT+2}")
    vD, vA0 = vT + 2, vT + 3
    for t in range(8):
        for j in range(8):
            kk = 16 * t + j
            if kk == 0: k(f"v_mov_b32 v{vAng+j}, v{vA0}")
            else: k(f"{FM} v{vAng+j}, v{vD}, {fhex(float(kk))}, v{vA0}")
        for j in range(8): k(f"v_cos_f32 v{vAng+j}, v{vAng+j}")
        for j in range(4): k(f"v_cvt_pk_bf16_f32 v{vCB+4*t+j}, v{vAng+2*j}, v{vAng+2*j+1}")
    k.c("A frag addresses")
    k(f"v_bfe_u32 v{vT}, v0, 2, 2")
    k(f"v_lshrrev_b32 v{vT+1}, 5, v0")
    k(f"v_lshl_add_u32 v{vT+1}, v{vT+1}, 3, v{vT}")
    k(f"v_lshlrev_b32 v{vT+1}, 8, v{vT+1}")
    k(f"v_bfe_u32 v{vT+4}, v0, 4, 1")
    k(f"v_bfe_u32 v{vT+5}, v0, 1, 1")
    k(f"v_lshl_add_u32 v{vT+4}, v{vT+4}, 1, v{vT+5}")
    k(f"v_and_b32 v{vT+5}, 1, v0")
    k(f"v_lshl_add_u32 v{vT+1}, v{vT+5}, 3, v{vT+1}")
    if lb: k(f"v_add_u32 v{vT+1}, {lb}, v{vT+1}")
    for e in range(2):
        k(f"s_lshl_b32 s58, s55, 1")
        k(f"s_add_u32 s58, s58, {e}")
        k(f"v_xor_b32 v{vT+6}, s58, v{vT}")
        k(f"v_lshl_add_u32 v{vT+6}, v{vT+6}, 2, v{vT+4}")
        k(f"v_lshl_add_u32 v{vAa+e}, v{vT+6}, 4, v{vT+1}")
    k("s_waitcnt vmcnt(4)")
    k("s_barrier")
    stamp(k, 2, st)
    def rd(t):
        for e in range(2):
            for h in range(2):
                r = vA + e*32 + t*4 + h*2
                k(f"ds_read_b64_tr_b16 v[{r}:{r+1}], v{vAa+e} offset:{t*4096 + h*1024}")
    def mf(t):
        for e in range(2):
            c = "0" if t == 0 else f"v[{ACC+16*e}:{ACC+16*e+15}]"
            k(f"v_mfma_f32_32x32x16_bf16 v[{ACC+16*e}:{ACC+16*e+15}], v[{vA+e*32+t*4}:{vA+e*32+t*4+3}], v[{vCB+4*t}:{vCB+4*t+3}], {c}")
    rd(0); rd(1); rd(2)
    for t in range(8):
        if t + 3 < 8:
            k("s_waitcnt lgkmcnt(8)"); mf(t); rd(t + 3)
        else:
            k(f"s_waitcnt lgkmcnt({4*(7-t)})"); mf(t)
    stamp(k, 3, st)
    if pre_epi: pre_epi()
    k.c("pack, transpose through LDS")
    k(f"v_and_b32 v{vT}, 31, v0")
    k(f"s_lshl_b32 s58, s54, 5")
    k(f"v_add_u32 v{vT}, s58, v{vT}")
    k(f"v_mul_u32_u24 v{vT}, 272, v{vT}")
    k(f"v_lshrrev_b32 v{vT+1}, 5, v0")
    k(f"v_lshl_add_u32 v{vT}, v{vT+1}, 4, v{vT}")
    k(f"s_lshl_b32 s58, s55, 7")
    k(f"s_add_u32 s58, s58, {32768+lb}")
    k(f"v_add_u32 v{vT}, s58, v{vT}")
    for e in range(2):
        for g in range(4):
            for h in range(2):
                k(f"v_cvt_pk_bf16_f32 v{vQ+e*8+g*2+h}, v{ACC+16*e+4*g+2*h}, v{ACC+16*e+4*g+2*h+1}")
        for pr in range(2):
            q = vQ + e*8 + pr*4
            k(f"v_permlane32_swap_b32 v{q}, v{q+2}")
            k(f"v_permlane32_swap_b32 v{q+1}, v{q+3}")
            k(f"ds_write_b128 v{vT}, v[{q}:{q+3}] offset:{e*64 + pr*32}")
    k("s_waitcnt lgkmcnt(0)")
    k("s_barrier")
    k(f"v_lshrrev_b32 v{vT}, 4, v0")
    k(f"s_lshl_b32 s58, s3, 4")
    k(f"v_add_u32 v{vT+1}, s58, v{vT}")
    k(f"v_mul_u32_u24 v{vT+1}, 272, v{vT+1}")
    k(f"v_and_b32 v{vT+2}, 15, v0")
    k(f"v_lshl_add_u32 v{vT+1}, v{vT+2}, 4, v{vT+1}")
    k(f"v_add_u32 v{vT+1}, {32768+lb}, v{vT+1}")
    for i in range(4):
        k(f"ds_read_b128 v[{vR+4*i}:{vR+4*i+3}], v{vT+1} offset:{i*4*272}")
    k(f"v_lshrrev_b32 v{vT+3}, 1, v{vT}")
    k(f"v_lshlrev_b32 v{vT+3}, 15, v{vT+3}")
    k(f"v_and_b32 v{vT+4}, 1, v{vT}")
    k(f"v_lshl_add_u32 v{vT+3}, v{vT+4}, 10, v{vT+3}")
    k(f"v_lshl_add_u32 v{vT+3}, v{vT+2}, 4, v{vT+3}")
    k(f"s_lshl_b32 s58, s3, 18")
    k(f"s_lshl_b32 s59, {s_s2}, 11")
    k(f"s_add_u32 s58, s58, s59")
    k(f"s_lshl_b32 s59, {s_db}, 8")
    k(f"s_add_u32 s58, s58, s59")
    k(f"s_add_u32 s58, s58, {R_OFF}")
    for i in range(4):
        k(f"s_waitcnt lgkmcnt({3-i})")
        k(f"s_add_u32 s59, s58, {i*2*32768}")
        k(f"buffer_store_dwordx4 v[{vR+4*i}:{vR+4*i+3}], v{vT+3}, s[{SRD_WS}:{SRD_WS+3}], s59 offen{fl}")
    stamp(k, 4, st)
    k.c("gate partials")
    k(f"v_lshrrev_b32 v{vT}, 2, v0")
    k(f"s_lshl_b32 s58, s3, 4")
    k(f"v_add_u32 v{vT}, s58, v{vT}")
    k(f"v_and_b32 v{vT+1}, 3, v0")
    k(f"v_and_b32 v{vT+2}, 3, v{vT}")
    k(f"v_xor_b32 v{vT+1}, v{vT+1}, v{vT+2}")
    k(f"v_lshlrev_b32 v{vT+1}, 6, v{vT+1}")
    k(f"v_lshl_add_u32 v{vT+1}, v{vT}, 8, v{vT+1}")
    if lb: k(f"v_add_u32 v{vT+1}, {lb}, v{vT+1}")
    for e in range(4):
        k(f"ds_read_b128 v[{vA+4*e}:{vA+4*e+3}], v{vT+1} offset:{16*e}")
    k(f"v_mov_b32 v{vT+2}, 0")
    k("s_waitcnt lgkmcnt(0)")
    for e in range(16):
        k(f"v_dot2_f32_bf16 v{vT+2}, v{vA+e}, v{vGW+e}, v{vT+2}")
    k(f"v_add_f32_dpp v{vT+2}, v{vT+2}, v{vT+2} quad_perm:[1,0,3,2] row_mask:0xf bank_mask:0xf")
    k(f"v_add_f32_dpp v{vT+2}, v{vT+2}, v{vT+2} quad_perm:[2,3,0,1] row_mask:0xf bank_mask:0xf")
    k(f"s_lshl_b32 s58, {s_db}, 4")
    k(f"s_add_u32 s58, s58, {s_s2}")
    k(f"s_lshl_b32 s58, s58, 9")
    k(f"s_add_u32 s58, s58, {GP_OFF}")
    k(f"v_lshlrev_b32 v{vT}, 2, v{vT}")
    k(f"v_and_b32 v{vT+1}, 3, v0")
    k(f"v_cmp_eq_u32 vcc, 0, v{vT+1}")
    k("s_and_saveexec_b64 s[60:61], vcc")
    k(f"buffer_store_dword v{vT+2}, v{vT}, s[{SRD_WS}:{SRD_WS+3}], s58 offen{fl}")
    k("s_mov_b64 exec, s[60:61]")
    if tail_wait:
        k("s_waitcnt vmcnt(0)")
        stamp(k, 5, st)


def interleave(a, b):
    out = []; na, nb = len(a), len(b); j = 0
    for i, x in enumerate(a):
        out.append(x)
        tgt = (i + 1) * nb // na
        while j < tgt:
            out.append(b[j]); j += 1
    out += b[j:]
    return out

def sincos_set(k, vang0, vdelta, vt, dst_c, dst_s, scale=None):
    pass

PK = False
EXP = None
P2_SLAB = 0; P2_E1 = 32768; P2_E2 = 65536; P2_PITCH = 1056

def p2_pre(k, s_task, R):
    SWR, SWI = SRD_A, SRD_B
    k.srd(SWR, S_PWR, S_PWR + 1, 2048 * 514)
    k.srd(SWI, S_PWI, S_PWI + 1, 2048 * 514)
    vT = R["T"]; W = R["W"]; WX = R["WX"]; WA = R["work"]
    vN, vQ = R["n"], R["q"]
    k(f"v_and_b32 v{vN}, 15, v0")
    k(f"v_lshrrev_b32 v{vQ}, 4, v0")
    k.c("W loads")
    k(f"v_lshlrev_b32 v{vT}, 1, v{vN}")
    k(f"v_lshl_add_u32 v{vT}, v{vQ}, 8, v{vT}")
    k(f"v_sub_u32 v{vT+1}, 1024, v{vT}")
    k(f"v_cmp_gt_u32 vcc, 32, v0")
    k(f"v_mov_b32 v{vT+2}, -32")
    k(f"v_mov_b32 v{vT+3}, 32")
    k(f"v_cndmask_b32 v{vT+2}, v{vT+2}, v{vT+3}, vcc")
    k(f"v_and_b32 v{vT+3}, 31, v0")
    k(f"v_cmp_eq_u32 s[62:63], 0, v{vT+3}")
    for row in range(2):
        k(f"s_lshl_b32 s50, s3, 1")
        k(f"s_add_u32 s50, s50, {row}")
        k(f"s_lshl_b32 s50, s50, 7")
        k(f"s_add_u32 s50, s50, {s_task}")
        k(f"s_sub_u32 s51, 2048, s50")
        k(f"s_and_b32 s51, s51, 2047")
        k(f"s_mul_i32 s50, s50, 514")
        k(f"s_mul_i32 s51, s51, 514")
        k(f"v_add_u32 v{vT+4}, s50, v{vT}")
        k(f"v_add_u32 v{vT+5}, s51, v{vT+1}")
        k(f"v_cndmask_b32 v{vT+4}, v{vT+5}, v{vT+4}, vcc")
        k(f"s_add_u32 s52, s50, 512")
        k(f"v_mov_b32 v{vT+5}, s52")
        k(f"v_mov_b32 v{vT+6}, s51")
        k(f"v_cndmask_b32 v{vT+5}, v{vT+5}, v{vT+6}, vcc")
        k(f"v_cndmask_b32 v{vT+5}, v{vT+4}, v{vT+5}, s[62:63]")
        for m in range(1, 8):
            k(f"v_mad_i32_i24 v{WA+8*row+m}, v{vT+2}, {m}, v{vT+4}")
        for t in range(2):
            for i in range(4):
                m = t + 2 * i
                a = vT + 4 if m == 0 else WA + 8*row + m
                k(f"buffer_load_ushort v{W+16*row+8*t+i}, v{a}, s[{SWR}:{SWR+3}], 0 offen")
                k(f"buffer_load_ushort v{W+16*row+8*t+4+i}, v{a}, s[{SWI}:{SWI+3}], 0 offen")
        k(f"buffer_load_ushort v{WX+2*row}, v{vT+5}, s[{SWR}:{SWR+3}], 0 offen")
        k(f"buffer_load_ushort v{WX+2*row+1}, v{vT+5}, s[{SWI}:{SWI+3}], 0 offen")

def p2_consts(k, s_task, R):
    vT = R["T"]; vN, vQ = R["n"], R["q"]; WA = R["work"]
    FS, F16, A1, B5 = R["FS"], R["F16"], R["A1"], R["B5"]
    TW1C, TW1S, TW2C, TW2S = R["TW1C"], R["TW1S"], R["TW2C"], R["TW2S"]
    nf, q4 = vT, vT + 1
    k(f"v_cvt_f32_u32 v{nf}, v{vN}")
    k(f"v_lshlrev_b32 v{q4}, 2, v{vQ}")
    k(f"v_cvt_f32_u32 v{q4}, v{q4}")
    k(f"s_cmp_eq_u32 {s_task}, 64")
    k(f"s_cselect_b32 s54, 0x3f800000, 0")
    an = WA; cs = WA + 4; sn = WA + 8
    def cset(vdelta, va0, C01, C23, S01, S23):
        for j in range(4):
            if j == 0: k(f"v_mov_b32 v{an}, v{va0}")
            else: k(f"v_fma_f32 v{an+j}, v{vdelta}, {float(j)}, v{va0}" if j != 3 else f"v_fmamk_f32 v{an+j}, v{vdelta}, {fhex(3.0)}, v{va0}")
        for j in range(4): k(f"v_cos_f32 v{cs+j}, v{an+j}")
        for j in range(4): k(f"v_sin_f32 v{sn+j}, v{an+j}")
        k(f"v_cvt_pk_bf16_f32 v{C01}, v{cs}, v{cs+1}")
        k(f"v_cvt_pk_bf16_f32 v{C23}, v{cs+2}, v{cs+3}")
        k(f"v_cvt_pk_bf16_f32 v{S01}, v{sn}, v{sn+1}")
        k(f"v_cvt_pk_bf16_f32 v{S23}, v{sn+2}, v{sn+3}")
    d, a0 = vT + 2, vT + 3
    k.c("F32 sets")
    k(f"v_mul_f32 v{d}, {fhex(1/32)}, v{nf}")
    k(f"v_mul_f32 v{a0}, v{d}, v{q4}")
    cset(d, a0, FS + 2, FS + 3, FS + 4, FS + 5)
    k(f"v_xor_b32 v{FS}, 0x80008000, v{FS+4}")
    k(f"v_xor_b32 v{FS+1}, 0x80008000, v{FS+5}")
    k(f"v_and_b32 v{vT+4}, 1, v{vN}")
    k(f"v_mul_u32_u24 v{vT+4}, 0x8000, v{vT+4}")
    k(f"v_lshl_or_b32 v{vT+4}, v{vT+4}, 16, v{vT+4}")
    k(f"v_xor_b32 v{vT+5}, 0x80000000, v{vT+4}")
    for r in range(6):
        k(f"v_xor_b32 v{FS+6+r}, v{vT+4}, v{FS+r}")
        k(f"v_xor_b32 v{FS+12+r}, 0x80000000, v{FS+r}")
        k(f"v_xor_b32 v{FS+18+r}, v{vT+5}, v{FS+r}")
    k.c("F16 set")
    k(f"v_mul_f32 v{d}, {fhex(1/16)}, v{nf}")
    k(f"v_mul_f32 v{a0}, v{d}, v{q4}")
    cset(d, a0, F16 + 2, F16 + 3, F16 + 4, F16 + 5)
    k(f"v_xor_b32 v{F16}, 0x80008000, v{F16+4}")
    k(f"v_xor_b32 v{F16+1}, 0x80008000, v{F16+5}")
    k.c("A1: angle (4q+j)(2n+e)/32")
    k(f"v_fma_f32 v{d}, v{nf}, 2.0, s54")
    k(f"v_mul_f32 v{d}, {fhex(1/32)}, v{d}")
    k(f"v_mul_f32 v{a0}, v{d}, v{q4}")
    t0 = WA + 12
    cset(d, a0, t0, t0 + 1, t0 + 2, t0 + 3)
    k(f"v_xor_b32 v{t0+4}, 0x80008000, v{t0+2}")
    k(f"v_xor_b32 v{t0+5}, 0x80008000, v{t0+3}")
    L0, L64, Lj = k.newlabel("a1_0"), k.newlabel("a1_64"), k.newlabel("a1_j")
    C01, C23, S01, S23, N01, N23 = [f"v{t0+i}" for i in range(6)]
    def setA(vals):
        for r, x in enumerate(vals): k(f"v_mov_b32 v{A1+r}, {x}")
    k(f"s_cmp_eq_u32 {s_task}, 0"); k(f"s_cbranch_scc1 {L0}")
    k(f"s_cmp_eq_u32 {s_task}, 64"); k(f"s_cbranch_scc1 {L64}")
    setA([C01, C23, S01, S23, N01, N23, C01, C23]); k(f"s_branch {Lj}")
    k.label(L0); setA([C01, C23, 0, 0, N01, N23, 0, 0]); k(f"s_branch {Lj}")
    k.label(L64); setA([0, 0, C01, C23, 0, 0, N01, N23])
    k.label(Lj)
    k.c("B5: angle n(2u2+e)/32")
    k(f"v_mul_f32 v{d}, {fhex(1/16)}, v{nf}")
    k(f"v_mul_f32 v{a0}, s54, v{nf}")
    k(f"v_mul_f32 v{a0}, {fhex(1/32)}, v{a0}")
    k(f"v_fmac_f32 v{a0}, v{d}, v{q4}")
    cset(d, a0, B5, B5 + 2, B5 + 1, B5 + 3)
    k(f"v_mov_b32 v{B5+4}, v{B5+1}")
    k(f"v_xor_b32 v{B5+5}, 0x80008000, v{B5}")
    k(f"v_mov_b32 v{B5+6}, v{B5+3}")
    k(f"v_xor_b32 v{B5+7}, 0x80008000, v{B5+2}")
    k.c("twiddles")
    k(f"s_and_b32 s55, {s_task}, 63")
    k(f"s_cmp_eq_u32 s55, 0")
    k(f"s_mov_b32 s56, {fhex(2.0**-19)}")
    k(f"s_cselect_b32 s55, {fhex(2.0**-20)}, s56")
    for t in range(2):
        k(f"v_add_f32 v{d}, {fhex(16.0*t)}, v{nf}" if t else f"v_mov_b32 v{d}, v{nf}")
        k(f"v_mul_f32 v{d}, {fhex(1/512)}, v{d}")
        k(f"v_mul_f32 v{a0}, v{d}, v{q4}")
        for j in range(4):
            if j == 0: k(f"v_mov_b32 v{an}, v{a0}")
            elif j == 3: k(f"v_fmamk_f32 v{an+j}, v{d}, {fhex(3.0)}, v{a0}")
            else: k(f"v_fma_f32 v{an+j}, v{d}, {float(j)}, v{a0}")
        for j in range(4): k(f"v_cos_f32 v{TW1C+4*t+j}, v{an+j}")
        for j in range(4): k(f"v_sin_f32 v{TW1S+4*t+j}, v{an+j}")
        k(f"v_mul_f32 v{d}, {fhex(1/512)}, v{nf}")
        k(f"v_add_f32 v{a0}, {fhex(16.0*t)}, v{q4}" if t else f"v_mov_b32 v{a0}, v{q4}")
        k(f"v_mul_f32 v{a0}, v{a0}, v{d}")
        for j in range(4):
            if j == 0: k(f"v_mov_b32 v{an}, v{a0}")
            elif j == 3: k(f"v_fmamk_f32 v{an+j}, v{d}, {fhex(3.0)}, v{a0}")
            else: k(f"v_fma_f32 v{an+j}, v{d}, {float(j)}, v{a0}")
        for j in range(4): k(f"v_cos_f32 v{cs+j}, v{an+j}")
        for j in range(4): k(f"v_sin_f32 v{sn+j}, v{an+j}")
        for j in range(4): k(f"v_mul_f32 v{TW2C+4*t+j}, s55, v{cs+j}")
        for j in range(4): k(f"v_mul_f32 v{TW2S+4*t+j}, s55, v{sn+j}")

def p2_wfix(k, R):
    vT = R["T"]; W = R["W"]; WX = R["WX"]
    k(f"v_cmp_gt_u32 vcc, 32, v0")
    k(f"v_mov_b32 v{vT}, 0x80000000")
    k(f"v_mov_b32 v{vT+1}, 0")
    k(f"v_cndmask_b32 v{vT}, v{vT}, v{vT+1}, vcc")
    k(f"v_and_b32 v{vT+1}, 31, v0")
    k(f"v_cmp_eq_u32 vcc, 0, v{vT+1}")
    k(f"v_xor_b32 v{vT+1}, 0x80000000, v{vT}")
    k(f"v_cndmask_b32 v{vT+1}, v{vT}, v{vT+1}, vcc")
    for row in range(2):
        for t in range(2):
            for i in range(4):
                r = W + 16*row + 8*t + i
                k(f"v_lshlrev_b32 v{r}, 16, v{r}")
                k(f"v_lshl_add_u32 v{r+4}, v{r+4}, 16, v{vT}")
        k(f"v_lshlrev_b32 v{WX+2*row}, 16, v{WX+2*row}")
        k(f"v_lshl_add_u32 v{WX+2*row+1}, v{WX+2*row+1}, 16, v{vT+1}")
        r = W + 16*row
        k(f"v_add_f32 v{r}, v{r}, v{WX+2*row}")
        k(f"v_add_f32 v{r+4}, v{r+4}, v{WX+2*row+1}")
        k(f"v_mul_f32 v{r}, 0.5, v{r}")
        k(f"v_mul_f32 v{r+4}, 0.5, v{r+4}")

def p2_regs():
    R = dict(T=2, n=16, q=17, FS=20, F16=44, A1=50, B5=58, TW1C=66, TW1S=74, TW2C=82, TW2S=90, W=98, WX=130,
             dma=134, tr=136, e1w=140, e1r=141, e2w=142, e2r=143, t3=145, work=148)
    return R

def p2_addr(k, s_task, R):
    vT = R["T"]; vN, vQ = R["n"], R["q"]
    k.c("LDS addresses")
    k(f"v_bfe_u32 v{vT}, v0, 2, 2")
    k(f"v_lshl_add_u32 v{vT}, v{vQ}, 2, v{vT}")
    k(f"v_and_b32 v{vT+1}, 7, v{vT}")
    k(f"v_lshlrev_b32 v{vT+1}, 1, v{vT+1}")
    k(f"v_bfe_u32 v{vT+2}, v0, 1, 1")
    k(f"s_lshl_b32 s50, s3, 3")
    k(f"v_or_b32 v{vT+2}, s50, v{vT+2}")
    k(f"v_xor_b32 v{vT+2}, v{vT+2}, v{vT+1}")
    k(f"v_lshlrev_b32 v{vT+2}, 4, v{vT+2}")
    k(f"v_lshl_add_u32 v{vT+2}, v{vT}, 11, v{vT+2}")
    k(f"v_and_b32 v{vT+3}, 1, v0")
    k(f"v_lshl_add_u32 v{R['tr']}, v{vT+3}, 3, v{vT+2}")
    if P2_SLAB: k(f"v_add_u32 v{R['tr']}, {P2_SLAB}, v{R['tr']}")
    for dd in range(1, 4):
        k(f"v_xor_b32 v{R['tr']+dd}, {dd*32}, v{R['tr']}")
    k(f"v_lshlrev_b32 v{vT}, 13, v{vQ}")
    k(f"v_lshl_add_u32 v{vT}, v{vN}, 4, v{vT}")
    k(f"s_lshl_b32 s50, s3, 8")
    k(f"s_add_u32 s50, s50, {P2_E1}")
    k(f"v_add_u32 v{R['e1w']}, s50, v{vT}")
    k(f"s_lshl_b32 s50, s3, 12")
    k(f"s_add_u32 s50, s50, {P2_E1}")
    k(f"v_lshl_add_u32 v{R['e1r']}, v0, 4, s50")
    k(f"v_mul_u32_u24 v{vT}, {4*P2_PITCH}, v{vQ}")
    k(f"v_lshl_add_u32 v{vT}, v{vN}, 3, v{vT}")
    k(f"s_lshl_b32 s50, s3, 7")
    k(f"s_add_u32 s50, s50, {P2_E2}")
    k(f"v_add_u32 v{R['e2w']}, s50, v{vT}")
    k(f"v_lshrrev_b32 v{vT}, 3, v{vN}")
    k(f"s_lshl_b32 s50, s3, 2")
    k(f"v_add_u32 v{vT}, s50, v{vT}")
    k(f"v_mul_u32_u24 v{vT}, {P2_PITCH}, v{vT}")
    k(f"v_lshl_add_u32 v{vT}, v{vQ}, 8, v{vT}")
    k(f"v_bfe_u32 v{vT+1}, v0, 2, 1")
    k(f"v_lshl_add_u32 v{vT}, v{vT+1}, 6, v{vT}")
    k(f"v_and_b32 v{vT+1}, 3, v0")
    k(f"v_lshl_add_u32 v{vT}, v{vT+1}, 3, v{vT}")
    k(f"v_add_u32 v{R['e2r']}, {P2_E2}, v{vT}")
    k(f"v_add_u32 v{R['e2r']+1}, {P2_E2 + 2*P2_PITCH}, v{vT}")
    k(f"v_lshlrev_b32 v{vT}, 17, v{vN}")
    k(f"v_lshl_add_u32 v{vT}, v{vQ}, 4, v{vT}")
    k(f"s_lshl_b32 s50, s3, 7")
    k(f"v_add_u32 v{R['t3']}, s50, v{vT}")

def p2_slab_dma(k, s_task, R, sc1=False):
    vT = R["T"]
    fl = " sc1" if sc1 else ""
    k.c("R slab DMA")
    k(f"s_and_b32 s50, {s_task}, 63")
    k(f"s_lshl_b32 s50, s50, 15")
    k(f"s_add_u32 s50, s50, {R_OFF}")
    k(f"s_lshl_b32 s51, s3, 12")
    k(f"s_add_u32 s50, s50, s51")
    k(f"s_add_u32 s51, s51, {P2_SLAB}")
    for h in range(2):
        k(f"s_lshl_b32 s52, s3, 1")
        k(f"s_add_u32 s52, s52, {h}")
        k(f"s_and_b32 s52, s52, 7")
        k(f"s_lshl_b32 s52, s52, 1")
        k(f"v_xor_b32 v{R['dma']+h}, s52, v0")
        k(f"v_lshlrev_b32 v{R['dma']+h}, 4, v{R['dma']+h}")
    for r in range(4):
        k(f"s_add_u32 m0, s51, {r*1024}")
        k(f"s_add_u32 s53, s50, {r*1024}")
        k(f"buffer_load_dwordx4 v{R['dma']+(r>>1)}, s[{SRD_WS}:{SRD_WS+3}], s53 offen lds{fl}")

def p2_main(k, s_task, R, st=False, sc1=False, stbase=3):
    fl = " sc1" if sc1 else ""
    FS, F16, A1, B5 = R["FS"], R["F16"], R["A1"], R["B5"]
    TW1C, TW1S, TW2C, TW2S = R["TW1C"], R["TW1S"], R["TW2C"], R["TW2S"]
    W = R["W"]; WA = R["work"]
    BF = WA; D = WA + 16; P = WA + 48; X = WA + 64
    def fs(t, g, cp): return FS + 6*(2*t+g) + (2 if cp == 0 else 0)
    def f16(cp): return F16 + (2 if cp == 0 else 0)
    def mf(d, a, b, c=None):
        cc = "0" if c is None else f"v[{c}:{c+3}]"
        return f"v_mfma_f32_16x16x32_bf16 v[{d}:{d+3}], v[{a}:{a+3}], v[{b}:{b+3}], {cc}"
    k.c("stage (i)")
    for dd in range(4):
        for c in range(2):
            r = BF + 4*dd + 2*c
            k(f"ds_read_b64_tr_b16 v[{r}:{r+1}], v{R['tr']+dd} offset:{c*1024}")
    for dd in range(4):
        k(f"s_waitcnt lgkmcnt({6-2*dd})")
        for cp in range(2):
            k(mf(D + 8*dd + 4*cp, A1 + 4*cp, BF + 4*dd))
    for i in range(4):
        for cp in range(2):
            for h in range(2):
                k(f"v_cvt_pk_bf16_f32 v{P+4*i+2*cp+h}, v{D+8*(2*h)+4*cp+i}, v{D+8*(2*h+1)+4*cp+i}")
        k(f"ds_write_b128 v{R['e1w']}, v[{P+4*i}:{P+4*i+3}] offset:{i*2048}")
    k("s_waitcnt lgkmcnt(0)")
    k("s_barrier")
    stamp(k, stbase, st == 1)
    stamp(k, 7, st == 2)
    k.c("step A")
    AF = WA
    for row in range(2):
        for g in range(2):
            r = AF + 8*row + 4*g
            k(f"ds_read_b128 v[{r}:{r+3}], v{R['e1r']} offset:{row*2048 + g*1024}")
    def d1(row, t, cp): return D + 16*row + 8*t + 4*cp
    def frag(row, t): return P + 8*row + 4*t
    def stepA(row):
        o = []
        for g in range(2):
            for t in range(2):
                for cp in range(2):
                    o.append(mf(d1(row, t, cp), AF + 8*row + 4*g, fs(t, g, cp), None if g == 0 else d1(row, t, cp)))
        return o
    def cmul(row, C, S, kind):
        o = []
        for t in range(2):
            re, im = d1(row, t, 0), d1(row, t, 1)
            x = X + 8*t
            c_, s_ = C(t), S(t)
            def pr(a, h): return f"v[{a+2*h}:{a+2*h+1}]"
            if not PK:
                if kind == "tw":
                    for i in range(4): o.append(f"v_mul_f32 v{x+i}, v{re+i}, v{c_+i}")
                    for i in range(4): o.append(f"v_mul_f32 v{x+4+i}, v{im+i}, v{c_+i}")
                    for i in range(4): o.append(f"v_fmac_f32 v{x+i}, v{im+i}, v{s_+i}")
                    for i in range(4): o.append(f"v_fma_f32 v{x+4+i}, -v{re+i}, v{s_+i}, v{x+4+i}")
                else:
                    for i in range(4): o.append(f"v_mul_f32 v{x+i}, v{re+i}, v{c_+i}")
                    for i in range(4): o.append(f"v_mul_f32_e64 v{x+4+i}, -v{re+i}, v{s_+i}")
                    for i in range(4): o.append(f"v_fma_f32 v{x+i}, -v{im+i}, v{s_+i}, v{x+i}")
                    for i in range(4): o.append(f"v_fma_f32 v{x+4+i}, -v{im+i}, v{c_+i}, v{x+4+i}")
            elif kind == "tw":
                for h in range(2): o.append(f"v_pk_mul_f32 {pr(x,h)}, {pr(re,h)}, {pr(c_,h)}")
                for h in range(2): o.append(f"v_pk_mul_f32 {pr(x+4,h)}, {pr(im,h)}, {pr(c_,h)}")
                for h in range(2): o.append(f"v_pk_fma_f32 {pr(x,h)}, {pr(im,h)}, {pr(s_,h)}, {pr(x,h)}")
                for h in range(2): o.append(f"v_pk_fma_f32 {pr(x+4,h)}, {pr(re,h)}, {pr(s_,h)}, {pr(x+4,h)} neg_lo:[1,0,0] neg_hi:[1,0,0]")
            else:
                for h in range(2): o.append(f"v_pk_mul_f32 {pr(x,h)}, {pr(re,h)}, {pr(c_,h)}")
                for h in range(2): o.append(f"v_pk_mul_f32 {pr(x+4,h)}, {pr(re,h)}, {pr(s_,h)} neg_lo:[1,0] neg_hi:[1,0]")
                for h in range(2): o.append(f"v_pk_fma_f32 {pr(x,h)}, {pr(im,h)}, {pr(s_,h)}, {pr(x,h)} neg_lo:[1,0,0] neg_hi:[1,0,0]")
                for h in range(2): o.append(f"v_pk_fma_f32 {pr(x+4,h)}, {pr(im,h)}, {pr(c_,h)}, {pr(x+4,h)} neg_lo:[1,0,0] neg_hi:[1,0,0]")
            f = frag(row, t)
            for h in range(2): o.append(f"v_cvt_pk_bf16_f32 v{f+h}, v{x+2*h}, v{x+2*h+1}")
            for h in range(2): o.append(f"v_cvt_pk_bf16_f32 v{f+2+h}, v{x+4+2*h}, v{x+4+2*h+1}")
        return o
    tw1 = lambda row: cmul(row, lambda t: TW1C + 4*t, lambda t: TW1S + 4*t, "tw")
    wm = lambda row: cmul(row, lambda t: W + 16*row + 8*t, lambda t: W + 16*row + 8*t + 4, "w")
    tw2 = lambda row: cmul(row, lambda t: TW2C + 4*t, lambda t: TW2S + 4*t, "tw")
    def stepB(row):
        return [mf(d1(row, t, cp), f16(cp), frag(row, t)) for t in range(2) for cp in range(2)]
    def stepBp(row):
        return [mf(d1(row, t, cp), frag(row, t), f16(cp)) for t in range(2) for cp in range(2)]
    def stepAp(row):
        o = []
        for t in range(2):
            for tp in range(2):
                for cp in range(2):
                    o.append(mf(d1(row, tp, cp), fs(tp, t, cp), frag(row, t), None if t == 0 else d1(row, tp, cp)))
        return o
    def emit(l):
        for x in l:
            if EXP == "nomfma" and "mfma" in x: continue
            if EXP == "novalu" and "mfma" not in x: continue
            k(x)
    k("s_waitcnt lgkmcnt(2)")
    emit(stepA(0))
    k("s_waitcnt lgkmcnt(0)")
    emit(interleave(stepA(1), tw1(0)))
    emit(interleave(stepB(0), tw1(1)))
    emit(interleave(stepB(1), wm(0)))
    emit(interleave(stepBp(0), wm(1)))
    emit(interleave(stepBp(1), tw2(0)))
    emit(interleave(stepAp(0), tw2(1)))
    emit(stepAp(1))
    stamp(k, stbase + 1, st)
    k.c("E2 write")
    for tp in range(2):
        for i in range(4):
            p = P + 2*(4*tp + i)
            k(f"v_cvt_pk_bf16_f32 v{p}, v{d1(0,tp,0)+i}, v{d1(1,tp,0)+i}")
            k(f"v_cvt_pk_bf16_f32 v{p+1}, v{d1(0,tp,1)+i}, v{d1(1,tp,1)+i}")
            k(f"ds_write_b64 v{R['e2w']}, v[{p}:{p+1}] offset:{(16*tp+i)*P2_PITCH}")
    k("s_waitcnt lgkmcnt(0)")
    stamp(k, 1, st == 2)
    k("s_barrier")
    stamp(k, 2, st == 2)
    k.c("stage (v)")
    for r in range(4):
        o = 4*(r & 1)
        k(f"ds_read2_b64 v[{AF+4*r}:{AF+4*r+3}], v{R['e2r']+(r>>1)} offset0:{o} offset1:{o+16}")
    for r in range(4):
        k(f"s_waitcnt lgkmcnt({3-r})")
        for cp in range(2):
            k(mf(D + 8*r + 4*cp, AF + 4*r, B5 + 4*cp))
    stamp(k, 3, st == 2)
    k(f"s_and_b32 s50, {s_task}, 63")
    k(f"s_lshl_b32 s50, s50, 11")
    k(f"s_lshr_b32 s51, {s_task}, 6")
    k(f"s_lshl_b32 s51, s51, 10")
    k(f"s_add_u32 s50, s50, s51")
    k(f"s_add_u32 s50, s50, {T3_OFF}")
    Lsk = k.newlabel("p2sk")
    for cp in range(2):
        if cp == 1:
            k(f"s_and_b32 s51, {s_task}, 63")
            k(f"s_cmp_eq_u32 s51, 0")
            k(f"s_cbranch_scc1 {Lsk}")
        for hb in range(2):
            p = P + 8*cp + 4*hb
            for rr in range(2):
                r = 2*hb + rr
                for h in range(2):
                    k(f"v_cvt_pk_bf16_f32 v{p+2*rr+h}, v{D+8*r+4*cp+2*h}, v{D+8*r+4*cp+2*h+1}")
            k(f"buffer_store_dwordx4 v[{p}:{p+3}], v{R['t3']}, s[{SRD_WS}:{SRD_WS+3}], s50 offen offset:{cp*1024+hb*64}{fl}")
    k.label(Lsk)
    stamp(k, stbase + 2, st)

def p2(k, s_task, st=False, sc1=False):
    R = p2_regs()
    k(f"v_and_b32 v{R['n']}, 15, v0")
    p2_slab_dma(k, s_task, R, sc1)
    p2_pre(k, s_task, R)
    stamp(k, 1, st == 1)
    p2_consts(k, s_task, R)
    p2_addr(k, s_task, R)
    k("s_waitcnt vmcnt(0)")
    p2_wfix(k, R)
    k("s_barrier")
    stamp(k, 2, st == 1)
    p2_main(k, s_task, R, st, sc1)
    k("s_waitcnt vmcnt(0)")
    stamp(k, 6, st)


class VM:
    def __init__(self, k): self.k = k; self.q = []; self.seen = set()
    def issue(self, text, tag):
        self.k(text); self.q.append(tag); self.seen.add(tag)
    def wait(self, tag):
        assert tag in self.seen, tag
        if tag not in self.q: return
        idx = max(i for i, t in enumerate(self.q) if t == tag)
        n = len(self.q) - 1 - idx
        self.k(f"s_waitcnt vmcnt({min(n, 63)})")
        self.q = self.q[idx + 1:]
    def wait_all(self):
        self.k("s_waitcnt vmcnt(0)"); self.q = []

LOG2E = 1.4426950408889634

def final_regs():
    return dict(T=2, g=16, og=17, dma=18, h=19, tr=20, xw=26, xr=27, out=28, b2=30, gp=34, TB=40, AF=48, ACC=72, HB=104, XR=192)

def final_setup(k, s_cls, s_hf, s_db, R):
    vT = R["T"]
    SW2 = SRD_C
    k.srd(SW2, S_PW2, S_PW2 + 1, 1376 * 1024)
    k("s_and_b32 s64, s3, 1")
    k("s_lshr_b32 s65, s3, 1")
    k(f"v_lshrrev_b32 v{vT}, 3, v0")
    k(f"v_bfe_u32 v{vT+1}, v0, 4, 1")
    k(f"v_lshlrev_b32 v{vT+1}, 2, v{vT+1}")
    k(f"v_and_b32 v{vT+2}, 7, v0")
    k(f"v_xor_b32 v{vT+1}, v{vT+1}, v{vT+2}")
    k(f"v_lshlrev_b32 v{vT+1}, 4, v{vT+1}")
    k(f"v_lshl_add_u32 v{R['dma']}, v{vT}, 10, v{vT+1}")
    k("s_mul_i32 s66, s65, 352")
    k("s_lshl_b32 s67, s64, 4")
    k("s_add_u32 s66, s66, s67")
    k("s_lshl_b32 s66, s66, 10")
    k(f"s_lshl_b32 s67, {s_db}, 7")
    k("s_add_u32 s66, s66, s67")
    k("s_lshl_b32 s68, s65, 12")
    k("s_lshl_b32 s67, s64, 11")
    k("s_add_u32 s68, s68, s67")

def final_w2_dma(k, vm, R, j, slot):
    for ii in range(2):
        k(f"s_add_u32 m0, s68, {slot*16384 + ii*1024}")
        k(f"s_add_u32 s67, s66, {j*32768 + ii*8192}")
        vm.issue(f"buffer_load_dwordx4 v{R['dma']}, s[{SRD_C}:{SRD_C+3}], s67 offen lds", f"w2_{j}")

def final_addr(k, s_cls, s_hf, s_db, R):
    vT = R["T"]
    k.c("tr-read addresses")
    k(f"v_bfe_u32 v{vT}, v0, 2, 2")
    k(f"v_lshrrev_b32 v{vT+1}, 5, v0")
    k(f"v_lshl_add_u32 v{vT+1}, v{vT+1}, 2, v{vT}")
    k(f"v_lshlrev_b32 v{vT+1}, 7, v{vT+1}")
    k(f"v_bfe_u32 v{vT+2}, v0, 4, 1")
    k(f"v_and_b32 v{vT+3}, 1, v0")
    k(f"v_lshl_add_u32 v{vT+2}, v{vT+2}, 1, v{vT+3}")
    k(f"v_bfe_u32 v{vT+3}, v0, 3, 1")
    k(f"v_lshl_add_u32 v{vT+2}, v{vT+3}, 2, v{vT+2}")
    k(f"v_lshl_add_u32 v{vT+1}, v{vT+2}, 4, v{vT+1}")
    k(f"v_bfe_u32 v{vT+3}, v0, 1, 1")
    k(f"v_lshl_add_u32 v{vT+1}, v{vT+3}, 3, v{vT+1}")
    k("s_lshl_b32 s67, s65, 12")
    k(f"v_add_u32 v{R['tr']}, s67, v{vT+1}")
    k(f"v_xor_b32 v{R['tr']+1}, 64, v{R['tr']}")
    for grp in range(1, 3):
        for e in range(2):
            k(f"v_add_u32 v{R['tr']+2*grp+e}, {grp*65536}, v{R['tr']+e}")
    k(f"v_lshlrev_b32 v{R['h']}, 4, v0")
    k("s_mul_i32 s67, s64, 24576")
    k("s_add_u32 s67, s67, 32768")
    k(f"v_add_u32 v{R['xw']}, s67, v{R['h']}")
    k("s_mul_i32 s69, s65, 6144")
    k(f"v_add_u32 v{R['xr']}, s69, v{R['xw']}")
    k(f"s_lshl_b32 s69, {s_hf}, 6")
    k("s_lshl_b32 s67, s64, 5")
    k("s_add_u32 s69, s69, s67")
    k(f"v_and_b32 v{vT}, 31, v0")
    k(f"v_add_u32 v{vT}, s69, v{vT}")
    k(f"v_lshlrev_b32 v{R['gp']}, 2, v{vT}")
    k(f"v_lshlrev_b32 v{vT+1}, 4, v{vT}")
    k(f"v_add_u32 v{vT+1}, {s_cls}, v{vT+1}")
    k(f"v_cvt_f32_u32 v{R['out']+1}, v{vT+1}")
    k(f"v_lshlrev_b32 v{vT+1}, 10, v{vT+1}")
    k(f"v_lshrrev_b32 v{vT+2}, 5, v0")
    k(f"v_lshlrev_b32 v{vT+2}, 4, v{vT+2}")
    k(f"s_lshl_b32 s67, {s_db}, 7")
    k("s_lshl_b32 s69, s65, 5")
    k("s_add_u32 s67, s67, s69")
    k(f"v_add_u32 v{vT+2}, s67, v{vT+2}")
    k(f"v_add_u32 v{R['out']}, v{vT+1}, v{vT+2}")
    k(f"v_mov_b32 v{R['b2']}, v{vT+2}")

def final_small_loads(k, vm, s_cls, R, sc1=False):
    fl = " sc1" if sc1 else ""
    k.srd(SRD_B, S_PB2, S_PB2 + 1, 1024)
    vm.issue(f"buffer_load_dwordx4 v[{R['b2']}:{R['b2']+3}], v{R['b2']}, s[{SRD_B}:{SRD_B+3}], 0 offen", "b2")

def final_gp_loads(k, vm, s_cls, R, sc1=False):
    fl = " sc1" if sc1 else ""
    k(f"s_lshl_b32 s67, {s_cls}, 9")
    k(f"s_add_u32 s67, s67, {GP_OFF}")
    k(f"v_mov_b32 v{R['T']}, v{R['gp']}")
    for d in range(4):
        if d: k("s_add_u32 s67, s67, 8192")
        vm.issue(f"buffer_load_dword v{R['gp']+d}, v{R['T']}, s[{SRD_WS}:{SRD_WS+3}], s67 offen{fl}", "gp")

def final_gate(k, R):
    vT = R["T"]; G = R["gp"]; TB = R["TB"]; sf = R["out"] + 1
    k(f"v_add_f32 v{G}, v{G}, v{G+1}")
    k(f"v_add_f32 v{G+2}, v{G+2}, v{G+3}")
    k(f"v_add_f32 v{G}, v{G}, v{G+2}")
    k(f"v_mul_f32 v{G}, {fhex(-LOG2E)}, v{G}")
    k(f"v_exp_f32 v{G}, v{G}")
    k(f"v_add_f32 v{G}, 1.0, v{G}")
    k(f"v_rcp_f32 v{R['g']}, v{G}")
    k(f"v_sub_f32 v{R['og']}, 1.0, v{R['g']}")
    k(f"v_mul_f32 v{vT}, {fhex(1/2048)}, v{sf}")
    k(f"v_lshrrev_b32 v{vT+1}, 5, v0")
    k(f"v_lshlrev_b32 v{vT+1}, 1, v{vT+1}")
    k("s_lshl_b32 s67, s65, 4")
    k(f"v_add_u32 v{vT+1}, s67, v{vT+1}")
    k(f"v_cvt_f32_u32 v{vT+1}, v{vT+1}")
    k(f"v_mul_f32 v{vT+1}, v{vT+1}, v{vT}")
    k(f"v_sub_f32 v{vT+2}, 0, v{R['g']}")
    an = vT + 4
    C = R["XR"]; S = R["XR"] + 8
    idx = 0
    for st in range(2):
        for h in range(2):
            for p in range(2):
                off = 8*st + 4*h + p
                if off == 0: k(f"v_mov_b32 v{an+idx}, v{vT+1}")
                else: k(f"v_fmamk_f32 v{an+idx}, v{vT}, {fhex(float(off))}, v{vT+1}")
                idx += 1
    for i in range(8): k(f"v_cos_f32 v{C+i}, v{an+i}")
    for i in range(8): k(f"v_sin_f32 v{S+i}, v{an+i}")
    for i in range(8): k(f"v_mul_f32 v{C+i}, v{R['g']}, v{C+i}")
    for i in range(8): k(f"v_mul_f32 v{S+i}, v{vT+2}, v{S+i}")
    L = k.newlabel("nosp")
    k("s_cmp_lg_u32 s65, 0")
    k(f"s_cbranch_scc1 {L}")
    k(f"v_lshlrev_b32 v{vT+3}, 31, v0")
    k(f"v_xor_b32 v{vT+3}, v{vT+3}, v{R['g']}")
    k("v_cmp_gt_u32 vcc, 32, v0")
    k(f"v_cndmask_b32 v{S}, v{S}, v{vT+3}, vcc")
    k.label(L)
    for i in range(8):
        k(f"v_cvt_pk_bf16_f32 v{TB+i}, v{C+i}, v{S+i}")

def final_main(k, s_cls, s_hf, s_db, R, vm, st=False, hook_t3=None, sc1=False, stb=2, after_h=None):
    fl = " sc1" if sc1 else ""
    AF, ACC, HB = R["AF"], R["ACC"], R["HB"]
    k.c("h fragment loads")
    k(f"s_mul_i32 s70, {s_cls}, {H_CLS}")
    k(f"s_lshl_b32 s71, {s_hf}, 1")
    k("s_add_u32 s71, s71, s64")
    k(f"s_mul_i32 s71, s71, {43*2048}")
    k("s_add_u32 s70, s70, s71")
    k(f"s_mul_i32 s71, s65, {11*2048}")
    k("s_add_u32 s70, s70, s71")
    if H_OFF: k(f"s_add_u32 s70, s70, {H_OFF}")
    for j in range(11):
        if j == 10:
            k("s_cmp_eq_u32 s65, 3")
            k(f"s_mov_b32 s71, {10*2048}")
            k(f"s_cselect_b32 s71, {9*2048}, s71")
            k("s_add_u32 s71, s70, s71")
        else:
            k(f"s_add_u32 s71, s70, {j*2048}")
        for stp in range(2):
            vm.issue(f"buffer_load_dwordx4 v[{HB+8*j+4*stp}:{HB+8*j+4*stp+3}], v{R['h']}, s[{SRD_WS}:{SRD_WS+3}], s71 offen offset:{stp*1024}{fl}", f"h_{j}")
    stamp(k, stb, st)
    if after_h: after_h()
    steps = [(j, s) for j in range(11) for s in range(2)]
    def slot_of(j): return 0 if j == 10 else j
    def reads(idx, slot, stp):
        buf = AF + 8*(idx % 3)
        grp, so = slot // 4, (slot % 4) * 16384
        for e in range(2):
            for h in range(2):
                r = buf + 4*e + 2*h
                k(f"ds_read_b64_tr_b16 v[{r}:{r+1}], v{R['tr']+2*grp+e} offset:{so + stp*2048 + h*1024}")
    def mfm(idx, b, first=False):
        buf = AF + 8*(idx % 3)
        for e in range(2):
            c = "0" if first else f"v[{ACC+16*e}:{ACC+16*e+15}]"
            k(f"v_mfma_f32_32x32x16_bf16 v[{ACC+16*e}:{ACC+16*e+15}], v[{buf+4*e}:{buf+4*e+3}], v[{b}:{b+3}], {c}")
    vm.wait("w2_9")
    k("s_barrier")
    stamp(k, stb + 1, st)
    def run(seq, first):
        n = len(seq)
        for a in range(min(2, n)): reads(seq[a][0], seq[a][1], seq[a][2])
        for a in range(n):
            idx, slot, stp, b, htag = seq[a]
            if a + 2 < n: reads(*seq[a + 2][:3])
            rem = min(2, n - 1 - a)
            if htag and stp == 0: vm.wait(htag)
            k(f"s_waitcnt lgkmcnt({4*rem})")
            mfm(idx, b, first and a == 0)
    seq = [(2*j + s, j, s, HB + 8*j + 4*s, f"h_{j}") for j in range(2) for s in range(2)]
    run(seq, True)
    k("s_barrier")
    k("s_cmp_eq_u32 s65, 3")
    k(f"s_mov_b32 s71, {10*32768}")
    k(f"s_cselect_b32 s71, {9*32768}, s71")
    for ii in range(2):
        k(f"s_add_u32 m0, s68, {ii*1024}")
        k(f"s_add_u32 s67, s66, s71")
        if ii: k("s_add_u32 s67, s67, 8192")
        vm.issue(f"buffer_load_dwordx4 v{R['dma']}, s[{SRD_C}:{SRD_C+3}], s67 offen lds", "w2_10")
    seq = [(2*j + s, j, s, HB + 8*j + 4*s, f"h_{j}") for j in range(2, 10) for s in range(2)]
    run(seq, False)
    stamp(k, stb + 2, st)
    if hook_t3: hook_t3()
    vm.wait("w2_10")
    k("s_barrier")
    k.c("T3 tile DMA -> slot 1")
    k(f"s_lshl_b32 s70, {s_cls}, 17")
    k("s_lshl_b32 s71, s65, 15")
    k("s_add_u32 s70, s70, s71")
    k("s_lshl_b32 s71, s64, 14")
    k("s_add_u32 s70, s70, s71")
    k(f"s_lshl_b32 s71, {s_db}, 7")
    k("s_add_u32 s70, s70, s71")
    k(f"s_add_u32 s70, s70, {T3_OFF}")
    for ii in range(2):
        k(f"s_add_u32 m0, s68, {16384 + ii*1024}")
        k(f"s_add_u32 s67, s70, {ii*8192}")
        vm.issue(f"buffer_load_dwordx4 v{R['dma']}, s[{SRD_WS}:{SRD_WS+3}], s67 offen lds{fl}", "t3")
    L = k.newlabel("no10")
    k("s_cmp_eq_u32 s65, 3")
    k(f"s_cbranch_scc1 {L}")
    seq = [(20 + s, 0, s, HB + 80 + 4*s, None) for s in range(2)]
    run(seq, False)
    k.label(L)
    for r in range(32):
        k(f"v_mul_f32 v{ACC+r}, v{R['og']}, v{ACC+r}")
    vm.wait("t3")
    k("s_barrier")
    stamp(k, stb + 3, st)
    seq = [(22 + s, 1, s, R["TB"] + 4*s, None) for s in range(2)]
    run(seq, False)
    k.c("reduction")
    Ls = [k.newlabel("red") for _ in range(4)]; Lj = k.newlabel("redj")
    OWN = AF
    for q in range(4):
        if q < 3:
            k(f"s_cmp_lg_u32 s65, {q}")
            k(f"s_cbranch_scc1 {Ls[q+1]}")
        for x in range(1, 4):
            dst = q ^ x
            src = ACC + 16*(dst >> 1) + 8*(dst & 1)
            for h in range(2):
                k(f"ds_write_b128 v{R['xw']}, v[{src+4*h}:{src+4*h+3}] offset:{dst*6144 + (x-1)*2048 + h*1024}")
        own = ACC + 16*(q >> 1) + 8*(q & 1)
        for i in range(8): k(f"v_mov_b32 v{OWN+i}, v{own+i}")
        if q < 3:
            k(f"s_branch {Lj}")
            k.label(Ls[q+1])
    k.label(Lj)
    k("s_waitcnt lgkmcnt(0)")
    k("s_barrier")
    XR = R["XR"]
    for x in range(3):
        for h in range(2):
            k(f"ds_read_b128 v[{XR+8*x+4*h}:{XR+8*x+4*h+3}], v{R['xr']} offset:{x*2048 + h*1024}")
    B2 = R["HB"]
    for i in range(4):
        k(f"v_lshlrev_b32 v{B2+2*i}, 16, v{R['b2']+i}")
        k(f"v_and_b32 v{B2+2*i+1}, 0xffff0000, v{R['b2']+i}")
    for i in range(8): k(f"v_fmac_f32 v{OWN+i}, v{R['og']}, v{B2+i}")
    for x in range(3):
        k(f"s_waitcnt lgkmcnt({4-2*x})")
        for i in range(8): k(f"v_add_f32 v{OWN+i}, v{OWN+i}, v{XR+8*x+i}")
    for i in range(4): k(f"v_cvt_pk_bf16_f32 v{XR+i}, v{OWN+2*i}, v{OWN+2*i+1}")
    k.srd(SRD_B, S_POUT, S_POUT + 1, 2048 * 1024)
    k(f"buffer_store_dwordx4 v[{XR}:{XR+3}], v{R['out']}, s[{SRD_B}:{SRD_B+3}], 0 offen")
    stamp(k, stb + 4, st)

def final(k, s_cls, s_hf, s_db, st=False):
    R = final_regs(); vm = VM(k)
    final_setup(k, s_cls, s_hf, s_db, R)
    for j in range(10): final_w2_dma(k, vm, R, j, j)
    final_addr(k, s_cls, s_hf, s_db, R)
    final_small_loads(k, vm, s_cls, R)
    final_gp_loads(k, vm, s_cls, R)
    stamp(k, 1, st)
    vm.wait("gp")
    final_gate(k, R)
    final_main(k, s_cls, s_hf, s_db, R, vm, st)
    k("s_waitcnt vmcnt(0)")
    stamp(k, 7, st)
```

```python
import roles, sys
from roles import *
NAME = "gated_mix__spectral_gfnet__dense_activation_gelu__prompt_kernel"
RF_OFF = 0xC00000; TF_OFF = 0xC04000; HF_OFF = 0xC10000
SRD_DBG = 96
NL, NH = 78, 79
VS = 248
SPIN = 1 << 16
FB = 81920

def wave0(k):
    L = k.newlabel("w0skip")
    k("s_cmp_lg_u32 s3, 0")
    k(f"s_cbranch_scc1 {L}")
    return L

def nonce_publish(k):
    L = k.newlabel("npub")
    k("s_or_b32 s48, s2, s3")
    k("s_cmp_lg_u32 s48, 0")
    k(f"s_cbranch_scc1 {L}")
    k(f"s_memrealtime s[{NL}:{NH}]")
    k("s_waitcnt lgkmcnt(0)")
    k(f"s_or_b32 s{NL}, s{NL}, 1")
    k(f"v_mov_b32 v{VS+2}, s{NL}")
    k(f"v_mov_b32 v{VS+3}, s{NH}")
    k(f"v_mov_b32 v{VS}, 0")
    k("s_mov_b64 exec, 1")
    k(f"buffer_store_dwordx2 v[{VS+2}:{VS+3}], v{VS}, s[{SRD_DBG}:{SRD_DBG+3}], 0 offen sc1")
    k("s_mov_b64 exec, -1")
    k.label(L)

def nonce_issue(k):
    L = wave0(k)
    k(f"v_mov_b32 v{VS}, 0")
    k(f"buffer_load_dwordx2 v[{VS+2}:{VS+3}], v{VS}, s[{SRD_DBG}:{SRD_DBG+3}], 0 offen")
    k.label(L)

def nonce_check(k, issued=True):
    Lr, Lok, Lld = k.newlabel("nretry"), k.newlabel("nok"), k.newlabel("nld")
    k(f"s_mov_b32 s49, {SPIN}")
    k(f"v_mov_b32 v{VS}, 0")
    if not issued:
        k(f"s_branch {Lld}")
    k.label(Lr)
    k(f"v_readfirstlane_b32 s{NL}, v{VS+2}")
    k(f"v_readfirstlane_b32 s{NH}, v{VS+3}")
    k(f"s_cmp_lg_u32 s{NL}, 0")
    k(f"s_cbranch_scc1 {Lok}")
    k("s_sub_u32 s49, s49, 1")
    k("s_cmp_eq_u32 s49, 0")
    k(f"s_cbranch_scc1 {Lok}")
    k.label(Lld)
    k(f"buffer_load_dwordx2 v[{VS+2}:{VS+3}], v{VS}, s[{SRD_DBG}:{SRD_DBG+3}], 0 offen sc1")
    k("s_waitcnt vmcnt(0)")
    k(f"s_branch {Lr}")
    k.label(Lok)

def flag_store(k, nl, addr_fn):
    addr_fn()
    k(f"v_mov_b32 v{VS+2}, s{NL}")
    k(f"v_mov_b32 v{VS+3}, s{NH}")
    k(f"s_mov_b64 exec, {(1 << nl) - 1:#x}")
    k(f"buffer_store_dwordx2 v[{VS+2}:{VS+3}], v{VS}, s[{SRD_WS}:{SRD_WS+3}], 0 offen sc1")
    k("s_mov_b64 exec, -1")

def poll(k, nfl, soff_fn, second=None):
    L = wave0(k)
    soff_fn()
    if nfl < 64:
        k(f"v_min_u32 v{VS}, {nfl-1}, v0")
        k(f"v_lshlrev_b32 v{VS}, 3, v{VS}")
    else:
        k(f"v_lshlrev_b32 v{VS}, 3, v0")
    if second is not None: k(f"v_mov_b32 v{VS+1}, 0")
    k(f"s_mov_b32 s48, {SPIN}")
    Ll = k.newlabel("poll")
    k.label(Ll)
    k(f"buffer_load_dwordx2 v[{VS+2}:{VS+3}], v{VS}, s[{SRD_WS}:{SRD_WS+3}], s49 offen sc1")
    if second is not None:
        k(f"buffer_load_dwordx2 v[{VS+4}:{VS+5}], v{VS+1}, s[{SRD_WS}:{SRD_WS+3}], s49 offen offset:{second} sc1")
    k("s_waitcnt vmcnt(0)")
    k(f"v_cmp_eq_u32 vcc, s{NL}, v{VS+2}")
    k(f"v_cmp_eq_u32 s[50:51], s{NH}, v{VS+3}")
    k("s_and_b64 vcc, vcc, s[50:51]")
    if second is not None:
        k(f"v_cmp_eq_u32 s[50:51], s{NL}, v{VS+4}")
        k("s_and_b64 vcc, vcc, s[50:51]")
        k(f"v_cmp_eq_u32 s[50:51], s{NH}, v{VS+5}")
        k("s_and_b64 vcc, vcc, s[50:51]")
    k("s_cmp_eq_u64 vcc, exec")
    k(f"s_cbranch_scc1 {L}")
    k("s_sub_u32 s48, s48, 1")
    k("s_cmp_lg_u32 s48, 0")
    k(f"s_cbranch_scc1 {Ll}")
    k.label(L)
    k("s_barrier")

def build(fn, st=False, inner=0):
    k = K()
    k("s_cmp_ge_u32 s2, 256")
    k("s_cbranch_scc1 L_end")
    if st: stamps_clear(k); stamp(k, 0)
    prologue(k)
    k.srd(SRD_DBG, S_PDBG, S_PDBG + 1, 256)
    nonce_publish(k)
    k("s_and_b32 s72, s2, 7")
    k("s_lshr_b32 s73, s2, 3")
    k("s_and_b32 s76, s73, 7")
    k("s_lshr_b32 s74, s73, 3")
    k("s_lshl_b32 s75, s72, 2")
    k("s_add_u32 s75, s75, s74")
    k("s_lshr_b32 s74, s75, 1")
    k("s_and_b32 s75, s75, 1")
    R = final_regs()
    k("s_cmp_ge_u32 s73, 22")
    k("s_cbranch_scc1 L_notg1")
    k("s_and_b32 s70, s73, 1")
    k("s_lshl_b32 s71, s72, 1")
    k("s_add_u32 s70, s70, s71")
    k("s_lshr_b32 s71, s73, 1")
    gemm1(k, "s70", "s71", st=False, sc1=True, tail_wait=False, pre_epi=lambda: nonce_issue(k))
    stamp(k, 1, st)
    k("s_waitcnt vmcnt(0)")
    k("s_barrier")
    L = wave0(k)
    nonce_check(k)
    def a():
        k("s_lshl_b32 s48, s70, 9")
        k("s_lshl_b32 s49, s71, 3")
        k("s_add_u32 s48, s48, s49")
        k(f"s_add_u32 s48, s48, {HF_OFF}")
        k(f"v_lshl_add_u32 v{VS}, v0, 8, s48")
    flag_store(k, 2, a)
    k.label(L)
    stamp(k, 2, st)
    vm = VM(k)
    final_setup(k, "s74", "s75", "s76", R)
    for j in range(10): final_w2_dma(k, vm, R, j, j)
    k("s_branch L_final")
    k.label("L_notg1")
    k("s_cmp_ge_u32 s73, 30")
    k("s_cbranch_scc1 L_nop1")
    k("s_sub_u32 s77, s73, 22")
    k("s_and_b32 s70, s77, 1")
    k("s_lshl_b32 s71, s72, 1")
    k("s_add_u32 s70, s70, s71")
    k("s_lshr_b32 s71, s77, 1")
    k("s_lshl_b32 s77, s77, 3")
    k("s_add_u32 s77, s77, s72")
    p1(k, "s70", "s71", st=False, sc1=True, lb=FB, tail_wait=False, pre_epi=lambda: nonce_issue(k))
    stamp(k, 1, st)
    k("s_waitcnt vmcnt(0)")
    k("s_barrier")
    L = wave0(k)
    nonce_check(k)
    def a():
        k("s_lshl_b32 s48, s70, 2")
        k("s_add_u32 s48, s48, s71")
        k("s_lshl_b32 s48, s48, 3")
        k(f"s_add_u32 s48, s48, {RF_OFF}")
        k(f"v_lshl_add_u32 v{VS}, v0, 10, s48")
        k("s_lshl_b32 s48, s70, 9")
        k("s_lshl_b32 s49, s71, 3")
        k("s_add_u32 s48, s48, s49")
        k(f"s_add_u32 s48, s48, {HF_OFF + 88 - 8*256}")
        k(f"v_lshl_add_u32 v{VS+1}, v0, 8, s48")
        k("v_cmp_gt_u32 vcc, 8, v0")
        k(f"v_cndmask_b32 v{VS}, v{VS+1}, v{VS}, vcc")
    flag_store(k, 10, a)
    k.label(L)
    stamp(k, 2, st)
    k("s_branch L_p2")
    k.label("L_nop1")
    L = wave0(k)
    nonce_check(k, issued=False)
    k.label(L)
    k("s_cmp_lg_u32 s2, 240")
    k("s_cbranch_scc1 L_idle")
    k("s_mov_b32 s77, 64")
    k.label("L_p2")
    roles.P2_E1 = FB; roles.P2_SLAB = FB + 32768; roles.P2_E2 = FB + 32768
    vm = VM(k)
    final_setup(k, "s74", "s75", "s76", R)
    R2 = p2_regs()
    p2_pre(k, "s77", R2)
    for j in range(5): final_w2_dma(k, vm, R, j, j)
    p2_consts(k, "s77", R2)
    p2_addr(k, "s77", R2)
    k("s_waitcnt vmcnt(0)")
    p2_wfix(k, R2)
    def so():
        k("s_lshl_b32 s49, s72, 10")
        k(f"s_add_u32 s49, s49, {RF_OFF}")
    poll(k, 64, so)
    stamp(k, 3, st)
    p2_slab_dma(k, "s77", R2)
    k("s_waitcnt vmcnt(0)")
    k("s_barrier")
    p2_main(k, "s77", R2, st=0, sc1=True)
    stamp(k, 4, st)
    k("s_waitcnt vmcnt(0)")
    k("s_barrier")
    L = wave0(k)
    def a():
        k("s_lshl_b32 s48, s77, 3")
        k(f"s_add_u32 s48, s48, {TF_OFF}")
        k(f"v_lshl_add_u32 v{VS}, v0, 10, s48")
    flag_store(k, 32, a)
    k.label(L)
    for j in range(5, 10): final_w2_dma(k, vm, R, j, j)
    k("s_branch L_final")
    k.label("L_idle")
    vm = VM(k)
    final_setup(k, "s74", "s75", "s76", R)
    for j in range(10): final_w2_dma(k, vm, R, j, j)
    k.label("L_final")
    vm = VM(k)
    for j in range(10): vm.q.append(f"w2_{j}"); vm.seen.add(f"w2_{j}")
    final_addr(k, "s74", "s75", "s76", R)
    final_small_loads(k, vm, "s74", R)
    def so():
        k("s_lshl_b32 s49, s74, 1")
        k("s_add_u32 s49, s49, s75")
        k("s_lshl_b32 s49, s49, 8")
        k(f"s_add_u32 s49, s49, {HF_OFF}")
    poll(k, 15, so)
    stamp(k, 5, st)
    final_gp_loads(k, vm, "s74", R)
    def after_h():
        vm.wait("gp")
        final_gate(k, R)
    def hook_t3():
        def so():
            k("s_and_b32 s49, s2, 31")
            k("s_lshl_b32 s49, s49, 10")
            k(f"s_add_u32 s49, s49, {TF_OFF}")
        poll(k, 64, so, second=512)
        stamp(k, 6, st)
    final_main(k, "s74", "s75", "s76", R, vm, st=False, hook_t3=hook_t3, after_h=after_h)
    if st:
        k("s_waitcnt vmcnt(0)")
        stamp(k, 7, st)
        stamps_store(k)
    k.label("L_end")
    k("s_endpgm")
    txt, info = make_file([(NAME, k.l)], [(None, 256, 512, 163840)])
    open(fn, "w").write(txt); print(info)

if __name__ == "__main__":
    build("f1.s")
    build("f1_st.s", st=True)
```

```python
import roles, sys
from roles import *
NAME = "gated_mix__spectral_gfnet__dense_activation_gelu__prompt_kernel"
RF_OFF = 0xC00000; TF_OFF = 0xC04000; HF_OFF = 0xC10000
SRD_DBG = 96
NL, NH = 78, 79
VS = 248
SPIN = 1 << 16
FB = 81920

def wave0(k):
    L = k.newlabel("w0skip")
    k("s_cmp_lg_u32 s3, 0")
    k(f"s_cbranch_scc1 {L}")
    return L

def nonce_publish(k):
    L = k.newlabel("npub")
    k("s_or_b32 s100, s2, s3")
    k("s_cmp_lg_u32 s100, 0")
    k(f"s_cbranch_scc1 {L}")
    k(f"s_memrealtime s[{NL}:{NH}]")
    k("s_waitcnt lgkmcnt(0)")
    k(f"s_or_b32 s{NL}, s{NL}, 1")
    k(f"v_mov_b32 v{VS+2}, s{NL}")
    k(f"v_mov_b32 v{VS+3}, s{NH}")
    k(f"v_mov_b32 v{VS}, 0")
    k("s_mov_b64 exec, 1")
    k(f"buffer_store_dwordx2 v[{VS+2}:{VS+3}], v{VS}, s[{SRD_DBG}:{SRD_DBG+3}], 0 offen sc1")
    k("s_mov_b64 exec, -1")
    k.label(L)

def nonce_issue(k):
    L = wave0(k)
    k(f"v_mov_b32 v{VS}, 0")
    k(f"buffer_load_dwordx2 v[{VS+2}:{VS+3}], v{VS}, s[{SRD_DBG}:{SRD_DBG+3}], 0 offen")
    k.label(L)

def nonce_check(k, issued=True):
    Lr, Lok, Lld = k.newlabel("nretry"), k.newlabel("nok"), k.newlabel("nld")
    k(f"s_mov_b32 s49, {SPIN}")
    k(f"v_mov_b32 v{VS}, 0")
    if not issued:
        k(f"s_branch {Lld}")
    k.label(Lr)
    k(f"v_readfirstlane_b32 s{NL}, v{VS+2}")
    k(f"v_readfirstlane_b32 s{NH}, v{VS+3}")
    k(f"s_cmp_lg_u32 s{NL}, 0")
    k(f"s_cbranch_scc1 {Lok}")
    k("s_sub_u32 s49, s49, 1")
    k("s_cmp_eq_u32 s49, 0")
    k(f"s_cbranch_scc1 {Lok}")
    k.label(Lld)
    k(f"buffer_load_dwordx2 v[{VS+2}:{VS+3}], v{VS}, s[{SRD_DBG}:{SRD_DBG+3}], 0 offen sc1")
    k("s_waitcnt vmcnt(0)")
    k(f"s_branch {Lr}")
    k.label(Lok)

def flag_store(k, nl, addr_fn):
    addr_fn()
    k(f"v_mov_b32 v{VS+2}, s{NL}")
    k(f"v_mov_b32 v{VS+3}, s{NH}")
    k(f"s_mov_b64 exec, {(1 << nl) - 1:#x}")
    k(f"buffer_store_dwordx2 v[{VS+2}:{VS+3}], v{VS}, s[{SRD_WS}:{SRD_WS+3}], 0 offen sc1")
    k("s_mov_b64 exec, -1")

def poll(k, nfl, soff_fn, second=None):
    L = wave0(k)
    soff_fn()
    if nfl < 64:
        k(f"v_min_u32 v{VS}, {nfl-1}, v0")
        k(f"v_lshlrev_b32 v{VS}, 3, v{VS}")
    else:
        k(f"v_lshlrev_b32 v{VS}, 3, v0")
    if second is not None: k(f"v_mov_b32 v{VS+1}, 0")
    k(f"s_mov_b32 s48, {SPIN}")
    Ll = k.newlabel("poll")
    k.label(Ll)
    k(f"buffer_load_dwordx2 v[{VS+2}:{VS+3}], v{VS}, s[{SRD_WS}:{SRD_WS+3}], s49 offen sc1")
    if second is not None:
        k(f"buffer_load_dwordx2 v[{VS+4}:{VS+5}], v{VS+1}, s[{SRD_WS}:{SRD_WS+3}], s49 offen offset:{second} sc1")
    k("s_waitcnt vmcnt(0)")
    k(f"v_cmp_eq_u32 vcc, s{NL}, v{VS+2}")
    k(f"v_cmp_eq_u32 s[50:51], s{NH}, v{VS+3}")
    k("s_and_b64 vcc, vcc, s[50:51]")
    if second is not None:
        k(f"v_cmp_eq_u32 s[50:51], s{NL}, v{VS+4}")
        k("s_and_b64 vcc, vcc, s[50:51]")
        k(f"v_cmp_eq_u32 s[50:51], s{NH}, v{VS+5}")
        k("s_and_b64 vcc, vcc, s[50:51]")
    k("s_cmp_eq_u64 vcc, exec")
    k(f"s_cbranch_scc1 {L}")
    k("s_sub_u32 s48, s48, 1")
    k("s_cmp_lg_u32 s48, 0")
    k(f"s_cbranch_scc1 {Ll}")
    k.label(L)
    k("s_barrier")

def dbg_stamps(k):
    for wg, base in ((8, 2), (177, 9)):
        L = k.newlabel("dbgst")
        k(f"s_cmp_lg_u32 s2, {wg}")
        k(f"s_cbranch_scc1 {L}")
        k("s_cmp_lg_u32 s3, 0")
        k(f"s_cbranch_scc1 {L}")
        k("s_waitcnt lgkmcnt(0)")
        for i in range(1, 8):
            k(f"s_sub_u32 s48, s{S_STAMP+2*i}, s{S_STAMP}")
            k(f"v_mov_b32 v{VS+2}, s48")
            k(f"v_mov_b32 v{VS}, {(base+i-1)*4}")
            k("s_mov_b64 exec, 1")
            k(f"buffer_store_dword v{VS+2}, v{VS}, s[{SRD_DBG}:{SRD_DBG+3}], 0 offen")
            k("s_mov_b64 exec, -1")
        k.label(L)

def build(fn, st=False, inner=0, dbg=False):
    k = K()
    k("s_cmp_ge_u32 s2, 256")
    k("s_cbranch_scc1 L_end")
    if st: stamps_clear(k); stamp(k, 0)
    prologue(k)
    k.srd(SRD_DBG, S_PDBG, S_PDBG + 1, 256)
    nonce_publish(k)
    k("s_and_b32 s72, s2, 7")
    k("s_lshr_b32 s73, s2, 3")
    k("s_and_b32 s76, s73, 7")
    k("s_lshr_b32 s74, s73, 3")
    k("s_lshl_b32 s75, s72, 2")
    k("s_add_u32 s75, s75, s74")
    k("s_lshr_b32 s74, s75, 1")
    k("s_and_b32 s75, s75, 1")
    R = final_regs()
    k("s_cmp_ge_u32 s73, 22")
    k("s_cbranch_scc1 L_notg1")
    k("s_and_b32 s70, s73, 1")
    k("s_lshl_b32 s71, s72, 1")
    k("s_add_u32 s70, s70, s71")
    k("s_lshr_b32 s71, s73, 1")
    gemm1(k, "s70", "s71", st=False, sc1=True, tail_wait=False, pre_epi=lambda: nonce_issue(k))
    stamp(k, 1, st)
    k("s_waitcnt vmcnt(0)")
    k("s_barrier")
    L = wave0(k)
    nonce_check(k)
    def a():
        k("s_lshl_b32 s48, s70, 9")
        k("s_lshl_b32 s49, s71, 3")
        k("s_add_u32 s48, s48, s49")
        k(f"s_add_u32 s48, s48, {HF_OFF}")
        k(f"v_lshl_add_u32 v{VS}, v0, 8, s48")
    flag_store(k, 2, a)
    k.label(L)
    stamp(k, 2, st)
    vm = VM(k)
    final_setup(k, "s74", "s75", "s76", R)
    for j in range(10): final_w2_dma(k, vm, R, j, j)
    k("s_branch L_final")
    k.label("L_notg1")
    k("s_cmp_ge_u32 s73, 30")
    k("s_cbranch_scc1 L_nop1")
    k("s_sub_u32 s77, s73, 22")
    k("s_and_b32 s70, s77, 1")
    k("s_lshl_b32 s71, s72, 1")
    k("s_add_u32 s70, s70, s71")
    k("s_lshr_b32 s71, s77, 1")
    k("s_lshl_b32 s77, s77, 3")
    k("s_add_u32 s77, s77, s72")
    p1(k, "s70", "s71", st=False, sc1=True, lb=FB, tail_wait=False, pre_epi=lambda: nonce_issue(k))
    stamp(k, 1, st)
    k("s_waitcnt vmcnt(0)")
    k("s_barrier")
    L = wave0(k)
    nonce_check(k)
    def a():
        k("s_lshl_b32 s48, s70, 2")
        k("s_add_u32 s48, s48, s71")
        k("s_lshl_b32 s48, s48, 3")
        k(f"s_add_u32 s48, s48, {RF_OFF}")
        k(f"v_lshl_add_u32 v{VS}, v0, 10, s48")
        k("s_lshl_b32 s48, s70, 9")
        k("s_lshl_b32 s49, s71, 3")
        k("s_add_u32 s48, s48, s49")
        k(f"s_add_u32 s48, s48, {HF_OFF + 88 - 8*256}")
        k(f"v_lshl_add_u32 v{VS+1}, v0, 8, s48")
        k("v_cmp_gt_u32 vcc, 8, v0")
        k(f"v_cndmask_b32 v{VS}, v{VS+1}, v{VS}, vcc")
    flag_store(k, 10, a)
    k.label(L)
    stamp(k, 2, st)
    k("s_branch L_p2")
    k.label("L_nop1")
    L = wave0(k)
    nonce_check(k, issued=False)
    k.label(L)
    k("s_cmp_lg_u32 s2, 240")
    k("s_cbranch_scc1 L_idle")
    k("s_mov_b32 s77, 64")
    k.label("L_p2")
    roles.P2_E1 = FB; roles.P2_SLAB = FB + 32768; roles.P2_E2 = FB + 32768
    vm = VM(k)
    final_setup(k, "s74", "s75", "s76", R)
    R2 = p2_regs()
    p2_pre(k, "s77", R2)
    for j in range(5): final_w2_dma(k, vm, R, j, j)
    p2_consts(k, "s77", R2)
    p2_addr(k, "s77", R2)
    k("s_waitcnt vmcnt(0)")
    p2_wfix(k, R2)
    def so():
        k("s_lshl_b32 s49, s72, 10")
        k(f"s_add_u32 s49, s49, {RF_OFF}")
    poll(k, 64, so)
    stamp(k, 3, st)
    p2_slab_dma(k, "s77", R2)
    k("s_waitcnt vmcnt(0)")
    k("s_barrier")
    p2_main(k, "s77", R2, st=0, sc1=True)
    stamp(k, 4, st)
    k("s_waitcnt vmcnt(0)")
    k("s_barrier")
    L = wave0(k)
    def a():
        k("s_lshl_b32 s48, s77, 3")
        k(f"s_add_u32 s48, s48, {TF_OFF}")
        k(f"v_lshl_add_u32 v{VS}, v0, 10, s48")
    flag_store(k, 32, a)
    k.label(L)
    for j in range(5, 10): final_w2_dma(k, vm, R, j, j)
    k("s_branch L_final")
    k.label("L_idle")
    vm = VM(k)
    final_setup(k, "s74", "s75", "s76", R)
    for j in range(10): final_w2_dma(k, vm, R, j, j)
    k.label("L_final")
    vm = VM(k)
    for j in range(10): vm.q.append(f"w2_{j}"); vm.seen.add(f"w2_{j}")
    final_addr(k, "s74", "s75", "s76", R)
    final_small_loads(k, vm, "s74", R)
    def so():
        k("s_lshl_b32 s49, s74, 1")
        k("s_add_u32 s49, s49, s75")
        k("s_lshl_b32 s49, s49, 8")
        k(f"s_add_u32 s49, s49, {HF_OFF}")
    poll(k, 15, so)
    stamp(k, 5, st)
    final_gp_loads(k, vm, "s74", R)
    def after_h():
        vm.wait("gp")
        final_gate(k, R)
    def hook_t3():
        def so():
            k("s_and_b32 s49, s2, 31")
            k("s_lshl_b32 s49, s49, 10")
            k(f"s_add_u32 s49, s49, {TF_OFF}")
        poll(k, 64, so, second=512)
        stamp(k, 6, st)
    final_main(k, "s74", "s75", "s76", R, vm, st=False, hook_t3=hook_t3, after_h=after_h)
    if st:
        k("s_waitcnt vmcnt(0)")
        stamp(k, 7, st)
        if dbg: dbg_stamps(k)
        else: stamps_store(k)
    k.label("L_end")
    k("s_endpgm")
    txt, info = make_file([(NAME, k.l)], [(None, 256, 512, 163840)])
    open(fn, "w").write(txt); print(info)

if __name__ == "__main__":
    build("f1.s")
    build("f1_st.s", st=True)
    build("f1_dbg.s", st=True, dbg=True)
```

```python
import roles, roles2, sys
from roles2 import *
from roles3 import *
import roles3
from fused import (NAME, RF_OFF, TF_OFF, HF_OFF, SRD_DBG, NL, NH, VS, SPIN, FB, wave0, nonce_publish, nonce_issue, nonce_check,
                   flag_store, poll, dbg_stamps)

def wave0not(k):
    L = k.newlabel("w0only")
    k("s_cmp_eq_u32 s3, 0")
    k(f"s_cbranch_scc1 {L}")
    return L

def build(fn, stmap=None, dbg=False, rot=4, g1=None, opts=(), dbrot=0, esched=((0,1,2),(3,4),(),()), w56=False, nshadow=3, pos=(3, 6, 9)):
    nearly = sum(len(e) for e in esched)
    st = stmap is not None
    roles2.STMAP.clear()
    if st: roles2.STMAP.update(stmap)
    k = K()
    k("s_cmp_ge_u32 s2, 256")
    k("s_cbranch_scc1 L_end")
    if st: stamps_clear(k); stamp(k, 0)
    pro_issue(k)
    k("s_and_b32 s72, s2, 7")
    k("s_lshr_b32 s73, s2, 3")
    k(f"s_add_u32 s76, s73, {dbrot}")
    k("s_and_b32 s76, s76, 7")
    k("s_lshr_b32 s74, s73, 3")
    k("s_lshl_b32 s75, s72, 2")
    k("s_add_u32 s75, s75, s74")
    k("s_lshr_b32 s74, s75, 1")
    k("s_and_b32 s75, s75, 1")
    R = fin_regs()
    fin_setup_pre(k, "s76", R, 232)
    k("s_cmp_ge_u32 s73, 22")
    k("s_cbranch_scc1 L_notg1")
    k("s_and_b32 s70, s73, 1")
    k("s_lshl_b32 s71, s72, 1")
    k("s_add_u32 s70, s70, s71")
    k("s_lshr_b32 s71, s73, 1")
    vm = VM(k)
    def post():
        fin_srd(k)
        k.srd(SRD_DBG, S_PDBG, S_PDBG + 1, 256)
        nonce_publish(k)
    left = gemm1b(k, "s70", "s71", R, vm, rot=rot, post_issue=post, pre_epi=lambda: nonce_issue(k), defer=("g1defer" in opts), **(g1 or {}))
    sn(k, "st1")
    nlate = 0
    if "g1defer" in opts:
        for pr in left:
            for j in pr:
                for ii in range(2): w2_piece(k, vm, R, j, ii); nlate += 1
    final_addr(k, "s74", "s75", "s76", R)
    final_small_loads(k, vm, "s74", R)
    k(f"s_waitcnt vmcnt({nlate + 1 if 'g1defer' in opts else 0})")
    k("s_barrier")
    L = wave0(k)
    nonce_check(k)
    def a():
        k("s_lshl_b32 s48, s70, 9")
        k("s_lshl_b32 s49, s71, 3")
        k("s_add_u32 s48, s48, s49")
        k(f"s_add_u32 s48, s48, {HF_OFF}")
        k(f"v_lshl_add_u32 v{VS}, v0, 8, s48")
    flag_store(k, 2, a)
    k.label(L)
    sn(k, "st2")
    for j in (4, 5):
        for ii in range(2): w2_piece(k, vm, R, j, ii)
    k("s_branch L_final")
    k.label("L_notg1")
    k("s_cmp_ge_u32 s73, 30")
    k("s_cbranch_scc1 L_nop1")
    k("s_sub_u32 s77, s73, 22")
    k("s_and_b32 s70, s77, 1")
    k("s_lshl_b32 s71, s72, 1")
    k("s_add_u32 s70, s70, s71")
    k("s_lshr_b32 s71, s77, 1")
    k("s_lshl_b32 s77, s77, 3")
    k("s_add_u32 s77, s77, s72")
    roles.P2_PITCH = 1032; roles.P2_E1 = FB; roles.P2_SLAB = FB + 32768; roles.P2_E2 = FB + 32768
    R2 = p2_regs3(); R2["srdw"] = (SRD_C, SRD_D)
    vm = VM(k)
    p2_nq(k, R2)
    def ai():
        p2_wsrd(k, R2)
        p2_wload_row(k, vm, "s77", R2, 0, 88, 4)
        k.srd(SRD_DBG, S_PDBG, S_PDBG + 1, 256)
    def am():
        if "rflag" not in opts and "wlate" not in opts: p2_wload_row(k, vm, "s77", R2, 1, 88, 4)
        k(f"v_mov_b32 v{VS}, 0")
        k(f"buffer_load_dwordx2 v[{VS+2}:{VS+3}], v{VS}, s[{SRD_DBG}:{SRD_DBG+3}], 0 offen")
    p1b(k, vm, "s70", "s71", FB, after_issue=ai, after_mfma=am)
    sn(k, "st1")
    if "wlate" in opts:
        p2_consts(k, "s77", R2)
        p2_addr3(k, "s77", R2)
        sn(k, "f_p2c")
        vm.wait("gp")
        sn(k, "f_wait")
    elif "rflag" in opts:
        p2_wload_row(k, vm, "s77", R2, 1, 88, 4)
        fin_srd(k)
        if "c_pre" in opts: p2_addr3(k, "s77", R2)
        sn(k, "f_wiss")
        vm.wait("gp")
        sn(k, "f_wait")
    else:
        fin_srd(k)
        p2_consts(k, "s77", R2)
        p2_addr3(k, "s77", R2)
        sn(k, "f_p2c")
        k("s_waitcnt vmcnt(0)")
        sn(k, "f_wait")
    k("s_barrier")
    sn(k, "f_bar")
    nonce_check(k)
    L = k.newlabel("w0skip"); L2_ = k.newlabel("w0j")
    k("s_cmp_lg_u32 s3, 0")
    k(f"s_cbranch_scc1 {L}")
    def a():
        k("s_lshl_b32 s48, s70, 2")
        k("s_add_u32 s48, s48, s71")
        k("s_lshl_b32 s48, s48, 3")
        k(f"s_add_u32 s48, s48, {RF_OFF}")
        k(f"v_lshl_add_u32 v{VS}, v0, 10, s48")
        k("s_lshl_b32 s48, s70, 9")
        k("s_lshl_b32 s49, s71, 3")
        k("s_add_u32 s48, s48, s49")
        k(f"s_add_u32 s48, s48, {HF_OFF + 88 - 8*256}")
        k(f"v_lshl_add_u32 v{VS+1}, v0, 8, s48")
        k("v_cmp_gt_u32 vcc, 8, v0")
        k(f"v_cndmask_b32 v{VS}, v{VS+1}, v{VS}, vcc")
    flag_store(k, 10, a)
    if "wlate" in opts:
        p2_wload_row(k, VM(k), "s77", R2, 1, 148, 4)
        fin_srd(k)
    k(f"s_branch {L2_}")
    k.label(L)
    if "wlate" in opts:
        p2_wload_row(k, VM(k), "s77", R2, 1, 148, 4)
        fin_srd(k)
    if "w2early" in opts:
        for j in range(5):
            for ii in range(2): w2_piece(k, VM(k), R, j, ii)
    k.label(L2_)
    sn(k, "st2")
    if "rflag" in opts:
        p2_consts(k, "s77", R2)
        if "c_pre" not in opts: p2_addr3(k, "s77", R2)
        sn(k, "f_p2c")
        L = k.newlabel("ww"); L2_ = k.newlabel("wwj")
        k("s_cmp_lg_u32 s3, 0")
        k(f"s_cbranch_scc1 {L}")
        k("s_waitcnt vmcnt(1)")
        k(f"s_branch {L2_}")
        k.label(L)
        k(f"s_waitcnt vmcnt({10 if 'w2early' in opts else 0})")
        k.label(L2_)
    k("s_branch L_p2")
    k.label("L_nop1")
    k("s_sub_u32 s50, s2, 240")
    k("s_mul_i32 s50, s50, 688")
    k("s_lshl_b32 s51, s3, 6")
    k("s_add_u32 s50, s50, s51")
    k("v_add_u32 v2, s50, v0")
    k("v_lshlrev_b32 v2, 7, v2")
    pro_wait(k)
    if "touch" in opts:
        fin_srd(k)
        k(f"buffer_load_dword v241, v2, s[{SRD_C}:{SRD_C+3}], 0 offen")
        L = k.newlabel("t2")
        k("s_cmp_ge_u32 s3, 3")
        k(f"s_cbranch_scc1 {L}")
        k("v_add_u32 v2, 0x10000, v2")
        k(f"buffer_load_dword v242, v2, s[{SRD_C}:{SRD_C+3}], 0 offen")
        k.label(L)
    k.srd(SRD_DBG, S_PDBG, S_PDBG + 1, 256)
    k("s_cmp_lg_u32 s2, 240")
    k("s_cbranch_scc1 L_idle")
    k("s_mov_b32 s77, 64")
    vm = VM(k)
    p2_nq(k, R2)
    p2_wsrd(k, R2)
    p2_wload_row(k, vm, "s77", R2, 0, 148, 4)
    p2_consts(k, "s77", R2)
    p2_wload_row(k, vm, "s77", R2, 1, 148, 4)
    p2_addr3(k, "s77", R2)
    fin_srd(k)
    nonce_check(k, issued=False)
    k("s_waitcnt vmcnt(0)")
    if "w2early" in opts:
        L = wave0not(k)
        for j in range(5):
            for ii in range(2): w2_piece(k, VM(k), R, j, ii)
        k.label(L)
    k.label("L_p2")
    vm = VM(k)
    if "wlate" not in opts: p2_wfix(k, R2)
    def so():
        k("s_lshl_b32 s49, s72, 10")
        k(f"s_add_u32 s49, s49, {RF_OFF}")
    poll(k, 64, so)
    sn(k, "st3")
    p2_slab_dma(k, "s77", R2)
    if "wlate" in opts:
        k("s_waitcnt vmcnt(4)")
        p2_wfix(k, R2)
    if "w2early" in opts:
        k("s_waitcnt vmcnt(0)")
    else:
        for j in range(5):
            for ii in range(2): w2_piece(k, vm, R, j, ii)
        k("s_waitcnt vmcnt(10)")
    k("s_barrier")
    sn(k, "p_slab")
    V = {}
    RF = dict(R)
    if nearly > 5: RF['hmap'] = {5: 212, 6: 220}
    def hA():
        if "w2early" in opts:
            L = wave0(k)
            for j in range(5):
                for ii in range(2): w2_piece(k, VM(k), R, j, ii)
            k.label(L)
        k("s_lshl_b32 s61, s74, 1")
        k("s_add_u32 s61, s61, s75")
        k("s_lshl_b32 s61, s61, 8")
        k(f"s_add_u32 s61, s61, {HF_OFF}")
        flags_issue(k, 15, "s61")
    def hW():
        flags_check(k, "s61", "s60")
        sn(k, "p_hfl")
        V["vm"] = VM(k)
        k(f"v_lshlrev_b32 v{R['h']}, 4, v0")
        h_base(k, "s74", "s75")
        for j in esched[0]: h_load(k, V["vm"], RF, j)
    def hW2():
        for j in esched[1]: h_load(k, V["vm"], RF, j)
    def hW3():
        for j in esched[2]: h_load(k, V["vm"], RF, j)
    def hB():
        for j in esched[3]: h_load(k, V["vm"], RF, j)
        final_addr(k, "s74", "s75", "s76", R)
    def hC():
        final_gp_loads(k, V["vm"], "s74", R, sc1=False)
        if w56:
            for j in (5, 6):
                for ii in range(2): w2_piece(k, V["vm"], R, j, ii)
    p2_main3(k, "s77", R2, lambda: V["vm"], dict(A=hA, W=hW, W2=hW2, W3=hW3, B=hB, C=hC, V=lambda: k("s_barrier")))
    sn(k, "st4")
    vm = V["vm"]
    def w2l(j):
        for ii in range(2): w2_piece(k, vm, R, j, ii)
    def w10():
        k("s_cmp_eq_u32 s65, 3")
        k(f"s_mov_b32 s71, {10*32768}")
        k(f"s_cselect_b32 s71, {9*32768}, s71")
        for ii in range(2):
            k(f"s_add_u32 m0, s68, {ii*1024}")
            k(f"s_add_u32 s67, s66, s71")
            if ii: k("s_add_u32 s67, s67, 8192")
            vm.issue(f"buffer_load_dwordx4 v{R['dma']}, s[{SRD_C}:{SRD_C+3}], s67 offen lds", "w2_10")
    items = []
    if not w56: items += [lambda: (w2l(5), w2l(6))]
    for j in range(nearly, 7): items.append(lambda j=j: h_load(k, vm, RF, j))
    for j in (7, 8, 9): items.append(lambda j=j: (w2l(j), h_load(k, vm, RF, j)))
    n_late = len(items) - min(len(items), nshadow)
    pre = items[:len(items) - n_late]; post = items[len(items) - n_late:]
    vm.wait("gp")
    final_gate(k, R)
    sn(k, "f_gate")
    aft = {}
    for n_, f in enumerate(pre): aft[pos[n_]] = f
    gemm2_run(k, vm, RF, gseq(RF, range(0, 5)), True, after=aft)
    sn(k, "f_g04")
    vm.wait("t3st")
    if "w2_6" in vm.q: vm.wait("w2_6")
    k("s_barrier")
    L = wave0(k)
    def a():
        k("s_lshl_b32 s48, s77, 3")
        k(f"s_add_u32 s48, s48, {TF_OFF}")
        k(f"v_lshl_add_u32 v{VS}, v0, 10, s48")
    flag_store(k, 32, a)
    k.label(L)
    sn(k, "f_tfl")
    for f in post: f()
    h_load(k, vm, RF, 10); w10(); final_small_loads(k, vm, "s74", R)
    gemm2_run(k, vm, RF, gseq(RF, (5, 6)), False)
    sn(k, "f_g56")
    if nshadow >= len(items):
        vm.wait("w2_9")
        k("s_barrier")
        gemm2_run(k, vm, RF, gseq(RF, (7, 8, 9)), False)
    else:
        for j in (7, 8, 9):
            vm.wait(f"w2_{j}")
            k("s_barrier")
            gemm2_run(k, vm, RF, gseq(RF, (j,)), False)
    sn(k, "st5")
    k("s_branch L_t3")
    k.label("L_idle")
    fin_srd(k)
    L = wave0(k)
    nonce_check(k, issued=False)
    k.label(L)
    vm = VM(k)
    for j in range(10):
        for ii in range(2): w2_piece(k, vm, R, j, ii)
    final_addr(k, "s74", "s75", "s76", R)
    final_small_loads(k, vm, "s74", R)
    k.label("L_final")
    vm = VM(k)
    for j in range(10): vm.q.append(f"w2_{j}"); vm.seen.add(f"w2_{j}")
    def so():
        k("s_lshl_b32 s49, s74, 1")
        k("s_add_u32 s49, s49, s75")
        k("s_lshl_b32 s49, s49, 8")
        k(f"s_add_u32 s49, s49, {HF_OFF}")
    poll(k, 15, so)
    sn(k, "st5")
    final_gp_loads(k, vm, "s74", R)
    def after_h():
        vm.wait("gp")
        final_gate(k, R)
    def hook_t3():
        k.label("L_t3")
        def so():
            k("s_and_b32 s49, s2, 31")
            k("s_lshl_b32 s49, s49, 10")
            k(f"s_add_u32 s49, s49, {TF_OFF}")
        poll(k, 64, so, second=512)
        sn(k, "st6")
    final_main(k, "s74", "s75", "s76", R, vm, st=False, hook_t3=hook_t3, after_h=after_h)
    if st:
        k("s_waitcnt vmcnt(0)")
        sn(k, "st7")
        if dbg: dbg_stamps(k)
        else: stamps_store(k)
    k.label("L_end")
    k("s_endpgm")
    txt, info = make_file([(NAME, k.l)], [(None, 256, 512, 163840)])
    open(fn, "w").write(txt); print(info)

STD = {f"st{i}": i for i in range(1, 8)}
if __name__ == "__main__":
    g = dict(D=2)
    A = {"st1":1, "f_p2c":2, "f_wait":3, "f_bar":4, "st2":5, "st3":6, "p_slab":7}
    A2 = {"st1":1, "f_wiss":2, "f_wait":3, "f_bar":4, "st2":5, "st3":6, "p_slab":7}
    e7 = ((0,1,2),(3,4),(5,6),())
    base = dict(g1=g, w56=True, nshadow=3, pos=(3,6,9))
    build("f4_a.s", A, opts=("touch", "w2early", "g1defer"), esched=e7, **base)
    build("f4_b.s", A2, opts=("touch", "w2early", "rflag", "g1defer"), esched=e7, **base)
    build("f4_c.s", A, opts=("touch", "w2early", "wlate", "g1defer"), esched=e7, **base)
    A = {"st1":1, "st2":2, "st3":3, "p_slab":4, "st4":5, "f_tfl":6, "st7":7}
    build("f4_d.s", A, opts=("touch", "w2early", "g1defer"), esched=e7, **base)
    build("f4_e.s", A, opts=("touch", "w2early", "rflag", "g1defer"), esched=e7, **base)
    build("f4_f.s", A, opts=("touch", "w2early", "wlate", "g1defer"), esched=e7, **base)
```

```python
from roles import *
import roles

STMAP = {}
def sn(k, name):
    if name in STMAP: stamp(k, STMAP[name])
    if name + "#" in STMAP:
        i = STMAP[name + "#"]
        k(f"s_memtime s[{S_STAMP+2*i}:{S_STAMP+2*i+1}]")

def pro_issue(k):
    k("s_load_dwordx4 s[4:7], s[0:1], 0")
    k("s_load_dwordx2 s[8:9], s[0:1], 16")
    k("s_load_dwordx8 s[12:19], s[0:1], 32")
    k("s_load_dwordx8 s[20:27], s[0:1], 64")
    k("v_lshrrev_b32 v1, 6, v0")
    k("v_and_b32 v0, 63, v0")
    k("v_readfirstlane_b32 s3, v1")

def pro_wait(k):
    k("s_waitcnt lgkmcnt(0)")
    k.srd(SRD_WS, S_PWS, S_PWS + 1, WS_SIZE)

W2DMA = 240

def fin_regs():
    R = final_regs()
    R["dma"] = W2DMA
    return R

def fin_setup_pre(k, s_db, R, vT):
    k("s_and_b32 s64, s3, 1")
    k("s_lshr_b32 s65, s3, 1")
    k(f"v_lshrrev_b32 v{vT}, 3, v0")
    k(f"v_bfe_u32 v{vT+1}, v0, 4, 1")
    k(f"v_lshlrev_b32 v{vT+1}, 2, v{vT+1}")
    k(f"v_and_b32 v{vT+2}, 7, v0")
    k(f"v_xor_b32 v{vT+1}, v{vT+1}, v{vT+2}")
    k(f"v_lshlrev_b32 v{vT+1}, 4, v{vT+1}")
    k(f"v_lshl_add_u32 v{R['dma']}, v{vT}, 10, v{vT+1}")
    k("s_mul_i32 s66, s65, 352")
    k("s_lshl_b32 s67, s64, 4")
    k("s_add_u32 s66, s66, s67")
    k("s_lshl_b32 s66, s66, 10")
    k(f"s_lshl_b32 s67, {s_db}, 7")
    k("s_add_u32 s66, s66, s67")
    k("s_lshl_b32 s68, s65, 12")
    k("s_lshl_b32 s67, s64, 11")
    k("s_add_u32 s68, s68, s67")

def fin_srd(k):
    k.srd(SRD_C, S_PW2, S_PW2 + 1, 1376 * 1024)

def w2_piece(k, vm, R, j, ii, slot=None):
    slot = j if slot is None else slot
    k(f"s_add_u32 m0, s68, {slot*16384 + ii*1024}")
    k(f"s_add_u32 s67, s66, {j*32768 + ii*8192}")
    vm.issue(f"buffer_load_dwordx4 v{R['dma']}, s[{SRD_C}:{SRD_C+3}], s67 offen lds", f"w2_{j}")

def gemm1b(k, s_cls, s_fb, R, vm, rot=True, w2=True, post_issue=None, pre_epi=None, sc1=True, mid=None, D=3, spread=(1,1,1,1), obar=True, defer=False, inloop=4):
    SX, SW, SB = SRD_A, SRD_B, SRD_D
    vXo = [2, 3]; vWo = [4, 5]
    vBa = 6; vAa = 18; vT = 24
    vB = 32; vA = 48; ACC = 80
    vBias = 112
    vE = 128
    k.c("x dma offsets")
    k("s_lshl_b32 s50, s3, 1")
    for i in range(2):
        k(f"v_lshrrev_b32 v{vT}, 3, v0")
        k(f"s_add_u32 s51, s50, {i}")
        k(f"s_lshl_b32 s51, s51, 3")
        k(f"v_add_u32 v{vT}, s51, v{vT}")
        k(f"v_lshlrev_b32 v{vT}, 14, v{vT}")
        k(f"v_lshrrev_b32 v{vT+1}, 4, v0")
        if i: k(f"v_add_u32 v{vT+1}, {4*i}, v{vT+1}")
        k(f"v_and_b32 v{vT+2}, 7, v0")
        k(f"v_xor_b32 v{vT+1}, v{vT+1}, v{vT+2}")
        k(f"v_lshl_add_u32 v{vT}, v{vT+1}, 4, v{vT}")
        k(f"s_lshl_b32 s51, {s_cls}, 10")
        k(f"v_add_u32 v{vXo[i]}, s51, v{vT}")
    k.c("w1 dma offsets")
    k(f"v_lshrrev_b32 v{vT}, 4, v0")
    k(f"v_lshlrev_b32 v{vT+1}, 2, v{vT}")
    k(f"v_and_b32 v{vT+2}, 15, v0")
    k(f"v_xor_b32 v{vT+1}, v{vT+1}, v{vT+2}")
    k(f"v_lshlrev_b32 v{vT+1}, 4, v{vT+1}")
    k(f"s_lshl_b32 s52, {s_fb}, 8")
    k(f"v_add_u32 v{vT+1}, s52, v{vT+1}")
    k(f"v_min_u32 v{vT+1}, {2752-16}, v{vT+1}")
    for i in range(2):
        k(f"s_add_u32 s51, s50, {i}")
        k(f"s_lshl_b32 s51, s51, 2")
        k(f"v_add_u32 v{vT+3}, s51, v{vT}")
        k(f"v_mul_u32_u24 v{vT+3}, 2752, v{vT+3}")
        k(f"v_add_u32 v{vWo[i]}, v{vT+3}, v{vT+1}")
    k("s_lshl_b32 s48, s3, 11")
    k("s_add_u32 s49, s48, 16384")
    if rot in (1, 2):
        k(f"s_and_b32 s59, {s_cls}, 1")
        k("s_lshl_b32 s59, s59, 2")
        k(f"s_add_u32 s59, s59, {s_fb}")
        if rot == 2: k("s_add_u32 s59, s59, s72")
    elif rot == 3:
        k("s_mov_b32 s59, s72")
    elif rot == 4:
        k(f"s_and_b32 s59, {s_cls}, 1")
        k("s_lshl_b32 s59, s59, 2")
        k("s_add_u32 s59, s59, s72")
    else:
        k("s_mov_b32 s59, 0")
    k.c("bias voffset: lanes<32: f = fb*128 + 64mh + 32e + l ; lanes >= 32 out of range -> 0")
    k("s_lshr_b32 s54, s3, 2")
    k("s_lshl_b32 s55, s54, 7")
    k(f"s_lshl_b32 s52, {s_fb}, 8")
    k("s_add_u32 s55, s55, s52")
    k(f"v_lshl_add_u32 v{vT+7}, v0, 1, s55")
    k("v_cmp_gt_u32 vcc, 32, v0")
    k(f"v_mov_b32 v{vT+6}, 0x10000")
    k(f"v_cndmask_b32 v{vT+7}, v{vT+6}, v{vT+7}, vcc")
    k(f"v_mov_b32 v{vT+6}, 0x3f80")
    k(f"v_cndmask_b32 v{vBias+8}, 0, v{vT+6}, vcc")
    for r in (1, 2, 3, 5, 6, 7, 9, 10, 11): k(f"v_mov_b32 v{vBias+r}, 0")
    def dma_list(c):
        slot = c % 5
        out = []
        def mk(kind, i):
            def f():
                if i == 0:
                    k(f"s_add_u32 s52, s59, {c}")
                    k("s_and_b32 s52, s52, 7")
                    if kind == "x": k("s_lshl_b32 s53, s52, 7")
                    else: k(f"s_mul_i32 s53, s52, {64*2752}")
                if kind == "x":
                    k(f"s_add_u32 m0, s48, {slot*32768 + i*1024}")
                    vm.issue(f"buffer_load_dwordx4 v{vXo[i]}, s[{SX}:{SX+3}], s53 offen lds", f"g{c}")
                else:
                    k(f"s_add_u32 m0, s49, {slot*32768 + i*1024}")
                    vm.issue(f"buffer_load_dwordx4 v{vWo[i]}, s[{SW}:{SW+3}], s53 offen lds", f"g{c}")
            return f
        return [mk("x", 0), mk("x", 1), mk("w", 0), mk("w", 1)]
    pro_wait(k)
    sn(k, "g_ka")
    k.srd(SX, S_PX, S_PX + 1, 2048 * 512 * 2)
    k.srd(SW, S_PW1, S_PW1 + 1, 512 * 1376 * 2)
    for f in dma_list(0): f()
    if obar: k("s_barrier")
    for f in dma_list(1): f()
    sn(k, "g_iss1")
    if post_issue: post_issue()
    k.c("LDS read addresses")
    k(f"s_and_b32 s56, s3, 3")
    k(f"s_lshl_b32 s57, s56, 12")
    k(f"v_and_b32 v{vT}, 31, v0")
    k(f"v_lshrrev_b32 v{vT+1}, 1, v{vT}")
    k(f"v_and_b32 v{vT+1}, 7, v{vT+1}")
    k(f"v_lshrrev_b32 v{vT+2}, 5, v0")
    k(f"v_xor_b32 v{vT+1}, v{vT+1}, v{vT+2}")
    k(f"v_lshlrev_b32 v{vT}, 7, v{vT}")
    k(f"v_add_u32 v{vT}, s57, v{vT}")
    for ks in range(4):
        k(f"v_xor_b32 v{vT+2}, {2*ks}, v{vT+1}")
        k(f"v_lshl_add_u32 v{vBa+ks}, v{vT+2}, 4, v{vT}")
        k(f"v_add_u32 v{vBa+4+ks}, 0x10000, v{vBa+ks}")
        k(f"v_add_u32 v{vBa+8+ks}, 0x20000, v{vBa+ks}")
    k(f"v_bfe_u32 v{vT}, v0, 2, 2")
    k(f"v_lshrrev_b32 v{vT+1}, 5, v0")
    k(f"v_lshl_add_u32 v{vT+1}, v{vT+1}, 3, v{vT}")
    k(f"v_lshlrev_b32 v{vT+1}, 8, v{vT+1}")
    k(f"v_bfe_u32 v{vT+2}, v0, 4, 1")
    k(f"v_bfe_u32 v{vT+3}, v0, 1, 1")
    k(f"v_lshl_add_u32 v{vT+2}, v{vT+2}, 1, v{vT+3}")
    k(f"v_and_b32 v{vT+3}, 1, v0")
    k(f"v_lshlrev_b32 v{vT+3}, 3, v{vT+3}")
    k(f"v_add3_u32 v{vT+1}, v{vT+1}, v{vT+3}, 0")
    k(f"v_add_u32 v{vT+1}, 16384, v{vT+1}")
    for e in range(2):
        k(f"s_lshl_b32 s58, s54, 1")
        k(f"s_add_u32 s58, s58, {e}")
        k(f"v_xor_b32 v{vT+4}, s58, v{vT}")
        k(f"v_lshl_add_u32 v{vT+4}, v{vT+4}, 2, v{vT+2}")
        k(f"v_lshl_add_u32 v{vAa+e}, v{vT+4}, 4, v{vT+1}")
        k(f"v_add_u32 v{vAa+2+e}, 0x10000, v{vAa+e}")
        k(f"v_add_u32 v{vAa+4+e}, 0x20000, v{vAa+e}")
    def reads(c, ks):
        slot = c % 5
        grp = slot // 2; so = (slot % 2) * 32768
        k(f"ds_read_b128 v[{vB+4*ks}:{vB+4*ks+3}], v{vBa+4*grp+ks} offset:{so}")
        for e in range(2):
            for h in range(2):
                r = vA + e*16 + ks*4 + h*2
                k(f"ds_read_b64_tr_b16 v[{r}:{r+1}], v{vAa+2*grp+e} offset:{so + ks*4096 + h*1024}")
    def mfe(ks, e, first=False):
        c = "0" if first else f"v[{ACC+16*e}:{ACC+16*e+15}]"
        k(f"v_mfma_f32_32x32x16_bf16 v[{ACC+16*e}:{ACC+16*e+15}], v[{vA+e*16+ks*4}:{vA+e*16+ks*4+3}], v[{vB+4*ks}:{vB+4*ks+3}], {c}")
    k.srd(SB, S_PB1, S_PB1 + 1, 1376 * 2)
    for e in range(2):
        vm.issue(f"buffer_load_ushort v{vBias+4*e}, v{vT+7}, s[{SB}:{SB+3}], 0 offen offset:{e*64}", "bias")
    for c in range(2, D):
        if obar: k("s_barrier")
        for f in dma_list(c): f()
    sn(k, "g_issued")
    vm.wait("g0")
    k("s_barrier")
    sn(k, "g_c0")
    reads(0, 0); reads(0, 1)
    pend = []
    def popn(n):
        for _ in range(n):
            if pend: pend.pop(0)()
    w2q = [(6, 7), (8, 9), (0, 1), (2, 3)] if w2 else []
    def sched(c):
        n = c + D + 1
        if n < 8: return dma_list(n)
        if not w2q or len(w2q) <= 4 - inloop: return []
        j0 = w2q[0][0]; slot = j0 // 2
        laststep = slot + 5 if slot + 5 < 8 else slot
        if laststep > c: return []
        pr = w2q.pop(0)
        return [(lambda j=j, ii=ii: w2_piece(k, vm, R, j, ii)) for j in pr for ii in range(2)]
    pend += sched(-1)
    popn(4)
    for c in range(8):
        k.c(f"step {c}")
        for ks in range(4):
            if ks < 3:
                k("s_waitcnt lgkmcnt(5)")
                mfe(ks, 0, first=(c == 0 and ks == 0))
                if ks < 2: reads(c, ks + 2)
                mfe(ks, 1, first=(c == 0 and ks == 0))
                popn(spread[ks + 1] if ks < 2 else 4)
                if ks == 2:
                    assert not pend
                    k("s_waitcnt lgkmcnt(0)")
                    if c < 7:
                        vm.wait(f"g{c+1}")
                        k("s_barrier")
                        sn(k, f"g_b{c}")
                        pend += sched(c)
                    if c == 1:
                        vm.wait("bias")
                        for e in range(2):
                            k(f"v_mfma_f32_32x32x16_bf16 v[{ACC+16*e}:{ACC+16*e+15}], v[{vBias+4*e}:{vBias+4*e+3}], v[{vBias+8}:{vBias+11}], v[{ACC+16*e}:{ACC+16*e+15}]")
            else:
                mfe(3, 0)
                if c < 7: reads(c + 1, 0)
                mfe(3, 1)
                if c < 7: reads(c + 1, 1)
                popn(spread[0])
        if mid: mid(c)
    while w2q and not defer:
        pr = w2q.pop(0)
        for j in pr:
            for ii in range(2): w2_piece(k, vm, R, j, ii)
    sn(k, "g_loop")
    if pre_epi: pre_epi()
    k.c("epilogue: gelu + store")
    k(f"s_mov_b32 s60, {f2u(GELU_C0):#x}")
    k(f"s_mov_b32 s62, {f2u(GELU_C1):#x}")
    k(f"s_mov_b32 s63, s62")
    k(f"v_mov_b32 v{vT+6}, s60")
    k(f"v_mov_b32 v{vT+7}, s60")
    k(f"s_mul_i32 s57, {s_cls}, {H_CLS}")
    k(f"s_mul_i32 s58, s56, {43*2048}")
    k(f"s_add_u32 s57, s57, s58")
    k(f"s_lshl_b32 s55, {s_fb}, 2")
    k(f"s_lshl_b32 s58, s54, 1")
    k(f"s_add_u32 s55, s55, s58")
    k(f"s_lshl_b32 s58, s55, 11")
    k(f"s_add_u32 s57, s57, s58")
    if H_OFF: k(f"s_add_u32 s57, s57, {H_OFF}")
    k(f"v_lshlrev_b32 v{vT}, 4, v0")
    fl = " sc1" if sc1 else ""
    for e in range(2):
        Lskip = k.newlabel("g1skip")
        k(f"s_cmp_ge_u32 s55, {43 - e}")
        k(f"s_cbranch_scc1 {Lskip}")
        for stp in range(2):
            a = ACC + 16*e + 8*stp
            E = vE + (e*2+stp)*16
            P = vE + 64 + (e*2+stp)*4
            for p in range(4):
                u = a + 2*p; t = E + 2*p
                k(f"v_pk_mul_f32 v[{t}:{t+1}], v[{u}:{u+1}], v[{u}:{u+1}]")
            for p in range(4):
                t = E + 2*p
                k(f"v_pk_fma_f32 v[{t}:{t+1}], v[{t}:{t+1}], s[62:63], v[{vT+6}:{vT+7}]")
            for p in range(4):
                u = a + 2*p; t = E + 2*p
                k(f"v_pk_mul_f32 v[{t}:{t+1}], v[{t}:{t+1}], v[{u}:{u+1}]")
            for p in range(8): k(f"v_exp_f32 v{E+p}, v{E+p}")
            for p in range(4):
                t = E + 2*p
                k(f"v_pk_add_f32 v[{t}:{t+1}], v[{t}:{t+1}], 1.0 op_sel_hi:[1,0]")
            for p in range(8): k(f"v_rcp_f32 v{E+p}, v{E+p}")
            for p in range(4):
                u = a + 2*p; t = E + 2*p
                k(f"v_pk_mul_f32 v[{t}:{t+1}], v[{t}:{t+1}], v[{u}:{u+1}]")
            for p in range(4):
                k(f"v_cvt_pk_bf16_f32 v{P+p}, v{E+2*p}, v{E+2*p+1}")
            k(f"buffer_store_dwordx4 v[{P}:{P+3}], v{vT}, s[{SRD_WS}:{SRD_WS+3}], s57 offen offset:{e*2048+stp*1024}{fl}")
        k.label(Lskip)
    return w2q


def p2_nq(k, R):
    k(f"v_and_b32 v{R['n']}, 15, v0")
    k(f"v_lshrrev_b32 v{R['q']}, 4, v0")

def p2_wload_row(k, vm, s_task, R, row, AB, vT):
    SWR, SWI = R["srdw"]
    W = R["W"]; WX = R["WX"]; vN, vQ = R["n"], R["q"]
    k(f"v_lshlrev_b32 v{vT}, 1, v{vN}")
    k(f"v_lshl_add_u32 v{vT}, v{vQ}, 8, v{vT}")
    k(f"v_sub_u32 v{vT+1}, 1024, v{vT}")
    k(f"v_cmp_gt_u32 vcc, 32, v0")
    k(f"v_mov_b32 v{vT+2}, -32")
    k(f"v_mov_b32 v{vT+3}, 32")
    k(f"v_cndmask_b32 v{vT+2}, v{vT+2}, v{vT+3}, vcc")
    k(f"v_and_b32 v{vT+3}, 31, v0")
    k(f"v_cmp_eq_u32 s[62:63], 0, v{vT+3}")
    k(f"s_lshl_b32 s50, s3, 1")
    k(f"s_add_u32 s50, s50, {row}")
    k(f"s_lshl_b32 s50, s50, 7")
    k(f"s_add_u32 s50, s50, {s_task}")
    k(f"s_sub_u32 s51, 2048, s50")
    k(f"s_and_b32 s51, s51, 2047")
    k(f"s_mul_i32 s50, s50, 514")
    k(f"s_mul_i32 s51, s51, 514")
    k(f"v_add_u32 v{vT+4}, s50, v{vT}")
    k(f"v_add_u32 v{vT+5}, s51, v{vT+1}")
    k(f"v_cndmask_b32 v{vT+4}, v{vT+5}, v{vT+4}, vcc")
    k(f"s_add_u32 s52, s50, 512")
    k(f"v_mov_b32 v{vT+5}, s52")
    k(f"v_mov_b32 v{vT+6}, s51")
    k(f"v_cndmask_b32 v{vT+5}, v{vT+5}, v{vT+6}, vcc")
    k(f"v_cndmask_b32 v{vT+5}, v{vT+4}, v{vT+5}, s[62:63]")
    for m in range(1, 8):
        k(f"v_mad_i32_i24 v{AB+m}, v{vT+2}, {m}, v{vT+4}")
    for t in range(2):
        for i in range(4):
            m = t + 2 * i
            a = vT + 4 if m == 0 else AB + m
            vm.issue(f"buffer_load_ushort v{W+16*row+8*t+i}, v{a}, s[{SWR}:{SWR+3}], 0 offen", f"W{row}")
            vm.issue(f"buffer_load_ushort v{W+16*row+8*t+4+i}, v{a}, s[{SWI}:{SWI+3}], 0 offen", f"W{row}")
    vm.issue(f"buffer_load_ushort v{WX+2*row}, v{vT+5}, s[{SWR}:{SWR+3}], 0 offen", f"W{row}")
    vm.issue(f"buffer_load_ushort v{WX+2*row+1}, v{vT+5}, s[{SWI}:{SWI+3}], 0 offen", f"W{row}")

def p2_wsrd(k, R):
    SWR, SWI = R["srdw"]
    k.srd(SWR, S_PWR, S_PWR + 1, 2048 * 514)
    k.srd(SWI, S_PWI, S_PWI + 1, 2048 * 514)

def p1b(k, vm, s_s2, s_db, lb, after_issue=None, after_mfma=None, sc1=True):
    SX, SG = SRD_A, SRD_B
    fl = " sc1" if sc1 else ""
    vT = 2
    vGW = 20
    vCB = 36
    vQ = 36
    vR = 68
    vAa = 84
    vXo = 86
    ACC = 144
    vAng = 144
    vA = 176
    k.c("x DMA address")
    k(f"v_lshrrev_b32 v{vT}, 4, v0")
    k(f"v_lshlrev_b32 v{vT+1}, 2, v{vT}")
    k(f"v_and_b32 v{vT+2}, 15, v0")
    k(f"v_xor_b32 v{vT+1}, v{vT+1}, v{vT+2}")
    k(f"v_lshlrev_b32 v{vT+1}, 4, v{vT+1}")
    k(f"v_lshl_add_u32 v{vXo}, v{vT}, 14, v{vT+1}")
    k(f"s_lshl_b32 s50, {s_s2}, 10")
    k(f"s_lshl_b32 s51, {s_db}, 8")
    k(f"s_add_u32 s50, s50, s51")
    k(f"s_lshl_b32 s51, s3, 18")
    k(f"s_add_u32 s50, s50, s51")
    k(f"s_lshl_b32 s52, s3, 12")
    if lb: k(f"s_add_u32 s52, s52, {lb}")
    k(f"v_and_b32 v{vT}, 3, v0")
    k(f"v_lshlrev_b32 v{vT}, 6, v{vT}")
    pro_wait(k)
    sn(k, "f_ka")
    k.srd(SX, S_PX, S_PX + 1, 2048 * 512 * 2)
    for i in range(4):
        k(f"s_add_u32 m0, s52, {i*1024}")
        k(f"s_add_u32 s53, s50, {i*4*16384}")
        vm.issue(f"buffer_load_dwordx4 v{vXo}, s[{SX}:{SX+3}], s53 offen lds", "x")
    k.srd(SG, S_PGW, S_PGW + 1, 1024)
    k(f"s_lshl_b32 s51, {s_db}, 8")
    for e in range(4):
        vm.issue(f"buffer_load_dwordx4 v[{vGW+4*e}:{vGW+4*e+3}], v{vT}, s[{SG}:{SG+3}], s51 offen offset:{16*e}", "gw")
    if after_issue: after_issue()
    sn(k, "f_iss")
    k.c("B constants")
    k("s_and_b32 s54, s3, 3")
    k("s_lshr_b32 s55, s3, 2")
    k(f"v_bfe_u32 v{vT}, v0, 1, 4")
    k("s_lshl_b32 s56, s54, 4")
    k(f"v_add_u32 v{vT}, s56, v{vT}")
    k(f"v_cvt_f32_u32 v{vT+1}, v{vT}")
    k(f"v_mul_f32 v{vT+2}, {fhex(1/128)}, v{vT+1}")
    k(f"v_cvt_f32_u32 v{vT+3}, {s_s2}")
    k(f"v_mul_f32 v{vT+3}, {fhex(1/2048)}, v{vT+3}")
    k(f"v_mul_f32 v{vT+3}, v{vT+3}, v{vT+1}")
    k(f"v_and_b32 v{vT+4}, 1, v0")
    k(f"v_cvt_f32_u32 v{vT+5}, v{vT+4}")
    k(f"v_fmac_f32 v{vT+3}, 0.25, v{vT+5}")
    k(f"v_lshl_or_b32 v{vT+6}, v{vT}, 1, v{vT+4}")
    k(f"v_cmp_eq_u32 vcc, 1, v{vT+6}")
    k(f"v_mov_b32 v{vT+7}, 0.5")
    k(f"v_cndmask_b32 v{vT+2}, v{vT+2}, v{vT+7}, vcc")
    k(f"v_mov_b32 v{vT+7}, 0")
    k(f"v_cndmask_b32 v{vT+3}, v{vT+3}, v{vT+7}, vcc")
    k(f"v_lshrrev_b32 v{vT+4}, 5, v0")
    k(f"v_lshlrev_b32 v{vT+4}, 3, v{vT+4}")
    k(f"v_cvt_f32_u32 v{vT+4}, v{vT+4}")
    k(f"v_fmac_f32 v{vT+3}, v{vT+4}, v{vT+2}")
    vD, vA0 = vT + 2, vT + 3
    for t in range(8):
        an = vAng + 8 * (t & 1)
        for j in range(8):
            kk = 16 * t + j
            if kk == 0: k(f"v_mov_b32 v{an+j}, v{vA0}")
            else: k(f"{FM} v{an+j}, v{vD}, {fhex(float(kk))}, v{vA0}")
        for j in range(8): k(f"v_cos_f32 v{an+j}, v{an+j}")
        for j in range(4): k(f"v_cvt_pk_bf16_f32 v{vCB+4*t+j}, v{an+2*j}, v{an+2*j+1}")
    k.c("A frag addresses")
    k(f"v_bfe_u32 v{vT}, v0, 2, 2")
    k(f"v_lshrrev_b32 v{vT+1}, 5, v0")
    k(f"v_lshl_add_u32 v{vT+1}, v{vT+1}, 3, v{vT}")
    k(f"v_lshlrev_b32 v{vT+1}, 8, v{vT+1}")
    k(f"v_bfe_u32 v{vT+4}, v0, 4, 1")
    k(f"v_bfe_u32 v{vT+5}, v0, 1, 1")
    k(f"v_lshl_add_u32 v{vT+4}, v{vT+4}, 1, v{vT+5}")
    k(f"v_and_b32 v{vT+5}, 1, v0")
    k(f"v_lshl_add_u32 v{vT+1}, v{vT+5}, 3, v{vT+1}")
    if lb: k(f"v_add_u32 v{vT+1}, {lb}, v{vT+1}")
    for e in range(2):
        k(f"s_lshl_b32 s58, s55, 1")
        k(f"s_add_u32 s58, s58, {e}")
        k(f"v_xor_b32 v{vT+6}, s58, v{vT}")
        k(f"v_lshl_add_u32 v{vT+6}, v{vT+6}, 2, v{vT+4}")
        k(f"v_lshl_add_u32 v{vAa+e}, v{vT+6}, 4, v{vT+1}")
    sn(k, "f_const")
    vm.wait("x")
    k("s_barrier")
    sn(k, "f_x")
    def rd(t):
        for e in range(2):
            for h in range(2):
                r = vA + e*32 + t*4 + h*2
                k(f"ds_read_b64_tr_b16 v[{r}:{r+1}], v{vAa+e} offset:{t*4096 + h*1024}")
    def mf(t):
        for e in range(2):
            c = "0" if t == 0 else f"v[{ACC+16*e}:{ACC+16*e+15}]"
            k(f"v_mfma_f32_32x32x16_bf16 v[{ACC+16*e}:{ACC+16*e+15}], v[{vA+e*32+t*4}:{vA+e*32+t*4+3}], v[{vCB+4*t}:{vCB+4*t+3}], {c}")
    rd(0); rd(1); rd(2)
    for t in range(8):
        if t + 3 < 8:
            k("s_waitcnt lgkmcnt(8)"); mf(t); rd(t + 3)
        else:
            k(f"s_waitcnt lgkmcnt({4*(7-t)})"); mf(t)
    if after_mfma: after_mfma()
    sn(k, "f_mf")
    k.c("pack, transpose through LDS")
    k(f"v_and_b32 v{vT}, 31, v0")
    k(f"s_lshl_b32 s58, s54, 5")
    k(f"v_add_u32 v{vT}, s58, v{vT}")
    k(f"v_mul_u32_u24 v{vT}, 272, v{vT}")
    k(f"v_lshrrev_b32 v{vT+1}, 5, v0")
    k(f"v_lshl_add_u32 v{vT}, v{vT+1}, 4, v{vT}")
    k(f"s_lshl_b32 s58, s55, 7")
    k(f"s_add_u32 s58, s58, {32768+lb}")
    k(f"v_add_u32 v{vT}, s58, v{vT}")
    for e in range(2):
        for g in range(4):
            for h in range(2):
                k(f"v_cvt_pk_bf16_f32 v{vQ+e*8+g*2+h}, v{ACC+16*e+4*g+2*h}, v{ACC+16*e+4*g+2*h+1}")
        for pr in range(2):
            q = vQ + e*8 + pr*4
            k(f"v_permlane32_swap_b32 v{q}, v{q+2}")
            k(f"v_permlane32_swap_b32 v{q+1}, v{q+3}")
            k(f"ds_write_b128 v{vT}, v[{q}:{q+3}] offset:{e*64 + pr*32}")
    k("s_waitcnt lgkmcnt(0)")
    k("s_barrier")
    k(f"v_lshrrev_b32 v{vT}, 4, v0")
    k(f"s_lshl_b32 s58, s3, 4")
    k(f"v_add_u32 v{vT+1}, s58, v{vT}")
    k(f"v_mul_u32_u24 v{vT+1}, 272, v{vT+1}")
    k(f"v_and_b32 v{vT+2}, 15, v0")
    k(f"v_lshl_add_u32 v{vT+1}, v{vT+2}, 4, v{vT+1}")
    k(f"v_add_u32 v{vT+1}, {32768+lb}, v{vT+1}")
    for i in range(4):
        k(f"ds_read_b128 v[{vR+4*i}:{vR+4*i+3}], v{vT+1} offset:{i*4*272}")
    k(f"v_lshrrev_b32 v{vT+3}, 1, v{vT}")
    k(f"v_lshlrev_b32 v{vT+3}, 15, v{vT+3}")
    k(f"v_and_b32 v{vT+4}, 1, v{vT}")
    k(f"v_lshl_add_u32 v{vT+3}, v{vT+4}, 10, v{vT+3}")
    k(f"v_lshl_add_u32 v{vT+3}, v{vT+2}, 4, v{vT+3}")
    k(f"s_lshl_b32 s58, s3, 18")
    k(f"s_lshl_b32 s59, {s_s2}, 11")
    k(f"s_add_u32 s58, s58, s59")
    k(f"s_lshl_b32 s59, {s_db}, 8")
    k(f"s_add_u32 s58, s58, s59")
    k(f"s_add_u32 s58, s58, {R_OFF}")
    k.c("gate partial reads")
    k(f"v_lshrrev_b32 v{vT+5}, 2, v0")
    k(f"s_lshl_b32 s59, s3, 4")
    k(f"v_add_u32 v{vT+5}, s59, v{vT+5}")
    k(f"v_and_b32 v{vT+6}, 3, v0")
    k(f"v_and_b32 v{vT+7}, 3, v{vT+5}")
    k(f"v_xor_b32 v{vT+6}, v{vT+6}, v{vT+7}")
    k(f"v_lshlrev_b32 v{vT+6}, 6, v{vT+6}")
    k(f"v_lshl_add_u32 v{vT+6}, v{vT+5}, 8, v{vT+6}")
    if lb: k(f"v_add_u32 v{vT+6}, {lb}, v{vT+6}")
    for e in range(4):
        k(f"ds_read_b128 v[{vA+4*e}:{vA+4*e+3}], v{vT+6} offset:{16*e}")
    for i in range(4):
        k(f"s_waitcnt lgkmcnt({7-i})")
        k(f"s_add_u32 s59, s58, {i*2*32768}")
        vm.issue(f"buffer_store_dwordx4 v[{vR+4*i}:{vR+4*i+3}], v{vT+3}, s[{SRD_WS}:{SRD_WS+3}], s59 offen{fl}", "Rst")
    k(f"v_mov_b32 v{vT+7}, 0")
    vm.wait("gw")
    k("s_waitcnt lgkmcnt(0)")
    for e in range(16):
        k(f"v_dot2_f32_bf16 v{vT+7}, v{vA+e}, v{vGW+e}, v{vT+7}")
    k(f"v_add_f32_dpp v{vT+7}, v{vT+7}, v{vT+7} quad_perm:[1,0,3,2] row_mask:0xf bank_mask:0xf")
    k(f"v_add_f32_dpp v{vT+7}, v{vT+7}, v{vT+7} quad_perm:[2,3,0,1] row_mask:0xf bank_mask:0xf")
    k(f"s_lshl_b32 s58, {s_db}, 4")
    k(f"s_add_u32 s58, s58, {s_s2}")
    k(f"s_lshl_b32 s58, s58, 9")
    k(f"s_add_u32 s58, s58, {GP_OFF}")
    k(f"v_lshlrev_b32 v{vT+5}, 2, v{vT+5}")
    k(f"v_and_b32 v{vT+6}, 3, v0")
    k(f"v_cmp_eq_u32 vcc, 0, v{vT+6}")
    k("s_and_saveexec_b64 s[60:61], vcc")
    vm.issue(f"buffer_store_dword v{vT+7}, v{vT+5}, s[{SRD_WS}:{SRD_WS+3}], s58 offen{fl}", "gp")
    k("s_mov_b64 exec, s[60:61]")
```

```python
from roles2 import *
import roles, roles2
from fused import (RF_OFF, TF_OFF, HF_OFF, SRD_DBG, NL, NH, VS, SPIN, FB, wave0, flag_store, poll)

DUMP_OFF = 0xD00000

def p2_regs3():
    R = p2_regs()
    R.update(e1w=228, e1r=229, e2w=230, e2r=231, t3=233)
    return R

def p2_addr3(k, s_task, R):
    roles.p2_addr(k, s_task, R)
    vT = R["T"]; vN, vQ = R["n"], R["q"]
    k.c("stage (v) variant: column n <-> d = 4n + r")
    k(f"v_lshrrev_b32 v{vT}, 2, v{vN}")
    k(f"s_lshl_b32 s50, s3, 2")
    k(f"v_add_u32 v{vT}, s50, v{vT}")
    k(f"v_mul_u32_u24 v{vT}, {roles.P2_PITCH}, v{vT}")
    k(f"v_lshl_add_u32 v{vT}, v{vQ}, 8, v{vT}")
    k(f"v_and_b32 v{vT+1}, 3, v0")
    k(f"v_lshl_add_u32 v{vT}, v{vT+1}, 5, v{vT}")
    k(f"v_add_u32 v{R['e2r']}, {roles.P2_E2}, v{vT}")
    k(f"v_lshlrev_b32 v{vT}, 19, v{vQ}")
    k(f"v_lshl_add_u32 v{vT}, v{vN}, 3, v{vT}")
    k(f"s_lshl_b32 s50, s3, 7")
    k(f"v_add_u32 v{R['t3']}, s50, v{vT}")

def p2_main3(k, s_task, R, vmf, hooks, sc1=True):
    H = lambda n: hooks[n]() if n in hooks else None
    fl = " sc1" if sc1 else ""
    FS, F16, A1, B5 = R["FS"], R["F16"], R["A1"], R["B5"]
    TW1C, TW1S, TW2C, TW2S = R["TW1C"], R["TW1S"], R["TW2C"], R["TW2S"]
    W = R["W"]; WA = R["work"]
    P2_PITCH = roles.P2_PITCH
    BF = WA; D = WA + 16; P = WA + 48; X = WA + 64
    def fs(t, g, cp): return FS + 6*(2*t+g) + (2 if cp == 0 else 0)
    def f16(cp): return F16 + (2 if cp == 0 else 0)
    def mf(d, a, b, c=None):
        cc = "0" if c is None else f"v[{c}:{c+3}]"
        return f"v_mfma_f32_16x16x32_bf16 v[{d}:{d+3}], v[{a}:{a+3}], v[{b}:{b+3}], {cc}"
    k.c("stage (i)")
    for dd in range(4):
        for c in range(2):
            r = BF + 4*dd + 2*c
            k(f"ds_read_b64_tr_b16 v[{r}:{r+1}], v{R['tr']+dd} offset:{c*1024}")
    for dd in range(4):
        k(f"s_waitcnt lgkmcnt({6-2*dd})")
        for cp in range(2):
            k(mf(D + 8*dd + 4*cp, A1 + 4*cp, BF + 4*dd))
    for i in range(4):
        for cp in range(2):
            for h in range(2):
                k(f"v_cvt_pk_bf16_f32 v{P+4*i+2*cp+h}, v{D+8*(2*h)+4*cp+i}, v{D+8*(2*h+1)+4*cp+i}")
        k(f"ds_write_b128 v{R['e1w']}, v[{P+4*i}:{P+4*i+3}] offset:{i*2048}")
    k("s_waitcnt lgkmcnt(0)")
    k("s_barrier")
    sn(k, "p_e1")
    k.c("step A")
    AF = WA
    for row in range(2):
        for g in range(2):
            r = AF + 8*row + 4*g
            k(f"ds_read_b128 v[{r}:{r+3}], v{R['e1r']} offset:{row*2048 + g*1024}")
    H("A")
    def d1(row, t, cp): return D + 16*row + 8*t + 4*cp
    def frag(row, t): return P + 8*row + 4*t
    def stepA(row):
        o = []
        for g in range(2):
            for t in range(2):
                for cp in range(2):
                    o.append(mf(d1(row, t, cp), AF + 8*row + 4*g, fs(t, g, cp), None if g == 0 else d1(row, t, cp)))
        return o
    def cmul(row, C, S, kind):
        o = []
        for t in range(2):
            re, im = d1(row, t, 0), d1(row, t, 1)
            x = X + 8*t
            c_, s_ = C(t), S(t)
            if kind == "tw":
                for i in range(4): o.append(f"v_mul_f32 v{x+i}, v{re+i}, v{c_+i}")
                for i in range(4): o.append(f"v_mul_f32 v{x+4+i}, v{im+i}, v{c_+i}")
                for i in range(4): o.append(f"v_fmac_f32 v{x+i}, v{im+i}, v{s_+i}")
                for i in range(4): o.append(f"v_fma_f32 v{x+4+i}, -v{re+i}, v{s_+i}, v{x+4+i}")
            else:
                for i in range(4): o.append(f"v_mul_f32 v{x+i}, v{re+i}, v{c_+i}")
                for i in range(4): o.append(f"v_mul_f32_e64 v{x+4+i}, -v{re+i}, v{s_+i}")
                for i in range(4): o.append(f"v_fma_f32 v{x+i}, -v{im+i}, v{s_+i}, v{x+i}")
                for i in range(4): o.append(f"v_fma_f32 v{x+4+i}, -v{im+i}, v{c_+i}, v{x+4+i}")
            f = frag(row, t)
            for h in range(2): o.append(f"v_cvt_pk_bf16_f32 v{f+h}, v{x+2*h}, v{x+2*h+1}")
            for h in range(2): o.append(f"v_cvt_pk_bf16_f32 v{f+2+h}, v{x+4+2*h}, v{x+4+2*h+1}")
        return o
    tw1 = lambda row: cmul(row, lambda t: TW1C + 4*t, lambda t: TW1S + 4*t, "tw")
    wm = lambda row: cmul(row, lambda t: W + 16*row + 8*t, lambda t: W + 16*row + 8*t + 4, "w")
    tw2 = lambda row: cmul(row, lambda t: TW2C + 4*t, lambda t: TW2S + 4*t, "tw")
    def stepB(row):
        return [mf(d1(row, t, cp), f16(cp), frag(row, t)) for t in range(2) for cp in range(2)]
    def stepBp(row):
        return [mf(d1(row, t, cp), frag(row, t), f16(cp)) for t in range(2) for cp in range(2)]
    def stepAp(row):
        o = []
        for t in range(2):
            for tp in range(2):
                for cp in range(2):
                    o.append(mf(d1(row, tp, cp), fs(tp, t, cp), frag(row, t), None if t == 0 else d1(row, tp, cp)))
        return o
    def emit(l):
        for x in l: k(x)
    k("s_waitcnt lgkmcnt(2)")
    emit(stepA(0))
    k("s_waitcnt lgkmcnt(0)")
    emit(interleave(stepA(1), tw1(0)))
    emit(interleave(stepB(0), tw1(1)))
    emit(interleave(stepB(1), wm(0)))
    emit(interleave(stepBp(0), wm(1)))
    H("W")
    emit(interleave(stepBp(1), tw2(0)))
    H("W2")
    emit(interleave(stepAp(0), tw2(1)))
    H("W3")
    emit(stepAp(1))
    sn(k, "p_ap")
    k.c("E2 write")
    for tp in range(2):
        for i in range(4):
            p = P + 2*(4*tp + i)
            k(f"v_cvt_pk_bf16_f32 v{p}, v{d1(0,tp,0)+i}, v{d1(1,tp,0)+i}")
            k(f"v_cvt_pk_bf16_f32 v{p+1}, v{d1(0,tp,1)+i}, v{d1(1,tp,1)+i}")
            k(f"ds_write_b64 v{R['e2w']}, v[{p}:{p+1}] offset:{(16*tp+i)*P2_PITCH}")
    H("B")
    k("s_waitcnt lgkmcnt(0)")
    k("s_barrier")
    sn(k, "p_e2")
    k.c("stage (v)")
    for r in range(4):
        k(f"ds_read2_b64 v[{AF+4*r}:{AF+4*r+3}], v{R['e2r']} offset0:{r} offset1:{r+16}")
    H("C")
    k(f"s_and_b32 s52, {s_task}, 63")
    k(f"s_lshl_b32 s50, s52, 11")
    k(f"s_lshr_b32 s51, {s_task}, 6")
    k(f"s_lshl_b32 s51, s51, 10")
    k(f"s_add_u32 s50, s50, s51")
    k(f"s_add_u32 s50, s50, {T3_OFF}")
    k(f"s_cmp_eq_u32 s52, 0")
    k(f"s_cselect_b32 s51, {DUMP_OFF}, s50")
    for r in range(4):
        k(f"s_waitcnt lgkmcnt({3-r})")
        for cp in range(2):
            k(mf(D + 8*r + 4*cp, B5 + 4*cp, AF + 4*r))
    H("V")
    vm = vmf()
    for i in range(4):
        for cp in range(2):
            p = P + 4*i + 2*cp
            for h in range(2):
                k(f"v_cvt_pk_bf16_f32 v{p+h}, v{D+8*(2*h)+4*cp+i}, v{D+8*(2*h+1)+4*cp+i}")
            if i: k(f"s_add_u32 s{52+cp}, s{50+cp}, {i*131072}")
            vm.issue(f"buffer_store_dwordx2 v[{p}:{p+1}], v{R['t3']}, s[{SRD_WS}:{SRD_WS+3}], s{(52 if i else 50)+cp} offen offset:{cp*1024}{fl}", "t3st")

def h_base(k, s_cls, s_hf):
    k(f"s_mul_i32 s70, {s_cls}, {H_CLS}")
    k(f"s_lshl_b32 s71, {s_hf}, 1")
    k("s_add_u32 s71, s71, s64")
    k(f"s_mul_i32 s71, s71, {43*2048}")
    k("s_add_u32 s70, s70, s71")
    k(f"s_mul_i32 s71, s65, {11*2048}")
    k("s_add_u32 s70, s70, s71")
    if H_OFF: k(f"s_add_u32 s70, s70, {H_OFF}")

def hreg(R, j):
    return R.get("hmap", {}).get(j, R["HB"] + 8*j)

def h_load(k, vm, R, j):
    HB = hreg(R, j) - 8*j
    if j == 10:
        k("s_cmp_eq_u32 s65, 3")
        k(f"s_mov_b32 s71, {10*2048}")
        k(f"s_cselect_b32 s71, {9*2048}, s71")
        k("s_add_u32 s71, s70, s71")
    else:
        k(f"s_add_u32 s71, s70, {j*2048}")
    for stp in range(2):
        vm.issue(f"buffer_load_dwordx4 v[{HB+8*j+4*stp}:{HB+8*j+4*stp+3}], v{R['h']}, s[{SRD_WS}:{SRD_WS+3}], s71 offen offset:{stp*1024}", f"h_{j}")

def flags_issue(k, nfl, s_off):
    k(f"v_min_u32 v{VS}, {nfl-1}, v0")
    k(f"v_lshlrev_b32 v{VS}, 3, v{VS}")
    k(f"buffer_load_dwordx2 v[{VS+2}:{VS+3}], v{VS}, s[{SRD_WS}:{SRD_WS+3}], {s_off} offen sc1")

def flags_check(k, s_off, s_cnt):
    Ll, Lok = k.newlabel("fchk"), k.newlabel("fok")
    k(f"s_mov_b32 {s_cnt}, {SPIN}")
    k.label(Ll)
    k("s_waitcnt vmcnt(0)")
    k(f"v_cmp_eq_u32 vcc, s{NL}, v{VS+2}")
    k(f"v_cmp_eq_u32 s[62:63], s{NH}, v{VS+3}")
    k("s_and_b64 vcc, vcc, s[62:63]")
    k("s_cmp_eq_u64 vcc, exec")
    k(f"s_cbranch_scc1 {Lok}")
    k(f"s_sub_u32 {s_cnt}, {s_cnt}, 1")
    k(f"s_cmp_eq_u32 {s_cnt}, 0")
    k(f"s_cbranch_scc1 {Lok}")
    k(f"buffer_load_dwordx2 v[{VS+2}:{VS+3}], v{VS}, s[{SRD_WS}:{SRD_WS+3}], {s_off} offen sc1")
    k(f"s_branch {Ll}")
    k.label(Lok)

def gemm2_run(k, vm, R, seq, first, after=None):
    AF, ACC = R["AF"], R["ACC"]
    def reads(idx, slot, stp):
        buf = AF + 8*(idx % 3)
        grp, so = slot // 4, (slot % 4) * 16384
        for e in range(2):
            for h in range(2):
                r = buf + 4*e + 2*h
                k(f"ds_read_b64_tr_b16 v[{r}:{r+1}], v{R['tr']+2*grp+e} offset:{so + stp*2048 + h*1024}")
    def mfm(idx, b, first=False):
        buf = AF + 8*(idx % 3)
        for e in range(2):
            c = "0" if first else f"v[{ACC+16*e}:{ACC+16*e+15}]"
            k(f"v_mfma_f32_32x32x16_bf16 v[{ACC+16*e}:{ACC+16*e+15}], v[{buf+4*e}:{buf+4*e+3}], v[{b}:{b+3}], {c}")
    n = len(seq)
    for a in range(min(2, n)): reads(seq[a][0], seq[a][1], seq[a][2])
    for a in range(n):
        idx, slot, stp, b, htag = seq[a]
        if a + 2 < n: reads(*seq[a + 2][:3])
        rem = min(2, n - 1 - a)
        if htag and stp == 0: vm.wait(htag)
        k(f"s_waitcnt lgkmcnt({4*rem})")
        mfm(idx, b, first and a == 0)
        if after and idx in after: after[idx]()

def gseq(R, js):
    return [(2*j + s, j, s, hreg(R, j) + 4*s, f"h_{j}") for j in js for s in range(2)]

def p2_consts_share(k, s_task, R, tbl):
    vT = R["T"]; vN, vQ = R["n"], R["q"]; WA = R["work"]
    FS, F16, A1, B5 = R["FS"], R["F16"], R["A1"], R["B5"]
    TW1C, TW1S, TW2C, TW2S = R["TW1C"], R["TW1S"], R["TW2C"], R["TW2S"]
    assert FS == 20
    nf, q4 = vT, vT + 1
    vA = vT + 8
    Lend = k.newlabel("cs_end")
    k("s_cmp_eq_u32 s3, 0")
    k(f"s_cbranch_scc1 {Lend}")
    k(f"v_cvt_f32_u32 v{nf}, v{vN}")
    k(f"v_lshlrev_b32 v{q4}, 2, v{vQ}")
    k(f"v_cvt_f32_u32 v{q4}, v{q4}")
    k(f"s_cmp_eq_u32 {s_task}, 64")
    k(f"s_cselect_b32 s54, 0x3f800000, 0")
    k(f"v_lshlrev_b32 v{vA}, 4, v0")
    k(f"v_add_u32 v{vA}, {tbl}, v{vA}")
    an = WA; cs = WA + 4; sn_ = WA + 8
    def pub(r0, n):
        for r in range(r0, r0 + n, 2):
            k(f"ds_write_b64 v{vA}, v[{r}:{r+1}] offset:{((r-20)>>2)*1024 + ((r-20)&2)*4}")
    def angles(vdelta, va0):
        for j in range(4):
            if j == 0: k(f"v_mov_b32 v{an}, v{va0}")
            elif j == 3: k(f"v_fmamk_f32 v{an+j}, v{vdelta}, {fhex(3.0)}, v{va0}")
            else: k(f"v_fma_f32 v{an+j}, v{vdelta}, {float(j)}, v{va0}")
    def cset(vdelta, va0, C01, C23, S01, S23):
        angles(vdelta, va0)
        for j in range(4): k(f"v_cos_f32 v{cs+j}, v{an+j}")
        for j in range(4): k(f"v_sin_f32 v{sn_+j}, v{an+j}")
        k(f"v_cvt_pk_bf16_f32 v{C01}, v{cs}, v{cs+1}")
        k(f"v_cvt_pk_bf16_f32 v{C23}, v{cs+2}, v{cs+3}")
        k(f"v_cvt_pk_bf16_f32 v{S01}, v{sn_}, v{sn_+1}")
        k(f"v_cvt_pk_bf16_f32 v{S23}, v{sn_+2}, v{sn_+3}")
    d, a0 = vT + 2, vT + 3
    Ls = {w: k.newlabel(f"cs{w}") for w in range(2, 8)}
    for w in range(2, 8):
        k(f"s_cmp_eq_u32 s3, {w}")
        k(f"s_cbranch_scc1 {Ls[w]}")
    k.c("wave 1: F32 sets")
    k(f"v_mul_f32 v{d}, {fhex(1/32)}, v{nf}")
    k(f"v_mul_f32 v{a0}, v{d}, v{q4}")
    cset(d, a0, FS + 2, FS + 3, FS + 4, FS + 5)
    k(f"v_xor_b32 v{FS}, 0x80008000, v{FS+4}")
    k(f"v_xor_b32 v{FS+1}, 0x80008000, v{FS+5}")
    k(f"v_and_b32 v{vT+4}, 1, v{vN}")
    k(f"v_mul_u32_u24 v{vT+4}, 0x8000, v{vT+4}")
    k(f"v_lshl_or_b32 v{vT+4}, v{vT+4}, 16, v{vT+4}")
    k(f"v_xor_b32 v{vT+5}, 0x80000000, v{vT+4}")
    for r in range(6):
        k(f"v_xor_b32 v{FS+6+r}, v{vT+4}, v{FS+r}")
        k(f"v_xor_b32 v{FS+12+r}, 0x80000000, v{FS+r}")
        k(f"v_xor_b32 v{FS+18+r}, v{vT+5}, v{FS+r}")
    pub(FS, 24)
    k(f"s_branch {Lend}")
    k.label(Ls[2])
    k.c("wave 2: F16, A1")
    k(f"v_mul_f32 v{d}, {fhex(1/16)}, v{nf}")
    k(f"v_mul_f32 v{a0}, v{d}, v{q4}")
    cset(d, a0, F16 + 2, F16 + 3, F16 + 4, F16 + 5)
    k(f"v_xor_b32 v{F16}, 0x80008000, v{F16+4}")
    k(f"v_xor_b32 v{F16+1}, 0x80008000, v{F16+5}")
    pub(F16, 6)
    k(f"v_fma_f32 v{d}, v{nf}, 2.0, s54")
    k(f"v_mul_f32 v{d}, {fhex(1/32)}, v{d}")
    k(f"v_mul_f32 v{a0}, v{d}, v{q4}")
    t0 = WA + 12
    cset(d, a0, t0, t0 + 1, t0 + 2, t0 + 3)
    k(f"v_xor_b32 v{t0+4}, 0x80008000, v{t0+2}")
    k(f"v_xor_b32 v{t0+5}, 0x80008000, v{t0+3}")
    L0, L64, Lj = k.newlabel("a1_0"), k.newlabel("a1_64"), k.newlabel("a1_j")
    C01, C23, S01, S23, N01, N23 = [f"v{t0+i}" for i in range(6)]
    def setA(vals):
        for r, x in enumerate(vals): k(f"v_mov_b32 v{A1+r}, {x}")
    k(f"s_cmp_eq_u32 {s_task}, 0"); k(f"s_cbranch_scc1 {L0}")
    k(f"s_cmp_eq_u32 {s_task}, 64"); k(f"s_cbranch_scc1 {L64}")
    setA([C01, C23, S01, S23, N01, N23, C01, C23]); k(f"s_branch {Lj}")
    k.label(L0); setA([C01, C23, 0, 0, N01, N23, 0, 0]); k(f"s_branch {Lj}")
    k.label(L64); setA([0, 0, C01, C23, 0, 0, N01, N23])
    k.label(Lj)
    pub(A1, 8)
    k(f"s_branch {Lend}")
    k.label(Ls[3])
    k.c("wave 3: B5: angle n(2u2+e)/32")
    k(f"v_mul_f32 v{d}, {fhex(1/16)}, v{nf}")
    k(f"v_mul_f32 v{a0}, s54, v{nf}")
    k(f"v_mul_f32 v{a0}, {fhex(1/32)}, v{a0}")
    k(f"v_fmac_f32 v{a0}, v{d}, v{q4}")
    cset(d, a0, B5, B5 + 2, B5 + 1, B5 + 3)
    k(f"v_mov_b32 v{B5+4}, v{B5+1}")
    k(f"v_xor_b32 v{B5+5}, 0x80008000, v{B5}")
    k(f"v_mov_b32 v{B5+6}, v{B5+3}")
    k(f"v_xor_b32 v{B5+7}, 0x80008000, v{B5+2}")
    pub(B5, 8)
    k(f"s_branch {Lend}")
    for t in range(2):
        k.label(Ls[4 + t])
        k.c(f"wave {4+t}: tw1 t={t}")
        k(f"v_add_f32 v{d}, {fhex(16.0*t)}, v{nf}" if t else f"v_mov_b32 v{d}, v{nf}")
        k(f"v_mul_f32 v{d}, {fhex(1/512)}, v{d}")
        k(f"v_mul_f32 v{a0}, v{d}, v{q4}")
        angles(d, a0)
        for j in range(4): k(f"v_cos_f32 v{TW1C+4*t+j}, v{an+j}")
        for j in range(4): k(f"v_sin_f32 v{TW1S+4*t+j}, v{an+j}")
        pub(TW1C + 4*t, 4); pub(TW1S + 4*t, 4)
        k(f"s_branch {Lend}")
    for t in range(2):
        k.label(Ls[6 + t])
        k.c(f"wave {6+t}: tw2 t={t}")
        k(f"s_and_b32 s55, {s_task}, 63")
        k(f"s_cmp_eq_u32 s55, 0")
        k(f"s_mov_b32 s56, {fhex(2.0**-19)}")
        k(f"s_cselect_b32 s55, {fhex(2.0**-20)}, s56")
        k(f"v_mul_f32 v{d}, {fhex(1/512)}, v{nf}")
        k(f"v_add_f32 v{a0}, {fhex(16.0*t)}, v{q4}" if t else f"v_mov_b32 v{a0}, v{q4}")
        k(f"v_mul_f32 v{a0}, v{a0}, v{d}")
        angles(d, a0)
        for j in range(4): k(f"v_cos_f32 v{cs+j}, v{an+j}")
        for j in range(4): k(f"v_sin_f32 v{sn_+j}, v{an+j}")
        for j in range(4): k(f"v_mul_f32 v{TW2C+4*t+j}, s55, v{cs+j}")
        for j in range(4): k(f"v_mul_f32 v{TW2S+4*t+j}, s55, v{sn_+j}")
        pub(TW2C + 4*t, 4); pub(TW2S + 4*t, 4)
        if t == 0: k(f"s_branch {Lend}")
    k.label(Lend)

def p2_consts_read(k, R, tbl):
    vA = R["T"] + 8
    k(f"v_lshlrev_b32 v{vA}, 4, v0")
    k(f"v_add_u32 v{vA}, {tbl}, v{vA}")
    for q in range(19):
        k(f"ds_read_b128 v[{20+4*q}:{23+4*q}], v{vA} offset:{q*1024}")
    k(f"ds_read_b64 v[96:97], v{vA} offset:{19*1024}")
```

```python
import fused4, sys
g = dict(D=2)
e7 = ((0,1,2),(3,4),(5,6),())
base = dict(g1=g, w56=True, nshadow=3, pos=(3,6,9))
fused4.build("f4_m1.s", None, opts=("touch", "w2early", "rflag", "g1defer"), esched=e7, **base)
fused4.build("f4_m2.s", None, opts=("touch", "w2early", "rflag"), esched=e7, **base)
fused4.build("f4_m3.s", None, opts=("touch", "w2early", "g1defer"), esched=e7, **base)
```

```python
import roles, roles2, sys
from roles2 import *
from roles3 import *
import roles3
from fused import (NAME, RF_OFF, TF_OFF, HF_OFF, SRD_DBG, NL, NH, VS, SPIN, FB, wave0, nonce_publish, nonce_issue, nonce_check,
                   flag_store, poll, dbg_stamps)

def wave0not(k):
    L = k.newlabel("w0only")
    k("s_cmp_eq_u32 s3, 0")
    k(f"s_cbranch_scc1 {L}")
    return L

def build(fn, stmap=None, dbg=False, rot=4, g1=None, opts=(), dbrot=0, esched=((0,1,2),(3,4),(),()), w56=False, nshadow=3, pos=(3, 6, 9), fiss_at='A', fchk_at='W'):
    nearly = sum(len(e) for e in esched)
    st = stmap is not None
    roles2.STMAP.clear()
    if st: roles2.STMAP.update(stmap)
    k = K()
    k("s_cmp_ge_u32 s2, 256")
    k("s_cbranch_scc1 L_end")
    if st: stamps_clear(k); stamp(k, 0)
    pro_issue(k)
    k("s_and_b32 s72, s2, 7")
    k("s_lshr_b32 s73, s2, 3")
    k(f"s_add_u32 s76, s73, {dbrot}")
    k("s_and_b32 s76, s76, 7")
    k("s_lshr_b32 s74, s73, 3")
    k("s_lshl_b32 s75, s72, 2")
    k("s_add_u32 s75, s75, s74")
    k("s_lshr_b32 s74, s75, 1")
    k("s_and_b32 s75, s75, 1")
    R = fin_regs()
    fin_setup_pre(k, "s76", R, 232)
    k("s_cmp_ge_u32 s73, 22")
    k("s_cbranch_scc1 L_notg1")
    k("s_and_b32 s70, s73, 1")
    k("s_lshl_b32 s71, s72, 1")
    k("s_add_u32 s70, s70, s71")
    k("s_lshr_b32 s71, s73, 1")
    vm = VM(k)
    def post():
        fin_srd(k)
        k.srd(SRD_DBG, S_PDBG, S_PDBG + 1, 256)
        nonce_publish(k)
    left = gemm1b(k, "s70", "s71", R, vm, rot=rot, post_issue=post, pre_epi=lambda: nonce_issue(k), defer=("g1defer" in opts), **(g1 or {}))
    sn(k, "st1")
    nlate = 0
    if "g1defer" in opts and "g1post" not in opts:
        for pr in left:
            for j in pr:
                for ii in range(2): w2_piece(k, vm, R, j, ii); nlate += 1
    final_addr(k, "s74", "s75", "s76", R)
    final_small_loads(k, vm, "s74", R)
    k(f"s_waitcnt vmcnt({nlate + 1 if 'g1defer' in opts else 0})")
    k("s_barrier")
    L = wave0(k)
    nonce_check(k)
    def a():
        k("s_lshl_b32 s48, s70, 9")
        k("s_lshl_b32 s49, s71, 3")
        k("s_add_u32 s48, s48, s49")
        k(f"s_add_u32 s48, s48, {HF_OFF}")
        k(f"v_lshl_add_u32 v{VS}, v0, 8, s48")
    flag_store(k, 2, a)
    k.label(L)
    sn(k, "st2")
    if "g1post" in opts:
        for pr in left:
            for j in pr:
                for ii in range(2): w2_piece(k, vm, R, j, ii)
    for j in (4, 5):
        for ii in range(2): w2_piece(k, vm, R, j, ii)
    k("s_branch L_final")
    k.label("L_notg1")
    k("s_cmp_ge_u32 s73, 30")
    k("s_cbranch_scc1 L_nop1")
    k("s_sub_u32 s77, s73, 22")
    k("s_and_b32 s70, s77, 1")
    k("s_lshl_b32 s71, s72, 1")
    k("s_add_u32 s70, s70, s71")
    k("s_lshr_b32 s71, s77, 1")
    k("s_lshl_b32 s77, s77, 3")
    k("s_add_u32 s77, s77, s72")
    roles.P2_PITCH = 1032; roles.P2_E1 = FB; roles.P2_SLAB = FB + 32768; roles.P2_E2 = FB + 32768
    R2 = p2_regs3(); R2["srdw"] = (SRD_C, SRD_D)
    vm = VM(k)
    p2_nq(k, R2)
    def wshuf():
        if "ws3" in opts: w_shuffle3(k, R2, "s77", 148, 2)
        elif "ws2" in opts: w_shuffle2(k, R2, "s77", 148, 2)
        else: w_shuffle(k, R2, "s77", 87, 2)
    def wraw(vm):
        if "ws3" in opts: w_raw3(k, vm, "s77", R2, 4)
        else: w_raw_load(k, vm, "s77", R2, 4)
    def ai():
        p2_wsrd(k, R2)
        p2_wload_row(k, vm, "s77", R2, 0, 88, 4)
        k.srd(SRD_DBG, S_PDBG, S_PDBG + 1, 256)
    def am():
        if "rflag" not in opts and "wlate" not in opts: p2_wload_row(k, vm, "s77", R2, 1, 88, 4)
        k(f"v_mov_b32 v{VS}, 0")
        k(f"buffer_load_dwordx2 v[{VS+2}:{VS+3}], v{VS}, s[{SRD_DBG}:{SRD_DBG+3}], 0 offen")
    if "p1c" in opts:
        def ac():
            p2_wsrd(k, R2)
            k.srd(SRD_DBG, S_PDBG, S_PDBG + 1, 256)
            if "wrc" in opts: wraw(vm)
            if "wtouch" in opts:
                k("v_mov_b32 v12, 0")
                k("s_mov_b64 exec, 1")
                vm.issue(f"buffer_load_ushort v13, v12, s[{SRD_C}:{SRD_C+3}], 0 offen", "tch")
                vm.issue(f"buffer_load_ushort v14, v12, s[{SRD_D}:{SRD_D+3}], 0 offen", "tch")
                if "wtouch2" in opts:
                    for n_, off in enumerate((R_OFF, GP_OFF, RF_OFF, T3_OFF)):
                        k(f"s_mov_b32 s53, {off}")
                        vm.issue(f"buffer_load_dword v15, v12, s[{SRD_WS}:{SRD_WS+3}], s53 offen", "tch")
                k("s_mov_b64 exec, -1")
        def ax():
            if "wrc" not in opts and "wrm" not in opts and "v3" not in opts: wraw(vm)
        inm = None
        if "wrm" in opts:
            wa, wp = (w_raw3_parts if "ws3" in opts else w_raw_parts)(k, vm, "s77", R2)
            ac0 = ac
            def ac():
                ac0(); wa()
            inm = {0: wp[0], 2: wp[1], 4: wp[2], 6: wp[3]}
        p1c(k, vm, "s70", "s71", FB, after_const=ac, after_x=ax, after_mfma=am, in_mfma=inm, gpearly=("v3" in opts))
    else:
        p1b(k, vm, "s70", "s71", FB, after_issue=ai, after_mfma=am)
    sn(k, "st1")
    if "v3" in opts:
        if "v1" not in opts:
            if "wrm" not in opts: wraw(vm)
            fin_srd(k)
        sn(k, "f_wiss")
        vm.wait("Rst")
        sn(k, "f_wait")
    elif "p1c" in opts:
        fin_srd(k)
        if "wsl" not in opts:
            vm.wait("Wr")
            wshuf()
        sn(k, "f_wiss")
        vm.wait("gp")
        sn(k, "f_wait")
    elif "wlate" in opts:
        p2_consts(k, "s77", R2)
        p2_addr3(k, "s77", R2)
        sn(k, "f_p2c")
        vm.wait("gp")
        sn(k, "f_wait")
    elif "rflag" in opts:
        p2_wload_row(k, vm, "s77", R2, 1, 88, 4)
        fin_srd(k)
        if "c_pre" in opts: p2_addr3(k, "s77", R2)
        sn(k, "f_wiss")
        vm.wait("gp")
        sn(k, "f_wait")
    else:
        fin_srd(k)
        p2_consts(k, "s77", R2)
        p2_addr3(k, "s77", R2)
        sn(k, "f_p2c")
        k("s_waitcnt vmcnt(0)")
        sn(k, "f_wait")
    k("s_barrier")
    sn(k, "f_bar")
    nonce_check(k)
    L = k.newlabel("w0skip"); L2_ = k.newlabel("w0j")
    k("s_cmp_lg_u32 s3, 0")
    k(f"s_cbranch_scc1 {L}")
    def a():
        k("s_lshl_b32 s48, s70, 2")
        k("s_add_u32 s48, s48, s71")
        k("s_lshl_b32 s48, s48, 3")
        k(f"s_add_u32 s48, s48, {RF_OFF}")
        k(f"v_lshl_add_u32 v{VS}, v0, 10, s48")
        k("s_lshl_b32 s48, s70, 9")
        k("s_lshl_b32 s49, s71, 3")
        k("s_add_u32 s48, s48, s49")
        k(f"s_add_u32 s48, s48, {HF_OFF + 88 - 8*256}")
        k(f"v_lshl_add_u32 v{VS+1}, v0, 8, s48")
        k("v_cmp_gt_u32 vcc, 8, v0")
        k(f"v_cndmask_b32 v{VS}, v{VS+1}, v{VS}, vcc")
    flag_store(k, 10, a)
    if "v1" in opts:
        wraw(VM(k))
        fin_srd(k)
    if "wlate" in opts:
        p2_wload_row(k, VM(k), "s77", R2, 1, 148, 4)
        fin_srd(k)
    k(f"s_branch {L2_}")
    k.label(L)
    if "v1" in opts:
        wraw(VM(k))
        fin_srd(k)
    if "wlate" in opts:
        p2_wload_row(k, VM(k), "s77", R2, 1, 148, 4)
        fin_srd(k)
    if "w2early" in opts:
        for j in range(5):
            for ii in range(2): w2_piece(k, VM(k), R, j, ii)
    k.label(L2_)
    sn(k, "st2")
    if "rflag" in opts and "cshare" not in opts:
        p2_consts(k, "s77", R2)
        if "c_pre" not in opts: p2_addr3(k, "s77", R2)
        sn(k, "f_p2c")
        L = k.newlabel("ww"); L2_ = k.newlabel("wwj")
        k("s_cmp_lg_u32 s3, 0")
        k(f"s_cbranch_scc1 {L}")
        k("s_waitcnt vmcnt(1)")
        k(f"s_branch {L2_}")
        k.label(L)
        k(f"s_waitcnt vmcnt({10 if 'w2early' in opts else 0})")
        k.label(L2_)
    k("s_branch L_p2")
    k.label("L_nop1")
    k("s_sub_u32 s50, s2, 240")
    k("s_mul_i32 s50, s50, 688")
    k("s_lshl_b32 s51, s3, 6")
    k("s_add_u32 s50, s50, s51")
    k("v_add_u32 v2, s50, v0")
    k("v_lshlrev_b32 v2, 7, v2")
    pro_wait(k)
    if "touch" in opts:
        fin_srd(k)
        k(f"buffer_load_dword v241, v2, s[{SRD_C}:{SRD_C+3}], 0 offen")
        L = k.newlabel("t2")
        k("s_cmp_ge_u32 s3, 3")
        k(f"s_cbranch_scc1 {L}")
        k("v_add_u32 v2, 0x10000, v2")
        k(f"buffer_load_dword v242, v2, s[{SRD_C}:{SRD_C+3}], 0 offen")
        k.label(L)
    k.srd(SRD_DBG, S_PDBG, S_PDBG + 1, 256)
    k("s_cmp_lg_u32 s2, 240")
    k("s_cbranch_scc1 L_idle")
    k("s_mov_b32 s77, 64")
    vm = VM(k)
    p2_nq(k, R2)
    p2_wsrd(k, R2)
    if "p1c" in opts:
        wraw(vm)
        fin_srd(k)
        nonce_check(k, issued=False)
        k("s_waitcnt vmcnt(0)")
        if "wsl" not in opts and "v3" not in opts: wshuf()
    else:
        p2_wload_row(k, vm, "s77", R2, 0, 148, 4)
        if "cshare" not in opts: p2_consts(k, "s77", R2)
        p2_wload_row(k, vm, "s77", R2, 1, 148, 4)
        if "cshare" not in opts: p2_addr3(k, "s77", R2)
        fin_srd(k)
        nonce_check(k, issued=False)
        k("s_waitcnt vmcnt(0)")
    if "w2early" in opts:
        L = wave0not(k)
        for j in range(5):
            for ii in range(2): w2_piece(k, VM(k), R, j, ii)
        k.label(L)
    k.label("L_p2")
    vm = VM(k)
    if "cshare" in opts:
        if "wsl" in opts: wshuf()
        p2_addr3(k, "s77", R2)
        p2_consts_share(k, "s77", R2, FB)
        if "v3" in opts and "v1" not in opts:
            L = wave0not(k)
            k("s_waitcnt vmcnt(10)")
            wshuf()
            k.label(L)
        k("s_waitcnt lgkmcnt(0)")
        sn(k, "f_p2c")
    elif "wlate" not in opts: p2_wfix(k, R2)
    def so():
        k("s_lshl_b32 s49, s72, 10")
        k(f"s_add_u32 s49, s49, {RF_OFF}")
    poll(k, 64, so)
    sn(k, "st3")
    p2_slab_dma(k, "s77", R2)
    if "cshare" in opts:
        p2_consts_read(k, R2, FB)
        if "v1" in opts:
            k("s_waitcnt vmcnt(14)")
            wshuf()
        elif "v3" in opts:
            L = wave0(k)
            wshuf()
            k.label(L)
        if "p1c" not in opts:
            k("s_waitcnt vmcnt(4)")
            p2_wfix(k, R2)
        k("s_waitcnt lgkmcnt(0)")
    if "wlate" in opts:
        k("s_waitcnt vmcnt(4)")
        p2_wfix(k, R2)
    if "w2early" in opts:
        k("s_waitcnt vmcnt(0)")
    else:
        for j in range(5):
            for ii in range(2): w2_piece(k, vm, R, j, ii)
        k("s_waitcnt vmcnt(10)")
    k("s_barrier")
    sn(k, "p_slab")
    V = {}
    RF = dict(R)
    if nearly > 5: RF['hmap'] = {5: 212, 6: 220}
    def fiss():
        k("s_lshl_b32 s61, s74, 1")
        k("s_add_u32 s61, s61, s75")
        k("s_lshl_b32 s61, s61, 8")
        k(f"s_add_u32 s61, s61, {HF_OFF}")
        flags_issue(k, 15, "s61")
    def fchk():
        sn(k, "p_hw")
        flags_check(k, "s61", "s60")
        sn(k, "p_hfl")
        V["vm"] = VM(k)
        k(f"v_lshlrev_b32 v{R['h']}, 4, v0")
        h_base(k, "s74", "s75")
    def hook(name, idx):
        def f():
            if name == "A" and "w2early" in opts:
                L = wave0(k)
                for j in range(5):
                    for ii in range(2): w2_piece(k, VM(k), R, j, ii)
                k.label(L)
            if fchk_at == name: fchk()
            if fiss_at == name: fiss()
            if idx is not None:
                assert not esched[idx] or "vm" in V
                for j in esched[idx]: h_load(k, V["vm"], RF, j)
            if name == "B": final_addr(k, "s74", "s75", "s76", R)
        return f
    hA, hW, hW2, hW3, hB = hook("A", None), hook("W", 0), hook("W2", 1), hook("W3", 2), hook("B", 3)
    def hC():
        final_gp_loads(k, V["vm"], "s74", R, sc1=False)
        if len(esched) > 4:
            for j in esched[4]: h_load(k, V["vm"], RF, j)
        if w56:
            for j in (5, 6):
                for ii in range(2): w2_piece(k, V["vm"], R, j, ii)
    p2_main3(k, "s77", R2, lambda: V["vm"], dict(A=hA, W=hW, W2=hW2, W3=hW3, B=hB, C=hC, V=lambda: k("s_barrier")))
    sn(k, "st4")
    vm = V["vm"]
    def w2l(j):
        for ii in range(2): w2_piece(k, vm, R, j, ii)
    def w10():
        k("s_cmp_eq_u32 s65, 3")
        k(f"s_mov_b32 s71, {10*32768}")
        k(f"s_cselect_b32 s71, {9*32768}, s71")
        for ii in range(2):
            k(f"s_add_u32 m0, s68, {ii*1024}")
            k(f"s_add_u32 s67, s66, s71")
            if ii: k("s_add_u32 s67, s67, 8192")
            vm.issue(f"buffer_load_dwordx4 v{R['dma']}, s[{SRD_C}:{SRD_C+3}], s67 offen lds", "w2_10")
    items = []
    if not w56: items += [lambda: (w2l(5), w2l(6))]
    for j in range(nearly, 7): items.append(lambda j=j: h_load(k, vm, RF, j))
    for j in (7, 8, 9): items.append(lambda j=j: (w2l(j), h_load(k, vm, RF, j)))
    n_late = len(items) - min(len(items), nshadow)
    pre = items[:len(items) - n_late]; post = items[len(items) - n_late:]
    vm.wait("gp")
    final_gate(k, R)
    sn(k, "f_gate")
    aft = {}
    for n_, f in enumerate(pre): aft[pos[n_]] = f
    gemm2_run(k, vm, RF, gseq(RF, range(0, 5)), True, after=aft)
    sn(k, "f_g04")
    vm.wait("t3st")
    if "w2_6" in vm.q: vm.wait("w2_6")
    k("s_barrier")
    L = wave0(k)
    def a():
        k("s_lshl_b32 s48, s77, 3")
        k(f"s_add_u32 s48, s48, {TF_OFF}")
        k(f"v_lshl_add_u32 v{VS}, v0, 10, s48")
    flag_store(k, 32, a)
    k.label(L)
    sn(k, "f_tfl")
    for f in post: f()
    h_load(k, vm, RF, 10); w10(); final_small_loads(k, vm, "s74", R)
    gemm2_run(k, vm, RF, gseq(RF, (5, 6)), False)
    sn(k, "f_g56")
    if nshadow >= len(items):
        vm.wait("w2_9")
        k("s_barrier")
        gemm2_run(k, vm, RF, gseq(RF, (7, 8, 9)), False)
    else:
        for j in (7, 8, 9):
            vm.wait(f"w2_{j}")
            k("s_barrier")
            gemm2_run(k, vm, RF, gseq(RF, (j,)), False)
    sn(k, "st5")
    k("s_branch L_t3")
    k.label("L_idle")
    fin_srd(k)
    L = wave0(k)
    nonce_check(k, issued=False)
    k.label(L)
    vm = VM(k)
    for j in range(10):
        for ii in range(2): w2_piece(k, vm, R, j, ii)
    final_addr(k, "s74", "s75", "s76", R)
    final_small_loads(k, vm, "s74", R)
    k.label("L_final")
    vm = VM(k)
    for j in range(10): vm.q.append(f"w2_{j}"); vm.seen.add(f"w2_{j}")
    def so():
        k("s_lshl_b32 s49, s74, 1")
        k("s_add_u32 s49, s49, s75")
        k("s_lshl_b32 s49, s49, 8")
        k(f"s_add_u32 s49, s49, {HF_OFF}")
    poll(k, 15, so)
    sn(k, "st5")
    final_gp_loads(k, vm, "s74", R)
    def after_h():
        vm.wait("gp")
        final_gate(k, R)
    def hook_t3():
        k.label("L_t3")
        def so():
            k("s_and_b32 s49, s2, 31")
            k("s_lshl_b32 s49, s49, 10")
            k(f"s_add_u32 s49, s49, {TF_OFF}")
        poll(k, 64, so, second=512)
        sn(k, "st6")
    final_main(k, "s74", "s75", "s76", R, vm, st=False, hook_t3=hook_t3, after_h=after_h)
    if st:
        k("s_waitcnt vmcnt(0)")
        sn(k, "st7")
        if dbg: dbg_stamps(k)
        else: stamps_store(k)
    k.label("L_end")
    k("s_endpgm")
    txt, info = make_file([(NAME, k.l)], [(None, 256, 512, 163840)])
    open(fn, "w").write(txt); print(info)

STD = {f"st{i}": i for i in range(1, 8)}
if __name__ == "__main__":
    base = dict(w56=True, nshadow=3, pos=(3,6,9), g1=dict(D=2, inloop=1))
    O = ("touch", "w2early", "rflag", "g1defer", "cshare", "p1c", "ws3", "v3", "wrm", "g1post")
    roles.STWAVE = 0
    A = {"p_slab":1, "p_hw":2, "p_hfl":3, "st4":4, "st6":5, "f_tfl":6, "st7":7}
    build(f"f4_a.s", A, opts=O, esched=((0,1,2),(3,4),(5,6),()), **base)
    build(f"f4_b.s", A, opts=O, esched=((),(0,1,2),(3,4),(5,6)), fiss_at="A", fchk_at="W2", **base)
    build(f"f4_c.s", A, opts=O, esched=((),(),(0,1,2,3),(4,5,6)), fiss_at="W", fchk_at="W3", **base)
    build(f"f4_d.s", A, opts=O, esched=((),(),(0,1,2),(3,4),(5,6)), fiss_at="W", fchk_at="W3", **base)
    build(f"f4_e.s", A, opts=O, esched=((),(),(0,1,2),(3,4)), fiss_at="W", fchk_at="W3", **base)
```

```python
from roles2 import *
import roles, roles2
from fused import (RF_OFF, TF_OFF, HF_OFF, SRD_DBG, NL, NH, VS, SPIN, FB, wave0, flag_store, poll)

DUMP_OFF = 0xD00000

def p2_regs3():
    R = p2_regs()
    R.update(e1w=228, e1r=229, e2w=230, e2r=231, t3=233)
    return R

def p2_addr3(k, s_task, R):
    roles.p2_addr(k, s_task, R)
    vT = R["T"]; vN, vQ = R["n"], R["q"]
    k.c("stage (v) variant: column n <-> d = 4n + r")
    k(f"v_lshrrev_b32 v{vT}, 2, v{vN}")
    k(f"s_lshl_b32 s50, s3, 2")
    k(f"v_add_u32 v{vT}, s50, v{vT}")
    k(f"v_mul_u32_u24 v{vT}, {roles.P2_PITCH}, v{vT}")
    k(f"v_lshl_add_u32 v{vT}, v{vQ}, 8, v{vT}")
    k(f"v_and_b32 v{vT+1}, 3, v0")
    k(f"v_lshl_add_u32 v{vT}, v{vT+1}, 5, v{vT}")
    k(f"v_add_u32 v{R['e2r']}, {roles.P2_E2}, v{vT}")
    k(f"v_lshlrev_b32 v{vT}, 19, v{vQ}")
    k(f"v_lshl_add_u32 v{vT}, v{vN}, 3, v{vT}")
    k(f"s_lshl_b32 s50, s3, 7")
    k(f"v_add_u32 v{R['t3']}, s50, v{vT}")

def p2_main3(k, s_task, R, vmf, hooks, sc1=True):
    H = lambda n: hooks[n]() if n in hooks else None
    fl = " sc1" if sc1 else ""
    FS, F16, A1, B5 = R["FS"], R["F16"], R["A1"], R["B5"]
    TW1C, TW1S, TW2C, TW2S = R["TW1C"], R["TW1S"], R["TW2C"], R["TW2S"]
    W = R["W"]; WA = R["work"]
    P2_PITCH = roles.P2_PITCH
    BF = WA; D = WA + 16; P = WA + 48; X = WA + 64
    def fs(t, g, cp): return FS + 6*(2*t+g) + (2 if cp == 0 else 0)
    def f16(cp): return F16 + (2 if cp == 0 else 0)
    def mf(d, a, b, c=None):
        cc = "0" if c is None else f"v[{c}:{c+3}]"
        return f"v_mfma_f32_16x16x32_bf16 v[{d}:{d+3}], v[{a}:{a+3}], v[{b}:{b+3}], {cc}"
    k.c("stage (i)")
    for dd in range(4):
        for c in range(2):
            r = BF + 4*dd + 2*c
            k(f"ds_read_b64_tr_b16 v[{r}:{r+1}], v{R['tr']+dd} offset:{c*1024}")
    for dd in range(4):
        k(f"s_waitcnt lgkmcnt({6-2*dd})")
        for cp in range(2):
            k(mf(D + 8*dd + 4*cp, A1 + 4*cp, BF + 4*dd))
    for i in range(4):
        for cp in range(2):
            for h in range(2):
                k(f"v_cvt_pk_bf16_f32 v{P+4*i+2*cp+h}, v{D+8*(2*h)+4*cp+i}, v{D+8*(2*h+1)+4*cp+i}")
        k(f"ds_write_b128 v{R['e1w']}, v[{P+4*i}:{P+4*i+3}] offset:{i*2048}")
    k("s_waitcnt lgkmcnt(0)")
    k("s_barrier")
    sn(k, "p_e1")
    k.c("step A")
    AF = WA
    for row in range(2):
        for g in range(2):
            r = AF + 8*row + 4*g
            k(f"ds_read_b128 v[{r}:{r+3}], v{R['e1r']} offset:{row*2048 + g*1024}")
    H("A")
    def d1(row, t, cp): return D + 16*row + 8*t + 4*cp
    def frag(row, t): return P + 8*row + 4*t
    def stepA(row):
        o = []
        for g in range(2):
            for t in range(2):
                for cp in range(2):
                    o.append(mf(d1(row, t, cp), AF + 8*row + 4*g, fs(t, g, cp), None if g == 0 else d1(row, t, cp)))
        return o
    def cmul(row, C, S, kind):
        o = []
        for t in range(2):
            re, im = d1(row, t, 0), d1(row, t, 1)
            x = X + 8*t
            c_, s_ = C(t), S(t)
            if kind == "tw":
                for i in range(4): o.append(f"v_mul_f32 v{x+i}, v{re+i}, v{c_+i}")
                for i in range(4): o.append(f"v_mul_f32 v{x+4+i}, v{im+i}, v{c_+i}")
                for i in range(4): o.append(f"v_fmac_f32 v{x+i}, v{im+i}, v{s_+i}")
                for i in range(4): o.append(f"v_fma_f32 v{x+4+i}, -v{re+i}, v{s_+i}, v{x+4+i}")
            else:
                for i in range(4): o.append(f"v_mul_f32 v{x+i}, v{re+i}, v{c_+i}")
                for i in range(4): o.append(f"v_mul_f32_e64 v{x+4+i}, -v{re+i}, v{s_+i}")
                for i in range(4): o.append(f"v_fma_f32 v{x+i}, -v{im+i}, v{s_+i}, v{x+i}")
                for i in range(4): o.append(f"v_fma_f32 v{x+4+i}, -v{im+i}, v{c_+i}, v{x+4+i}")
            f = frag(row, t)
            for h in range(2): o.append(f"v_cvt_pk_bf16_f32 v{f+h}, v{x+2*h}, v{x+2*h+1}")
            for h in range(2): o.append(f"v_cvt_pk_bf16_f32 v{f+2+h}, v{x+4+2*h}, v{x+4+2*h+1}")
        return o
    tw1 = lambda row: cmul(row, lambda t: TW1C + 4*t, lambda t: TW1S + 4*t, "tw")
    wm = lambda row: cmul(row, lambda t: W + 16*row + 8*t, lambda t: W + 16*row + 8*t + 4, "w")
    tw2 = lambda row: cmul(row, lambda t: TW2C + 4*t, lambda t: TW2S + 4*t, "tw")
    def stepB(row):
        return [mf(d1(row, t, cp), f16(cp), frag(row, t)) for t in range(2) for cp in range(2)]
    def stepBp(row):
        return [mf(d1(row, t, cp), frag(row, t), f16(cp)) for t in range(2) for cp in range(2)]
    def stepAp(row):
        o = []
        for t in range(2):
            for tp in range(2):
                for cp in range(2):
                    o.append(mf(d1(row, tp, cp), fs(tp, t, cp), frag(row, t), None if t == 0 else d1(row, tp, cp)))
        return o
    def emit(l):
        for x in l: k(x)
    k("s_waitcnt lgkmcnt(2)")
    emit(stepA(0))
    k("s_waitcnt lgkmcnt(0)")
    emit(interleave(stepA(1), tw1(0)))
    emit(interleave(stepB(0), tw1(1)))
    emit(interleave(stepB(1), wm(0)))
    emit(interleave(stepBp(0), wm(1)))
    H("W")
    emit(interleave(stepBp(1), tw2(0)))
    H("W2")
    emit(interleave(stepAp(0), tw2(1)))
    H("W3")
    emit(stepAp(1))
    sn(k, "p_ap")
    k.c("E2 write")
    for tp in range(2):
        for i in range(4):
            p = P + 2*(4*tp + i)
            k(f"v_cvt_pk_bf16_f32 v{p}, v{d1(0,tp,0)+i}, v{d1(1,tp,0)+i}")
            k(f"v_cvt_pk_bf16_f32 v{p+1}, v{d1(0,tp,1)+i}, v{d1(1,tp,1)+i}")
            k(f"ds_write_b64 v{R['e2w']}, v[{p}:{p+1}] offset:{(16*tp+i)*P2_PITCH}")
    H("B")
    k("s_waitcnt lgkmcnt(0)")
    k("s_barrier")
    sn(k, "p_e2")
    k.c("stage (v)")
    for r in range(4):
        k(f"ds_read2_b64 v[{AF+4*r}:{AF+4*r+3}], v{R['e2r']} offset0:{r} offset1:{r+16}")
    H("C")
    k(f"s_and_b32 s52, {s_task}, 63")
    k(f"s_lshl_b32 s50, s52, 11")
    k(f"s_lshr_b32 s51, {s_task}, 6")
    k(f"s_lshl_b32 s51, s51, 10")
    k(f"s_add_u32 s50, s50, s51")
    k(f"s_add_u32 s50, s50, {T3_OFF}")
    k(f"s_cmp_eq_u32 s52, 0")
    k(f"s_cselect_b32 s51, {DUMP_OFF}, s50")
    for r in range(4):
        k(f"s_waitcnt lgkmcnt({3-r})")
        for cp in range(2):
            k(mf(D + 8*r + 4*cp, B5 + 4*cp, AF + 4*r))
    H("V")
    vm = vmf()
    for i in range(4):
        for cp in range(2):
            p = P + 4*i + 2*cp
            for h in range(2):
                k(f"v_cvt_pk_bf16_f32 v{p+h}, v{D+8*(2*h)+4*cp+i}, v{D+8*(2*h+1)+4*cp+i}")
            if i: k(f"s_add_u32 s{52+cp}, s{50+cp}, {i*131072}")
            vm.issue(f"buffer_store_dwordx2 v[{p}:{p+1}], v{R['t3']}, s[{SRD_WS}:{SRD_WS+3}], s{(52 if i else 50)+cp} offen offset:{cp*1024}{fl}", "t3st")

def h_base(k, s_cls, s_hf):
    k(f"s_mul_i32 s70, {s_cls}, {H_CLS}")
    k(f"s_lshl_b32 s71, {s_hf}, 1")
    k("s_add_u32 s71, s71, s64")
    k(f"s_mul_i32 s71, s71, {43*2048}")
    k("s_add_u32 s70, s70, s71")
    k(f"s_mul_i32 s71, s65, {11*2048}")
    k("s_add_u32 s70, s70, s71")
    if H_OFF: k(f"s_add_u32 s70, s70, {H_OFF}")

def hreg(R, j):
    return R.get("hmap", {}).get(j, R["HB"] + 8*j)

def h_load(k, vm, R, j):
    HB = hreg(R, j) - 8*j
    if j == 10:
        k("s_cmp_eq_u32 s65, 3")
        k(f"s_mov_b32 s71, {10*2048}")
        k(f"s_cselect_b32 s71, {9*2048}, s71")
        k("s_add_u32 s71, s70, s71")
    else:
        k(f"s_add_u32 s71, s70, {j*2048}")
    for stp in range(2):
        vm.issue(f"buffer_load_dwordx4 v[{HB+8*j+4*stp}:{HB+8*j+4*stp+3}], v{R['h']}, s[{SRD_WS}:{SRD_WS+3}], s71 offen offset:{stp*1024}", f"h_{j}")

def flags_issue(k, nfl, s_off):
    k(f"v_min_u32 v{VS}, {nfl-1}, v0")
    k(f"v_lshlrev_b32 v{VS}, 3, v{VS}")
    k(f"buffer_load_dwordx2 v[{VS+2}:{VS+3}], v{VS}, s[{SRD_WS}:{SRD_WS+3}], {s_off} offen sc1")

def flags_check(k, s_off, s_cnt):
    Ll, Lok = k.newlabel("fchk"), k.newlabel("fok")
    k(f"s_mov_b32 {s_cnt}, {SPIN}")
    k.label(Ll)
    k("s_waitcnt vmcnt(0)")
    k(f"v_cmp_eq_u32 vcc, s{NL}, v{VS+2}")
    k(f"v_cmp_eq_u32 s[62:63], s{NH}, v{VS+3}")
    k("s_and_b64 vcc, vcc, s[62:63]")
    k("s_cmp_eq_u64 vcc, exec")
    k(f"s_cbranch_scc1 {Lok}")
    k(f"s_sub_u32 {s_cnt}, {s_cnt}, 1")
    k(f"s_cmp_eq_u32 {s_cnt}, 0")
    k(f"s_cbranch_scc1 {Lok}")
    k(f"buffer_load_dwordx2 v[{VS+2}:{VS+3}], v{VS}, s[{SRD_WS}:{SRD_WS+3}], {s_off} offen sc1")
    k(f"s_branch {Ll}")
    k.label(Lok)

def gemm2_run(k, vm, R, seq, first, after=None):
    AF, ACC = R["AF"], R["ACC"]
    def reads(idx, slot, stp):
        buf = AF + 8*(idx % 3)
        grp, so = slot // 4, (slot % 4) * 16384
        for e in range(2):
            for h in range(2):
                r = buf + 4*e + 2*h
                k(f"ds_read_b64_tr_b16 v[{r}:{r+1}], v{R['tr']+2*grp+e} offset:{so + stp*2048 + h*1024}")
    def mfm(idx, b, first=False):
        buf = AF + 8*(idx % 3)
        for e in range(2):
            c = "0" if first else f"v[{ACC+16*e}:{ACC+16*e+15}]"
            k(f"v_mfma_f32_32x32x16_bf16 v[{ACC+16*e}:{ACC+16*e+15}], v[{buf+4*e}:{buf+4*e+3}], v[{b}:{b+3}], {c}")
    n = len(seq)
    for a in range(min(2, n)): reads(seq[a][0], seq[a][1], seq[a][2])
    for a in range(n):
        idx, slot, stp, b, htag = seq[a]
        if a + 2 < n: reads(*seq[a + 2][:3])
        rem = min(2, n - 1 - a)
        if htag and stp == 0: vm.wait(htag)
        k(f"s_waitcnt lgkmcnt({4*rem})")
        mfm(idx, b, first and a == 0)
        if after and idx in after: after[idx]()

def gseq(R, js):
    return [(2*j + s, j, s, hreg(R, j) + 4*s, f"h_{j}") for j in js for s in range(2)]

def p2_consts_share(k, s_task, R, tbl):
    vT = R["T"]; vN, vQ = R["n"], R["q"]; WA = R["work"]
    FS, F16, A1, B5 = R["FS"], R["F16"], R["A1"], R["B5"]
    TW1C, TW1S, TW2C, TW2S = R["TW1C"], R["TW1S"], R["TW2C"], R["TW2S"]
    assert FS == 20
    nf, q4 = vT, vT + 1
    vA = vT + 8
    Lend = k.newlabel("cs_end")
    k("s_cmp_eq_u32 s3, 0")
    k(f"s_cbranch_scc1 {Lend}")
    k(f"v_cvt_f32_u32 v{nf}, v{vN}")
    k(f"v_lshlrev_b32 v{q4}, 2, v{vQ}")
    k(f"v_cvt_f32_u32 v{q4}, v{q4}")
    k(f"s_cmp_eq_u32 {s_task}, 64")
    k(f"s_cselect_b32 s54, 0x3f800000, 0")
    k(f"v_lshlrev_b32 v{vA}, 4, v0")
    k(f"v_add_u32 v{vA}, {tbl}, v{vA}")
    an = WA; cs = WA + 4; sn_ = WA + 8
    def pub(r0, n):
        for r in range(r0, r0 + n, 2):
            k(f"ds_write_b64 v{vA}, v[{r}:{r+1}] offset:{((r-20)>>2)*1024 + ((r-20)&2)*4}")
    def angles(vdelta, va0):
        for j in range(4):
            if j == 0: k(f"v_mov_b32 v{an}, v{va0}")
            elif j == 3: k(f"v_fmamk_f32 v{an+j}, v{vdelta}, {fhex(3.0)}, v{va0}")
            else: k(f"v_fma_f32 v{an+j}, v{vdelta}, {float(j)}, v{va0}")
    def cset(vdelta, va0, C01, C23, S01, S23):
        angles(vdelta, va0)
        for j in range(4): k(f"v_cos_f32 v{cs+j}, v{an+j}")
        for j in range(4): k(f"v_sin_f32 v{sn_+j}, v{an+j}")
        k(f"v_cvt_pk_bf16_f32 v{C01}, v{cs}, v{cs+1}")
        k(f"v_cvt_pk_bf16_f32 v{C23}, v{cs+2}, v{cs+3}")
        k(f"v_cvt_pk_bf16_f32 v{S01}, v{sn_}, v{sn_+1}")
        k(f"v_cvt_pk_bf16_f32 v{S23}, v{sn_+2}, v{sn_+3}")
    d, a0 = vT + 2, vT + 3
    Ls = {w: k.newlabel(f"cs{w}") for w in range(2, 8)}
    for w in range(2, 8):
        k(f"s_cmp_eq_u32 s3, {w}")
        k(f"s_cbranch_scc1 {Ls[w]}")
    k.c("wave 1: F32 sets")
    k(f"v_mul_f32 v{d}, {fhex(1/32)}, v{nf}")
    k(f"v_mul_f32 v{a0}, v{d}, v{q4}")
    cset(d, a0, FS + 2, FS + 3, FS + 4, FS + 5)
    k(f"v_xor_b32 v{FS}, 0x80008000, v{FS+4}")
    k(f"v_xor_b32 v{FS+1}, 0x80008000, v{FS+5}")
    k(f"v_and_b32 v{vT+4}, 1, v{vN}")
    k(f"v_mul_u32_u24 v{vT+4}, 0x8000, v{vT+4}")
    k(f"v_lshl_or_b32 v{vT+4}, v{vT+4}, 16, v{vT+4}")
    k(f"v_xor_b32 v{vT+5}, 0x80000000, v{vT+4}")
    for r in range(6):
        k(f"v_xor_b32 v{FS+6+r}, v{vT+4}, v{FS+r}")
        k(f"v_xor_b32 v{FS+12+r}, 0x80000000, v{FS+r}")
        k(f"v_xor_b32 v{FS+18+r}, v{vT+5}, v{FS+r}")
    pub(FS, 24)
    k(f"s_branch {Lend}")
    k.label(Ls[2])
    k.c("wave 2: F16, A1")
    k(f"v_mul_f32 v{d}, {fhex(1/16)}, v{nf}")
    k(f"v_mul_f32 v{a0}, v{d}, v{q4}")
    cset(d, a0, F16 + 2, F16 + 3, F16 + 4, F16 + 5)
    k(f"v_xor_b32 v{F16}, 0x80008000, v{F16+4}")
    k(f"v_xor_b32 v{F16+1}, 0x80008000, v{F16+5}")
    pub(F16, 6)
    k(f"v_fma_f32 v{d}, v{nf}, 2.0, s54")
    k(f"v_mul_f32 v{d}, {fhex(1/32)}, v{d}")
    k(f"v_mul_f32 v{a0}, v{d}, v{q4}")
    t0 = WA + 12
    cset(d, a0, t0, t0 + 1, t0 + 2, t0 + 3)
    k(f"v_xor_b32 v{t0+4}, 0x80008000, v{t0+2}")
    k(f"v_xor_b32 v{t0+5}, 0x80008000, v{t0+3}")
    L0, L64, Lj = k.newlabel("a1_0"), k.newlabel("a1_64"), k.newlabel("a1_j")
    C01, C23, S01, S23, N01, N23 = [f"v{t0+i}" for i in range(6)]
    def setA(vals):
        for r, x in enumerate(vals): k(f"v_mov_b32 v{A1+r}, {x}")
    k(f"s_cmp_eq_u32 {s_task}, 0"); k(f"s_cbranch_scc1 {L0}")
    k(f"s_cmp_eq_u32 {s_task}, 64"); k(f"s_cbranch_scc1 {L64}")
    setA([C01, C23, S01, S23, N01, N23, C01, C23]); k(f"s_branch {Lj}")
    k.label(L0); setA([C01, C23, 0, 0, N01, N23, 0, 0]); k(f"s_branch {Lj}")
    k.label(L64); setA([0, 0, C01, C23, 0, 0, N01, N23])
    k.label(Lj)
    pub(A1, 8)
    k(f"s_branch {Lend}")
    k.label(Ls[3])
    k.c("wave 3: B5: angle n(2u2+e)/32")
    k(f"v_mul_f32 v{d}, {fhex(1/16)}, v{nf}")
    k(f"v_mul_f32 v{a0}, s54, v{nf}")
    k(f"v_mul_f32 v{a0}, {fhex(1/32)}, v{a0}")
    k(f"v_fmac_f32 v{a0}, v{d}, v{q4}")
    cset(d, a0, B5, B5 + 2, B5 + 1, B5 + 3)
    k(f"v_mov_b32 v{B5+4}, v{B5+1}")
    k(f"v_xor_b32 v{B5+5}, 0x80008000, v{B5}")
    k(f"v_mov_b32 v{B5+6}, v{B5+3}")
    k(f"v_xor_b32 v{B5+7}, 0x80008000, v{B5+2}")
    pub(B5, 8)
    k(f"s_branch {Lend}")
    for t in range(2):
        k.label(Ls[4 + t])
        k.c(f"wave {4+t}: tw1 t={t}")
        k(f"v_add_f32 v{d}, {fhex(16.0*t)}, v{nf}" if t else f"v_mov_b32 v{d}, v{nf}")
        k(f"v_mul_f32 v{d}, {fhex(1/512)}, v{d}")
        k(f"v_mul_f32 v{a0}, v{d}, v{q4}")
        angles(d, a0)
        for j in range(4): k(f"v_cos_f32 v{TW1C+4*t+j}, v{an+j}")
        for j in range(4): k(f"v_sin_f32 v{TW1S+4*t+j}, v{an+j}")
        pub(TW1C + 4*t, 4); pub(TW1S + 4*t, 4)
        k(f"s_branch {Lend}")
    for t in range(2):
        k.label(Ls[6 + t])
        k.c(f"wave {6+t}: tw2 t={t}")
        k(f"s_and_b32 s55, {s_task}, 63")
        k(f"s_cmp_eq_u32 s55, 0")
        k(f"s_mov_b32 s56, {fhex(2.0**-19)}")
        k(f"s_cselect_b32 s55, {fhex(2.0**-20)}, s56")
        k(f"v_mul_f32 v{d}, {fhex(1/512)}, v{nf}")
        k(f"v_add_f32 v{a0}, {fhex(16.0*t)}, v{q4}" if t else f"v_mov_b32 v{a0}, v{q4}")
        k(f"v_mul_f32 v{a0}, v{a0}, v{d}")
        angles(d, a0)
        for j in range(4): k(f"v_cos_f32 v{cs+j}, v{an+j}")
        for j in range(4): k(f"v_sin_f32 v{sn_+j}, v{an+j}")
        for j in range(4): k(f"v_mul_f32 v{TW2C+4*t+j}, s55, v{cs+j}")
        for j in range(4): k(f"v_mul_f32 v{TW2S+4*t+j}, s55, v{sn_+j}")
        pub(TW2C + 4*t, 4); pub(TW2S + 4*t, 4)
        if t == 0: k(f"s_branch {Lend}")
    k.label(Lend)

def p2_consts_read(k, R, tbl):
    vA = R["T"] + 8
    k(f"v_lshlrev_b32 v{vA}, 4, v0")
    k(f"v_add_u32 v{vA}, {tbl}, v{vA}")
    for q in range(19):
        k(f"ds_read_b128 v[{20+4*q}:{23+4*q}], v{vA} offset:{q*1024}")
    k(f"ds_read_b64 v[96:97], v{vA} offset:{19*1024}")

GWB = 149504 + 9216
WB = 149504

def w_raw_parts(k, vm, s_task, R, l16=12, tmp=13, A=(142, 143)):
    SWR, SWI = R["srdw"]
    W = R["W"]; WX = R["WX"]
    def addr(row):
        if row == 0:
            k(f"v_lshlrev_b32 v{l16}, 4, v0")
            k("v_cmp_gt_u32 vcc, 32, v0")
        k("s_lshl_b32 s50, s3, 1")
        k(f"s_add_u32 s50, s50, {row}")
        k("s_lshl_b32 s50, s50, 7")
        k(f"s_add_u32 s50, s50, {s_task}")
        k("s_sub_u32 s51, 2048, s50")
        k("s_and_b32 s51, s51, 2047")
        k("s_mul_i32 s50, s50, 514")
        k("s_mul_i32 s51, s51, 514")
        k("s_and_b32 s50, s50, -4")
        k("s_and_b32 s51, s51, -4")
        k("s_sub_u32 s52, s51, 512")
        k(f"v_mov_b32 v{A[row]}, s52")
        k(f"v_mov_b32 v{tmp}, s50")
        k(f"v_cndmask_b32 v{A[row]}, v{A[row]}, v{tmp}, vcc")
        k(f"v_add_u32 v{A[row]}, v{A[row]}, v{l16}")
    def wide(row):
        raw = W + 16 + 8*row
        vm.issue(f"buffer_load_dwordx4 v[{raw}:{raw+3}], v{A[row]}, s[{SWR}:{SWR+3}], 0 offen", "Wr")
        vm.issue(f"buffer_load_dwordx4 v[{raw+4}:{raw+7}], v{A[row]}, s[{SWI}:{SWI+3}], 0 offen", "Wr")
    def tail(row):
        k("s_mov_b32 s52, 1")
        k("s_mov_b32 s53, 1")
        k("s_mov_b64 exec, s[52:53]")
        vm.issue(f"buffer_load_dword v{WX+2*row}, v{A[row]}, s[{SWR}:{SWR+3}], 0 offen offset:512", "Wr")
        vm.issue(f"buffer_load_dword v{WX+2*row+1}, v{A[row]}, s[{SWI}:{SWI+3}], 0 offen offset:512", "Wr")
        k("s_mov_b64 exec, -1")
    return (lambda: (addr(0), addr(1))), [lambda: wide(0), lambda: tail(0), lambda: wide(1), lambda: tail(1)]

def w_raw_load(k, vm, s_task, R, vT):
    SWR, SWI = R["srdw"]
    W = R["W"]; WX = R["WX"]
    k(f"v_lshlrev_b32 v{vT}, 4, v0")
    k("v_cmp_gt_u32 vcc, 32, v0")
    for row in range(2):
        k("s_lshl_b32 s50, s3, 1")
        k(f"s_add_u32 s50, s50, {row}")
        k("s_lshl_b32 s50, s50, 7")
        k(f"s_add_u32 s50, s50, {s_task}")
        k("s_sub_u32 s51, 2048, s50")
        k("s_and_b32 s51, s51, 2047")
        k("s_mul_i32 s50, s50, 514")
        k("s_mul_i32 s51, s51, 514")
        k("s_and_b32 s50, s50, -4")
        k("s_and_b32 s51, s51, -4")
        k("s_sub_u32 s52, s51, 512")
        k(f"v_mov_b32 v{vT+1}, s52")
        k(f"v_mov_b32 v{vT+2}, s50")
        k(f"v_cndmask_b32 v{vT+1}, v{vT+1}, v{vT+2}, vcc")
        k(f"v_add_u32 v{vT+1}, v{vT+1}, v{vT}")
        raw = W + 16 + 8*row
        vm.issue(f"buffer_load_dwordx4 v[{raw}:{raw+3}], v{vT+1}, s[{SWR}:{SWR+3}], 0 offen", "Wr")
        vm.issue(f"buffer_load_dwordx4 v[{raw+4}:{raw+7}], v{vT+1}, s[{SWI}:{SWI+3}], 0 offen", "Wr")
        k("s_mov_b32 s52, 1")
        k("s_mov_b32 s53, 1")
        k("s_mov_b64 exec, s[52:53]")
        vm.issue(f"buffer_load_dword v{WX+2*row}, v{vT+1}, s[{SWR}:{SWR+3}], 0 offen offset:512", "Wr")
        vm.issue(f"buffer_load_dword v{WX+2*row+1}, v{vT+1}, s[{SWI}:{SWI+3}], 0 offen offset:512", "Wr")
        k("s_mov_b64 exec, -1")

def w_shuffle(k, R, s_task, AB, vT):
    W = R["W"]; WX = R["WX"]; vN, vQ = R["n"], R["q"]
    k("s_mul_i32 s50, s3, 1152")
    k(f"s_add_u32 s50, s50, {WB}")
    k(f"s_and_b32 s51, {s_task}, 1")
    k("s_lshl_b32 s51, s51, 1")
    k("s_add_u32 s51, s51, s50")
    k("v_cmp_gt_u32 vcc, 32, v0")
    k(f"v_mov_b32 v{vT}, 64")
    k(f"v_cndmask_b32 v{vT}, v{vT}, 0, vcc")
    k(f"v_lshl_add_u32 v{vT}, v0, 4, v{vT}")
    k(f"v_add_u32 v{vT}, s50, v{vT}")
    k(f"v_lshlrev_b32 v{vT+1}, 8, v{vQ}")
    k(f"v_lshl_add_u32 v{vT+1}, v{vN}, 1, v{vT+1}")
    k(f"v_sub_u32 v{vT+2}, 1600, v{vT+1}")
    k(f"v_cndmask_b32 v{vT+1}, v{vT+2}, v{vT+1}, vcc")
    k(f"v_add_u32 v{AB}, s51, v{vT+1}")
    k(f"v_mov_b32 v{vT+2}, -32")
    k(f"v_mov_b32 v{vT+3}, 32")
    k(f"v_cndmask_b32 v{vT+2}, v{vT+2}, v{vT+3}, vcc")
    for m in range(1, 8):
        k(f"v_mad_i32_i24 v{AB+m}, v{vT+2}, {m}, v{AB}")
    k(f"v_mov_b32 v{vT+2}, 512")
    k(f"v_mov_b32 v{vT+3}, 576")
    k(f"v_cndmask_b32 v{vT+2}, v{vT+2}, v{vT+3}, vcc")
    k(f"v_add_u32 v{vT+2}, s51, v{vT+2}")
    k(f"v_and_b32 v{vT+3}, 31, v0")
    k(f"v_cmp_eq_u32 s[62:63], 0, v{vT+3}")
    k(f"v_cndmask_b32 v{AB+8}, v{AB}, v{vT+2}, s[62:63]")
    for row in range(2):
        for part in range(2):
            raw = W + 16 + 8*row + 4*part
            k(f"ds_write_b128 v{vT}, v[{raw}:{raw+3}]")
            k("s_mov_b64 exec, s[62:63]")
            k(f"ds_write_b32 v{vT}, v{WX+2*row+part} offset:512")
            k("s_mov_b64 exec, -1")
            for t in range(2):
                for i in range(4):
                    k(f"ds_read_u16 v{W+16*row+8*t+4*part+i}, v{AB+t+2*i}")
            k(f"ds_read_u16 v{WX+2*row+part}, v{AB+8}")
    k(f"v_mov_b32 v{vT+1}, 0x80000000")
    k(f"v_cndmask_b32 v{vT+1}, v{vT+1}, 0, vcc")
    k(f"v_xor_b32 v{vT+2}, 0x80000000, v{vT+1}")
    k(f"v_cndmask_b32 v{vT+2}, v{vT+1}, v{vT+2}, s[62:63]")
    for row in range(2):
        k(f"s_waitcnt lgkmcnt({15 if row == 0 else 0})")
        for t in range(2):
            for i in range(4):
                r = W + 16*row + 8*t + i
                k(f"v_lshlrev_b32 v{r}, 16, v{r}")
                k(f"v_lshl_add_u32 v{r+4}, v{r+4}, 16, v{vT+1}")
        k(f"v_lshlrev_b32 v{WX+2*row}, 16, v{WX+2*row}")
        k(f"v_lshl_add_u32 v{WX+2*row+1}, v{WX+2*row+1}, 16, v{vT+2}")
        r = W + 16*row
        k(f"v_add_f32 v{r}, v{r}, v{WX+2*row}")
        k(f"v_add_f32 v{r+4}, v{r+4}, v{WX+2*row+1}")
        k(f"v_mul_f32 v{r}, 0.5, v{r}")
        k(f"v_mul_f32 v{r+4}, 0.5, v{r+4}")

WSX = 0
def w_shuffle2(k, R, s_task, TP, vT):
    W = R["W"]; WX = R["WX"]; vN, vQ = R["n"], R["q"]
    k("s_mul_i32 s50, s3, 1152")
    k(f"s_add_u32 s50, s50, {WB + 8}")
    k(f"s_and_b32 s51, {s_task}, 1")
    k("s_lshl_b32 s51, s51, 1")
    k("s_sub_u32 s51, s50, s51")
    k("v_cmp_gt_u32 vcc, 32, v0")
    k(f"v_mov_b32 v{vT}, 62")
    k(f"v_cndmask_b32 v{vT}, v{vT}, 0, vcc")
    k(f"v_lshl_add_u32 v{vT}, v0, 4, v{vT}")
    k(f"v_add_u32 v{vT}, s51, v{vT}")
    if WSX: k(f"v_and_b32 v{vT}, -16, v{vT}")
    k(f"v_bfe_u32 v{vT+1}, v0, 2, 2")
    k(f"v_lshlrev_b32 v{vT+1}, 6, v{vT+1}")
    k(f"v_lshl_add_u32 v{vT+1}, v{vQ}, 8, v{vT+1}")
    k(f"v_sub_u32 v{vT+2}, {576 + 992}, v{vT+1}")
    k(f"v_cndmask_b32 v{vT+1}, v{vT+2}, v{vT+1}, vcc")
    k(f"v_and_b32 v{vT+2}, 3, v0")
    k(f"v_lshl_add_u32 v{vT+1}, v{vT+2}, 3, v{vT+1}")
    k(f"v_add_u32 v{vT+1}, s50, v{vT+1}")
    k(f"v_mov_b32 v{vT+2}, -32")
    k(f"v_mov_b32 v{vT+3}, 32")
    k(f"v_cndmask_b32 v{vT+2}, v{vT+2}, v{vT+3}, vcc")
    k(f"v_add_u32 v{vT+2}, v{vT+1}, v{vT+2}")
    k(f"v_mov_b32 v{vT+3}, 512")
    k(f"v_mov_b32 v{vT+4}, {576 - 2}")
    k(f"v_cndmask_b32 v{vT+3}, v{vT+3}, v{vT+4}, vcc")
    k(f"v_add_u32 v{vT+3}, s50, v{vT+3}")
    k("s_mov_b32 s52, 1")
    k("s_mov_b32 s53, 1")
    for row in range(2):
        for part in range(2):
            raw = W + 16 + 8*row + 4*part
            tp = TP + 8*row + 4*part
            k(f"ds_write_b128 v{vT}, v[{raw}:{raw+3}]")
            k("s_mov_b64 exec, s[52:53]")
            k(f"ds_write_b32 v{vT}, v{WX+2*row+part} offset:512")
            k(f"ds_read_u16 v{WX+2*row+part}, v{vT+3}")
            k("s_mov_b64 exec, -1")
            k(f"ds_read_b64_tr_b16 v[{tp}:{tp+1}], v{vT+1}")
            k(f"ds_read_b64_tr_b16 v[{tp+2}:{tp+3}], v{vT+2}")
    k(f"v_mov_b32 v{vT+4}, 0x80008000")
    k(f"v_cndmask_b32 v{vT+4}, v{vT+4}, 0, vcc")
    k(f"v_mov_b32 v{vT+5}, 0xffff0000")
    for row in range(2):
        k(f"s_waitcnt lgkmcnt({10 if row == 0 else 0})")
        for x in range(8):
            r = TP + 8*row + x
            k(f"v_mov_b32_dpp v{r}, v{r} row_mirror row_mask:0xc bank_mask:0xf")
        for x in range(4):
            r = TP + 8*row + 4 + x
            k(f"v_xor_b32 v{r}, v{r}, v{vT+4}")
        for part in range(2):
            for t in range(2):
                for h in range(2):
                    src = TP + 8*row + 4*part + 2*t + h
                    dst = W + 16*row + 8*t + 4*part + 2*h
                    k(f"v_lshlrev_b32 v{dst}, 16, v{src}")
                    k(f"v_and_b32 v{dst+1}, v{vT+5}, v{src}")
    k(f"v_mov_b32 v{vT+4}, 0x80000000")
    k(f"v_cndmask_b32 v{vT+4}, 0, v{vT+4}, vcc")
    k("s_mov_b64 exec, s[52:53]")
    for row in range(2):
        k(f"v_lshlrev_b32 v{WX+2*row}, 16, v{WX+2*row}")
        k(f"v_lshl_add_u32 v{WX+2*row+1}, v{WX+2*row+1}, 16, v{vT+4}")
        r = W + 16*row
        k(f"v_add_f32 v{r}, v{r}, v{WX+2*row}")
        k(f"v_add_f32 v{r+4}, v{r+4}, v{WX+2*row+1}")
        k(f"v_mul_f32 v{r}, 0.5, v{r}")
        k(f"v_mul_f32 v{r+4}, 0.5, v{r+4}")
    k("s_mov_b64 exec, -1")

def w_raw3(k, vm, s_task, R, vT):
    SWR, SWI = R["srdw"]
    W = R["W"]; WX = R["WX"]
    k(f"v_lshlrev_b32 v{vT}, 4, v0")
    k("v_cmp_gt_u32 vcc, 32, v0")
    k(f"s_and_b32 s53, {s_task}, 1")
    k("s_lshl_b32 s53, s53, 1")
    for row in range(2):
        k("s_lshl_b32 s50, s3, 1")
        k(f"s_add_u32 s50, s50, {row}")
        k("s_lshl_b32 s50, s50, 7")
        k(f"s_add_u32 s50, s50, {s_task}")
        k("s_sub_u32 s51, 2048, s50")
        k("s_and_b32 s51, s51, 2047")
        k("s_mul_i32 s50, s50, 514")
        k("s_mul_i32 s51, s51, 514")
        k("s_sub_u32 s50, s50, s53")
        k("s_add_u32 s51, s51, s53")
        k("s_sub_u32 s52, s51, 512")
        k(f"v_mov_b32 v{vT+1}, s52")
        k(f"v_mov_b32 v{vT+2}, s50")
        k(f"v_cndmask_b32 v{vT+1}, v{vT+1}, v{vT+2}, vcc")
        k(f"v_add_u32 v{vT+1}, v{vT+1}, v{vT}")
        raw = W + 16 + 8*row
        vm.issue(f"buffer_load_dwordx4 v[{raw}:{raw+3}], v{vT+1}, s[{SWR}:{SWR+3}], 0 offen", "Wr")
        vm.issue(f"buffer_load_dwordx4 v[{raw+4}:{raw+7}], v{vT+1}, s[{SWI}:{SWI+3}], 0 offen", "Wr")
        k("s_add_u32 s50, s50, 512")
        k(f"v_mov_b32 v{vT+2}, s50")
        k("s_add_u32 s52, s51, 512")
        k(f"v_writelane_b32 v{vT+2}, s52, 63")
        k("s_sub_u32 s51, s51, s53")
        k("s_sub_u32 s51, s51, s53")
        k(f"v_writelane_b32 v{vT+2}, s51, 0")
        k("s_mov_b32 exec_lo, 0x80000001")
        k("s_mov_b32 exec_hi, 0x80000001")
        vm.issue(f"buffer_load_dword v{WX+2*row}, v{vT+2}, s[{SWR}:{SWR+3}], 0 offen", "Wr")
        vm.issue(f"buffer_load_dword v{WX+2*row+1}, v{vT+2}, s[{SWI}:{SWI+3}], 0 offen", "Wr")
        k("s_mov_b64 exec, -1")

def w_raw3_parts(k, vm, s_task, R, l16=12, tmp=13, A=(142, 143), B=(141, 15)):
    SWR, SWI = R["srdw"]
    W = R["W"]; WX = R["WX"]
    def addr():
        k(f"v_lshlrev_b32 v{l16}, 4, v0")
        k("v_cmp_gt_u32 vcc, 32, v0")
        k(f"s_and_b32 s53, {s_task}, 1")
        k("s_lshl_b32 s53, s53, 1")
        for row in range(2):
            k("s_lshl_b32 s50, s3, 1")
            k(f"s_add_u32 s50, s50, {row}")
            k("s_lshl_b32 s50, s50, 7")
            k(f"s_add_u32 s50, s50, {s_task}")
            k("s_sub_u32 s51, 2048, s50")
            k("s_and_b32 s51, s51, 2047")
            k("s_mul_i32 s50, s50, 514")
            k("s_mul_i32 s51, s51, 514")
            k("s_sub_u32 s50, s50, s53")
            k("s_add_u32 s51, s51, s53")
            k("s_sub_u32 s52, s51, 512")
            k(f"v_mov_b32 v{A[row]}, s52")
            k(f"v_mov_b32 v{tmp}, s50")
            k(f"v_cndmask_b32 v{A[row]}, v{A[row]}, v{tmp}, vcc")
            k(f"v_add_u32 v{A[row]}, v{A[row]}, v{l16}")
            k("s_add_u32 s50, s50, 512")
            k(f"v_mov_b32 v{B[row]}, s50")
            k("s_add_u32 s52, s51, 512")
            k(f"v_writelane_b32 v{B[row]}, s52, 63")
            k("s_sub_u32 s51, s51, s53")
            k("s_sub_u32 s51, s51, s53")
            k(f"v_writelane_b32 v{B[row]}, s51, 0")
    def wide(row):
        raw = W + 16 + 8*row
        vm.issue(f"buffer_load_dwordx4 v[{raw}:{raw+3}], v{A[row]}, s[{SWR}:{SWR+3}], 0 offen", "Wr")
        vm.issue(f"buffer_load_dwordx4 v[{raw+4}:{raw+7}], v{A[row]}, s[{SWI}:{SWI+3}], 0 offen", "Wr")
    def tail(row):
        k("s_mov_b32 exec_lo, 0x80000001")
        k("s_mov_b32 exec_hi, 0x80000001")
        vm.issue(f"buffer_load_dword v{WX+2*row}, v{B[row]}, s[{SWR}:{SWR+3}], 0 offen", "Wr")
        vm.issue(f"buffer_load_dword v{WX+2*row+1}, v{B[row]}, s[{SWI}:{SWI+3}], 0 offen", "Wr")
        k("s_mov_b64 exec, -1")
    return addr, [lambda: wide(0), lambda: tail(0), lambda: wide(1), lambda: tail(1)]

def w_shuffle3(k, R, s_task, TP, vT):
    W = R["W"]; WX = R["WX"]; vN, vQ = R["n"], R["q"]
    k("s_mul_i32 s50, s3, 1152")
    k(f"s_add_u32 s50, s50, {WB}")
    k(f"s_and_b32 s51, {s_task}, 1")
    k("v_cmp_gt_u32 vcc, 32, v0")
    k(f"v_mov_b32 v{vT}, 64")
    k(f"v_cndmask_b32 v{vT}, v{vT}, 0, vcc")
    k(f"v_lshl_add_u32 v{vT}, v0, 4, v{vT}")
    k(f"v_add_u32 v{vT}, s50, v{vT}")
    k(f"v_bfe_u32 v{vT+1}, v0, 2, 2")
    k(f"v_lshlrev_b32 v{vT+1}, 6, v{vT+1}")
    k(f"v_lshl_add_u32 v{vT+1}, v{vQ}, 8, v{vT+1}")
    k(f"v_sub_u32 v{vT+2}, {576 + 992}, v{vT+1}")
    k(f"v_cndmask_b32 v{vT+1}, v{vT+2}, v{vT+1}, vcc")
    k(f"v_and_b32 v{vT+2}, 3, v0")
    k(f"v_lshl_add_u32 v{vT+1}, v{vT+2}, 3, v{vT+1}")
    k(f"v_add_u32 v{vT+1}, s50, v{vT+1}")
    k(f"v_mov_b32 v{vT+2}, -32")
    k(f"v_mov_b32 v{vT+3}, 32")
    k(f"v_cndmask_b32 v{vT+2}, v{vT+2}, v{vT+3}, vcc")
    k(f"v_add_u32 v{vT+2}, v{vT+1}, v{vT+2}")
    k("s_lshl_b32 s52, s51, 4")
    k("s_xor_b32 s53, s52, 16")
    k(f"v_mov_b32 v{vT+3}, s53")
    k(f"v_mov_b32 v{vT+4}, s52")
    k(f"v_cndmask_b32 v{vT+3}, v{vT+3}, v{vT+4}, vcc")
    k(f"v_and_b32 v{vT+4}, 31, v0")
    k(f"v_cmp_eq_u32 s[62:63], 31, v{vT+4}")
    for row in range(2):
        for part in range(2):
            raw = W + 16 + 8*row + 4*part
            tp = TP + 8*row + 4*part
            k(f"v_mov_b32_dpp v{vT+4}, v{raw} wave_shl:1 row_mask:0xf bank_mask:0xf")
            k(f"v_cndmask_b32 v{vT+4}, v{vT+4}, v{WX+2*row+part}, s[62:63]")
            for j in range(3):
                k(f"v_alignbit_b32 v{raw+j}, v{raw+j+1}, v{raw+j}, v{vT+3}")
            k(f"v_alignbit_b32 v{raw+3}, v{vT+4}, v{raw+3}, v{vT+3}")
            k(f"ds_write_b128 v{vT}, v[{raw}:{raw+3}]")
            k(f"ds_read_b64_tr_b16 v[{tp}:{tp+1}], v{vT+1}")
            k(f"ds_read_b64_tr_b16 v[{tp+2}:{tp+3}], v{vT+2}")
    k(f"v_mov_b32 v{vT+4}, 0x80008000")
    k(f"v_cndmask_b32 v{vT+4}, v{vT+4}, 0, vcc")
    k(f"v_mov_b32 v{vT+5}, 0xffff0000")
    k(f"v_mov_b32 v{vT+6}, 0x80000000")
    k(f"v_cndmask_b32 v{vT+6}, 0, v{vT+6}, vcc")
    for x in range(4):
        k(f"v_lshlrev_b32 v{WX+x}, s53, v{WX+x}")
        k(f"v_and_b32 v{WX+x}, v{vT+5}, v{WX+x}")
    for row in range(2):
        k(f"v_xor_b32 v{WX+2*row+1}, v{WX+2*row+1}, v{vT+6}")
    for row in range(2):
        k(f"s_waitcnt lgkmcnt({6 if row == 0 else 0})")
        for x in range(8):
            r = TP + 8*row + x
            k(f"v_mov_b32_dpp v{r}, v{r} row_mirror row_mask:0xc bank_mask:0xf")
        for x in range(4):
            r = TP + 8*row + 4 + x
            k(f"v_xor_b32 v{r}, v{r}, v{vT+4}")
        for part in range(2):
            for t in range(2):
                for h in range(2):
                    src = TP + 8*row + 4*part + 2*t + h
                    dst = W + 16*row + 8*t + 4*part + 2*h
                    k(f"v_lshlrev_b32 v{dst}, 16, v{src}")
                    k(f"v_and_b32 v{dst+1}, v{vT+5}, v{src}")
    k("s_mov_b32 exec_lo, 1")
    k("s_mov_b32 exec_hi, 1")
    for row in range(2):
        r = W + 16*row
        k(f"v_add_f32 v{r}, v{r}, v{WX+2*row}")
        k(f"v_add_f32 v{r+4}, v{r+4}, v{WX+2*row+1}")
        k(f"v_mul_f32 v{r}, 0.5, v{r}")
        k(f"v_mul_f32 v{r+4}, 0.5, v{r+4}")
    k("s_mov_b64 exec, -1")

def p1c(k, vm, s_s2, s_db, lb, after_const=None, after_x=None, after_mfma=None, in_mfma=None, sc1=True, cheb=True, gpearly=False):
    SX, SG = SRD_A, SRD_B
    fl = " sc1" if sc1 else ""
    vT = 2
    vGW = 20
    vCB = 36
    vQ = 36
    vR = 68
    vAa = 84
    vXo = 86
    vPk, vRd, vSt, vGt, vS1 = 136, 137, 138, 139, 140
    ACC = 144
    vAng = 144
    vA = 176
    k.c("x DMA address")
    k(f"v_lshrrev_b32 v{vT}, 4, v0")
    k(f"v_lshlrev_b32 v{vT+1}, 2, v{vT}")
    k(f"v_and_b32 v{vT+2}, 15, v0")
    k(f"v_xor_b32 v{vT+1}, v{vT+1}, v{vT+2}")
    k(f"v_lshlrev_b32 v{vT+1}, 4, v{vT+1}")
    k(f"v_lshl_add_u32 v{vXo}, v{vT}, 14, v{vT+1}")
    k(f"s_lshl_b32 s50, {s_s2}, 10")
    k(f"s_lshl_b32 s51, {s_db}, 8")
    k(f"s_add_u32 s50, s50, s51")
    k(f"s_lshl_b32 s51, s3, 18")
    k(f"s_add_u32 s50, s50, s51")
    k(f"s_lshl_b32 s52, s3, 12")
    if lb: k(f"s_add_u32 s52, s52, {lb}")
    k.c("B constants, part 1")
    k("s_and_b32 s54, s3, 3")
    k("s_lshr_b32 s55, s3, 2")
    k(f"v_bfe_u32 v{vT}, v0, 1, 4")
    k("s_lshl_b32 s56, s54, 4")
    k(f"v_add_u32 v{vT}, s56, v{vT}")
    k(f"v_cvt_f32_u32 v{vT+1}, v{vT}")
    k(f"v_mul_f32 v{vT+2}, {fhex(1/128)}, v{vT+1}")
    k(f"v_cvt_f32_u32 v{vT+3}, {s_s2}")
    k(f"v_mul_f32 v{vT+3}, {fhex(1/2048)}, v{vT+3}")
    k(f"v_mul_f32 v{vT+3}, v{vT+3}, v{vT+1}")
    k(f"v_and_b32 v{vT+4}, 1, v0")
    k(f"v_cvt_f32_u32 v{vT+5}, v{vT+4}")
    k(f"v_fmac_f32 v{vT+3}, 0.25, v{vT+5}")
    k(f"v_lshl_or_b32 v{vT+6}, v{vT}, 1, v{vT+4}")
    k(f"v_cmp_eq_u32 vcc, 1, v{vT+6}")
    k(f"v_mov_b32 v{vT+7}, 0.5")
    k(f"v_cndmask_b32 v{vT+2}, v{vT+2}, v{vT+7}, vcc")
    k(f"v_mov_b32 v{vT+7}, 0")
    k(f"v_cndmask_b32 v{vT+3}, v{vT+3}, v{vT+7}, vcc")
    k(f"v_lshrrev_b32 v{vT+4}, 5, v0")
    k(f"v_lshlrev_b32 v{vT+4}, 3, v{vT+4}")
    k(f"v_cvt_f32_u32 v{vT+4}, v{vT+4}")
    k(f"v_fmac_f32 v{vT+3}, v{vT+4}, v{vT+2}")
    vD, vA0, vK = vT + 2, vT + 3, vT + 8
    for t in range(2):
        an = vAng + 8 * t
        for j in range(8):
            kk = 16 * t + j
            if kk == 0: k(f"v_mov_b32 v{an+j}, v{vA0}")
            else: k(f"{FM} v{an+j}, v{vD}, {fhex(float(kk))}, v{vA0}")
        for j in range(8): k(f"v_cos_f32 v{an+j}, v{an+j}")
    k(f"v_mul_f32 v{vK}, {fhex(16.0)}, v{vD}")
    k(f"v_cos_f32 v{vK}, v{vK}")
    k(f"v_add_f32 v{vK}, v{vK}, v{vK}")
    pro_wait(k)
    sn(k, "f_ka")
    k.srd(SX, S_PX, S_PX + 1, 2048 * 512 * 2)
    for i in range(4):
        k(f"s_add_u32 m0, s52, {i*1024}")
        k(f"s_add_u32 s53, s50, {i*4*16384}")
        if i == 0:
            k.srd(SG, S_PGW, S_PGW + 1, 1024)
            k(f"s_lshl_b32 s51, {s_db}, 8")
            k(f"v_lshlrev_b32 v{vT+9}, 4, v0")
            k("s_mov_b64 exec, 0xffff")
            k(f"s_mov_b32 m0, {GWB}")
            vm.issue(f"buffer_load_dwordx4 v{vT+9}, s[{SG}:{SG+3}], s51 offen lds", "x")
            k("s_mov_b64 exec, -1")
            k(f"s_add_u32 m0, s52, {i*1024}")
        vm.issue(f"buffer_load_dwordx4 v{vXo}, s[{SX}:{SX+3}], s53 offen lds", "x")
    sn(k, "f_iss")
    k.c("B constants, part 2: c[t] = K c[t-1] - c[t-2]")
    for t in range(8):
        an = vAng + 8 * (t & 1); ap = vAng + 8 * ((t + 1) & 1)
        if t >= 2:
            for j in range(8): k(f"v_fma_f32 v{an+j}, v{vK}, v{ap+j}, -v{an+j}")
        for j in range(4): k(f"v_cvt_pk_bf16_f32 v{vCB+4*t+j}, v{an+2*j}, v{an+2*j+1}")
    sn(k, "f_c2")
    if after_const: after_const()
    sn(k, "f_wr")
    k.c("A frag addresses")
    k(f"v_bfe_u32 v{vT}, v0, 2, 2")
    k(f"v_lshrrev_b32 v{vT+1}, 5, v0")
    k(f"v_lshl_add_u32 v{vT+1}, v{vT+1}, 3, v{vT}")
    k(f"v_lshlrev_b32 v{vT+1}, 8, v{vT+1}")
    k(f"v_bfe_u32 v{vT+4}, v0, 4, 1")
    k(f"v_bfe_u32 v{vT+5}, v0, 1, 1")
    k(f"v_lshl_add_u32 v{vT+4}, v{vT+4}, 1, v{vT+5}")
    k(f"v_and_b32 v{vT+5}, 1, v0")
    k(f"v_lshl_add_u32 v{vT+1}, v{vT+5}, 3, v{vT+1}")
    if lb: k(f"v_add_u32 v{vT+1}, {lb}, v{vT+1}")
    for e in range(2):
        k(f"s_lshl_b32 s58, s55, 1")
        k(f"s_add_u32 s58, s58, {e}")
        k(f"v_xor_b32 v{vT+6}, s58, v{vT}")
        k(f"v_lshl_add_u32 v{vT+6}, v{vT+6}, 2, v{vT+4}")
        k(f"v_lshl_add_u32 v{vAa+e}, v{vT+6}, 4, v{vT+1}")
    k.c("tail addresses")
    k(f"v_and_b32 v{vT}, 31, v0")
    k(f"s_lshl_b32 s58, s54, 5")
    k(f"v_add_u32 v{vT}, s58, v{vT}")
    k(f"v_mul_u32_u24 v{vT}, 272, v{vT}")
    k(f"v_lshrrev_b32 v{vT+1}, 5, v0")
    k(f"v_lshl_add_u32 v{vT}, v{vT+1}, 4, v{vT}")
    k(f"s_lshl_b32 s58, s55, 7")
    k(f"s_add_u32 s58, s58, {32768+lb}")
    k(f"v_add_u32 v{vPk}, s58, v{vT}")
    k(f"v_lshrrev_b32 v{vT}, 4, v0")
    k(f"s_lshl_b32 s58, s3, 4")
    k(f"v_add_u32 v{vT+1}, s58, v{vT}")
    k(f"v_mul_u32_u24 v{vT+1}, 272, v{vT+1}")
    k(f"v_and_b32 v{vT+2}, 15, v0")
    k(f"v_lshl_add_u32 v{vT+1}, v{vT+2}, 4, v{vT+1}")
    k(f"v_add_u32 v{vRd}, {32768+lb}, v{vT+1}")
    k(f"v_lshrrev_b32 v{vT+3}, 1, v{vT}")
    k(f"v_lshlrev_b32 v{vT+3}, 15, v{vT+3}")
    k(f"v_and_b32 v{vT+4}, 1, v{vT}")
    k(f"v_lshl_add_u32 v{vT+3}, v{vT+4}, 10, v{vT+3}")
    k(f"v_lshl_add_u32 v{vSt}, v{vT+2}, 4, v{vT+3}")
    k(f"v_lshrrev_b32 v{vT+5}, 2, v0")
    k(f"s_lshl_b32 s59, s3, 4")
    k(f"v_add_u32 v{vT+5}, s59, v{vT+5}")
    k(f"v_and_b32 v{vT+6}, 3, v0")
    k(f"v_and_b32 v{vT+7}, 3, v{vT+5}")
    k(f"v_xor_b32 v{vT+6}, v{vT+6}, v{vT+7}")
    k(f"v_lshlrev_b32 v{vT+6}, 6, v{vT+6}")
    k(f"v_lshl_add_u32 v{vGt}, v{vT+5}, 8, v{vT+6}")
    if lb: k(f"v_add_u32 v{vGt}, {lb}, v{vGt}")
    k(f"v_lshlrev_b32 v{vS1}, 2, v{vT+5}")
    k(f"s_lshl_b32 s58, s3, 18")
    k(f"s_lshl_b32 s59, {s_s2}, 11")
    k(f"s_add_u32 s58, s58, s59")
    k(f"s_lshl_b32 s59, {s_db}, 8")
    k(f"s_add_u32 s58, s58, s59")
    k(f"s_add_u32 s58, s58, {R_OFF}")
    k(f"s_lshl_b32 s57, {s_db}, 4")
    k(f"s_add_u32 s57, s57, {s_s2}")
    k(f"s_lshl_b32 s57, s57, 9")
    k(f"s_add_u32 s57, s57, {GP_OFF}")
    sn(k, "f_const")
    k(f"v_and_b32 v{vT}, 3, v0")
    k(f"v_lshlrev_b32 v{vT}, 6, v{vT}")
    k(f"v_add_u32 v{vT}, {GWB}, v{vT}")
    vm.wait("x")
    k("s_barrier")
    sn(k, "f_x")
    if after_x: after_x()
    sn(k, "f_wr2")
    def rd(t):
        for e in range(2):
            for h in range(2):
                r = vA + e*32 + t*4 + h*2
                k(f"ds_read_b64_tr_b16 v[{r}:{r+1}], v{vAa+e} offset:{t*4096 + h*1024}")
    def mf(t):
        for e in range(2):
            c = "0" if t == 0 else f"v[{ACC+16*e}:{ACC+16*e+15}]"
            k(f"v_mfma_f32_32x32x16_bf16 v[{ACC+16*e}:{ACC+16*e+15}], v[{vA+e*32+t*4}:{vA+e*32+t*4+3}], v[{vCB+4*t}:{vCB+4*t+3}], {c}")
    rd(0); rd(1); rd(2)
    for t in range(8):
        if t + 3 < 8:
            k("s_waitcnt lgkmcnt(8)"); mf(t); rd(t + 3)
        else:
            k(f"s_waitcnt lgkmcnt({4*(7-t)})"); mf(t)
        if in_mfma and t in in_mfma: in_mfma[t]()
    k.c("gate partial (x tile still in LDS); overlaps the last MFMAs")
    for e in range(4):
        k(f"ds_read_b128 v[{vA+4*e}:{vA+4*e+3}], v{vGt} offset:{16*e}")
        k(f"ds_read_b128 v[{vGW+4*e}:{vGW+4*e+3}], v{vT} offset:{16*e}")
    if after_mfma: after_mfma()
    sn(k, "f_mf")
    k.c("pack, transpose through LDS; gate partial interleaved")
    pk = []
    for e in range(2):
        for g in range(4):
            for h in range(2):
                pk.append(f"v_cvt_pk_bf16_f32 v{vQ+e*8+g*2+h}, v{ACC+16*e+4*g+2*h}, v{ACC+16*e+4*g+2*h+1}")
        for pr in range(2):
            q = vQ + e*8 + pr*4
            pk.append(f"v_permlane32_swap_b32 v{q}, v{q+2}")
            pk.append(f"v_permlane32_swap_b32 v{q+1}, v{q+3}")
            pk.append(f"ds_write_b128 v{vPk}, v[{q}:{q+3}] offset:{e*64 + pr*32}")
    if gpearly:
        n1 = len(pk) // 2
        for x in pk[:n1]: k(x)
        k("s_waitcnt lgkmcnt(2)")
        dots = [f"v_mov_b32 v{vT+7}, 0", f"v_mov_b32 v{vT+6}, 0"]
        dots += [f"v_dot2_f32_bf16 v{vT+6+(e&1)}, v{vA+e}, v{vGW+e}, v{vT+6+(e&1)}" for e in range(16)]
        for x in interleave(dots, pk[n1:]): k(x)
        k(f"v_add_f32 v{vT+7}, v{vT+7}, v{vT+6}")
        k(f"v_add_f32_dpp v{vT+7}, v{vT+7}, v{vT+7} quad_perm:[1,0,3,2] row_mask:0xf bank_mask:0xf")
        k(f"v_add_f32_dpp v{vT+7}, v{vT+7}, v{vT+7} quad_perm:[2,3,0,1] row_mask:0xf bank_mask:0xf")
        k(f"s_mov_b32 exec_lo, 0x11111111")
        k(f"s_mov_b32 exec_hi, 0x11111111")
        vm.issue(f"buffer_store_dword v{vT+7}, v{vS1}, s[{SRD_WS}:{SRD_WS+3}], s57 offen{fl}", "gp")
        k("s_mov_b64 exec, -1")
    else:
        for x in pk: k(x)
    sn(k, "f_pk")
    k("s_waitcnt lgkmcnt(0)")
    sn(k, "f_pkw")
    k("s_barrier")
    sn(k, "f_pkb")
    for i in range(4):
        k(f"ds_read_b128 v[{vR+4*i}:{vR+4*i+3}], v{vRd} offset:{i*4*272}")
    for i in range(4):
        k(f"s_waitcnt lgkmcnt({3-i})")
        k(f"s_add_u32 s59, s58, {i*2*32768}")
        vm.issue(f"buffer_store_dwordx4 v[{vR+4*i}:{vR+4*i+3}], v{vSt}, s[{SRD_WS}:{SRD_WS+3}], s59 offen{fl}", "Rst")
    sn(k, "f_rst")
    if gpearly: return
    k(f"v_mov_b32 v{vT+7}, 0")
    for e in range(16):
        k(f"v_dot2_f32_bf16 v{vT+7}, v{vA+e}, v{vGW+e}, v{vT+7}")
    k(f"v_add_f32_dpp v{vT+7}, v{vT+7}, v{vT+7} quad_perm:[1,0,3,2] row_mask:0xf bank_mask:0xf")
    k(f"v_add_f32_dpp v{vT+7}, v{vT+7}, v{vT+7} quad_perm:[2,3,0,1] row_mask:0xf bank_mask:0xf")
    k(f"v_and_b32 v{vT+6}, 3, v0")
    k(f"v_cmp_eq_u32 vcc, 0, v{vT+6}")
    k("s_and_saveexec_b64 s[60:61], vcc")
    vm.issue(f"buffer_store_dword v{vT+7}, v{vS1}, s[{SRD_WS}:{SRD_WS+3}], s57 offen{fl}", "gp")
    k("s_mov_b64 exec, s[60:61]")
```

```python
import fused4, sys, roles
e7 = ((0,1,2),(3,4),(5,6),())
O = ("touch", "w2early", "rflag", "g1defer", "cshare", "p1c", "ws3", "v3", "wrm", "g1post")
base = dict(w56=True, nshadow=3, pos=(3,6,9))
fused4.build("f5_m1.s", None, opts=O, esched=e7, g1=dict(D=2, inloop=1), **base)
fused4.build("f5_m2.s", None, opts=O, esched=e7, g1=dict(D=2, inloop=0), **base)
fused4.build("f5_m3.s", None, opts=O, esched=((),(),(0,1,2),(3,4),(5,6)), fiss_at="W", fchk_at="W3", g1=dict(D=2, inloop=1), **base)
```

```python
import roles, sys
from roles import *
NAME = "gated_mix__spectral_gfnet__dense_activation_gelu__prompt_kernel"
import os
RF_OFF = 0xC00000 + int(os.environ.get('RFD', 0)); TF_OFF = 0xC04000 + int(os.environ.get('TFD', 0)); HF_OFF = 0xC10000 + int(os.environ.get('HFD', 0))
PSLP = int(os.environ.get('PSLP', 0))
SRD_DBG = 96
NL, NH = 78, 79
VS = 248
SPIN = 1 << 16
FB = 81920

def wave0(k):
    L = k.newlabel("w0skip")
    k("s_cmp_lg_u32 s3, 0")
    k(f"s_cbranch_scc1 {L}")
    return L

def nonce_publish(k):
    L = k.newlabel("npub")
    k("s_or_b32 s100, s2, s3")
    k("s_cmp_lg_u32 s100, 0")
    k(f"s_cbranch_scc1 {L}")
    k(f"s_memrealtime s[{NL}:{NH}]")
    k("s_waitcnt lgkmcnt(0)")
    k(f"s_or_b32 s{NL}, s{NL}, 1")
    k(f"v_mov_b32 v{VS+2}, s{NL}")
    k(f"v_mov_b32 v{VS+3}, s{NH}")
    k(f"v_mov_b32 v{VS}, 0")
    k("s_mov_b64 exec, 1")
    k(f"buffer_store_dwordx2 v[{VS+2}:{VS+3}], v{VS}, s[{SRD_DBG}:{SRD_DBG+3}], 0 offen sc1")
    k("s_mov_b64 exec, -1")
    k.label(L)

def nonce_issue(k):
    L = wave0(k)
    k(f"v_mov_b32 v{VS}, 0")
    k(f"buffer_load_dwordx2 v[{VS+2}:{VS+3}], v{VS}, s[{SRD_DBG}:{SRD_DBG+3}], 0 offen")
    k.label(L)

def nonce_check(k, issued=True):
    Lr, Lok, Lld = k.newlabel("nretry"), k.newlabel("nok"), k.newlabel("nld")
    k(f"s_mov_b32 s49, {SPIN}")
    k(f"v_mov_b32 v{VS}, 0")
    if not issued:
        k(f"s_branch {Lld}")
    k.label(Lr)
    k(f"v_readfirstlane_b32 s{NL}, v{VS+2}")
    k(f"v_readfirstlane_b32 s{NH}, v{VS+3}")
    k(f"s_cmp_lg_u32 s{NL}, 0")
    k(f"s_cbranch_scc1 {Lok}")
    k("s_sub_u32 s49, s49, 1")
    k("s_cmp_eq_u32 s49, 0")
    k(f"s_cbranch_scc1 {Lok}")
    k.label(Lld)
    k(f"buffer_load_dwordx2 v[{VS+2}:{VS+3}], v{VS}, s[{SRD_DBG}:{SRD_DBG+3}], 0 offen sc1")
    k("s_waitcnt vmcnt(0)")
    k(f"s_branch {Lr}")
    k.label(Lok)

def flag_store(k, nl, addr_fn):
    addr_fn()
    k(f"v_mov_b32 v{VS+2}, s{NL}")
    k(f"v_mov_b32 v{VS+3}, s{NH}")
    k(f"s_mov_b64 exec, {(1 << nl) - 1:#x}")
    k(f"buffer_store_dwordx2 v[{VS+2}:{VS+3}], v{VS}, s[{SRD_WS}:{SRD_WS+3}], 0 offen sc1")
    k("s_mov_b64 exec, -1")

def poll(k, nfl, soff_fn, second=None, slp=0, mask=False, allw=False):
    L = k.newlabel('pollw') if allw else wave0(k)
    soff_fn()
    if nfl < 64:
        k(f"v_min_u32 v{VS}, {nfl-1}, v0")
        k(f"v_lshlrev_b32 v{VS}, 3, v{VS}")
    else:
        k(f"v_lshlrev_b32 v{VS}, 3, v0")
    if second is not None: k(f"v_mov_b32 v{VS+1}, 0")
    k(f"s_mov_b32 s48, {SPIN}")
    Ll = k.newlabel("poll")
    k.label(Ll)
    if slp and not isinstance(slp, tuple): k(f"s_sleep {slp}")
    k(f"buffer_load_dwordx2 v[{VS+2}:{VS+3}], v{VS}, s[{SRD_WS}:{SRD_WS+3}], s49 offen sc1")
    if second is not None:
        k(f"buffer_load_dwordx2 v[{VS+4}:{VS+5}], v{VS+1}, s[{SRD_WS}:{SRD_WS+3}], s49 offen offset:{second} sc1")
    k("s_waitcnt vmcnt(0)")
    k(f"v_cmp_eq_u32 vcc, s{NL}, v{VS+2}")
    k(f"v_cmp_eq_u32 s[50:51], s{NH}, v{VS+3}")
    k("s_and_b64 vcc, vcc, s[50:51]")
    if second is not None:
        k(f"v_cmp_eq_u32 s[50:51], s{NL}, v{VS+4}")
        k("s_and_b64 vcc, vcc, s[50:51]")
        k(f"v_cmp_eq_u32 s[50:51], s{NH}, v{VS+5}")
        k("s_and_b64 vcc, vcc, s[50:51]")
    k("s_cmp_eq_u64 vcc, exec")
    k(f"s_cbranch_scc1 {L}")
    if isinstance(slp, tuple):
        lv = slp if isinstance(slp[0], tuple) else (slp,)
        Ln = k.newlabel("nobo")
        k("s_bcnt1_i32_b64 s50, vcc")
        k(f"s_cmp_ge_u32 s50, {lv[-1][0]}")
        k(f"s_cbranch_scc1 {Ln}")
        k(f"s_sleep {lv[-1][1]}")
        for thr, sl in lv[-2::-1]:
            k(f"s_cmp_ge_u32 s50, {thr}")
            k(f"s_cbranch_scc1 {Ln}")
            k(f"s_sleep {sl}")
        k.label(Ln)
    k("s_sub_u32 s48, s48, 1")
    k("s_cmp_lg_u32 s48, 0")
    k(f"s_cbranch_scc1 {Ll}")
    k.label(L)
    if not allw: k("s_barrier")

def poll3(k, soff_fn, lv, second=None):
    L = wave0(k)
    soff_fn()
    k(f"v_lshlrev_b32 v{VS}, 3, v0")
    k(f"s_mov_b32 s48, {SPIN}")
    Ll, Lx = k.newlabel("poll"), k.newlabel("pollx")
    if second is not None:
        k(f"v_mov_b32 v{VS+1}, 0")
        L2 = k.newlabel("poll2nd")
        k.label(L2)
        k(f"buffer_load_dwordx2 v[{VS+2}:{VS+3}], v{VS}, s[{SRD_WS}:{SRD_WS+3}], s49 offen sc1")
        k(f"buffer_load_dwordx2 v[{VS+4}:{VS+5}], v{VS+1}, s[{SRD_WS}:{SRD_WS+3}], s49 offen offset:{second} sc1")
        k("s_waitcnt vmcnt(0)")
        k(f"v_cmp_eq_u32 vcc, s{NL}, v{VS+4}")
        k(f"v_cmp_eq_u32 s[50:51], s{NH}, v{VS+5}")
        k("s_and_b64 vcc, vcc, s[50:51]")
        k("s_cmp_eq_u64 vcc, exec")
        Lc = k.newlabel("pollc")
        k(f"s_cbranch_scc1 {Lc}")
        k(f"s_sleep {lv[0][1] + (lv[1][1] if len(lv) > 1 else 0)}")
        k("s_sub_u32 s48, s48, 1")
        k("s_cmp_lg_u32 s48, 0")
        k(f"s_cbranch_scc1 {L2}")
        k(f"s_branch {Lx}")
    k.label(Ll)
    k(f"buffer_load_dwordx2 v[{VS+2}:{VS+3}], v{VS}, s[{SRD_WS}:{SRD_WS+3}], s49 offen sc1")
    k("s_waitcnt vmcnt(0)")
    if second is not None: k.label(Lc)
    k(f"v_cmp_eq_u32 vcc, s{NL}, v{VS+2}")
    k(f"v_cmp_eq_u32 s[50:51], s{NH}, v{VS+3}")
    k("s_and_b64 vcc, vcc, s[50:51]")
    k("s_andn2_b64 exec, exec, vcc")
    k(f"s_cbranch_execz {Lx}")
    Ln = k.newlabel("nobo")
    k("s_bcnt1_i32_b64 s50, exec")
    k(f"s_cmp_le_u32 s50, {64 - lv[-1][0]}")
    k(f"s_cbranch_scc1 {Ln}")
    k(f"s_sleep {lv[-1][1]}")
    for thr, sl in lv[-2::-1]:
        k(f"s_cmp_le_u32 s50, {64 - thr}")
        k(f"s_cbranch_scc1 {Ln}")
        k(f"s_sleep {sl}")
    k.label(Ln)
    k("s_sub_u32 s48, s48, 1")
    k("s_cmp_lg_u32 s48, 0")
    k(f"s_cbranch_scc1 {Ll}")
    k.label(Lx)
    k("s_mov_b64 exec, -1")
    k.label(L)
    k("s_barrier")

def poll2(k, nfl, soff_fn, slots, wide=False, stag=6):
    L = wave0(k)
    soff_fn()
    if nfl < 64:
        k(f"v_min_u32 v{VS}, {nfl-1}, v0")
        k(f"v_lshlrev_b32 v{VS}, 3, v{VS}")
    else:
        k(f"v_lshlrev_b32 v{VS}, 3, v0")
    n = 4 if wide else 2
    NP = len(slots)
    for r in slots: k(f"v_mov_b32 v{r}, 0")
    k(f"s_mov_b32 s48, {SPIN}")
    def issue(r): k(f"buffer_load_dwordx{n} v[{r}:{r+n-1}], v{VS}, s[{SRD_WS}:{SRD_WS+3}], s49 offen sc1")
    for i, r in enumerate(slots):
        if i and stag: k(f"s_sleep {stag}")
        issue(r)
    Ll = k.newlabel("poll")
    k.label(Ll)
    for r in slots:
        k(f"s_waitcnt vmcnt({NP-1})")
        k(f"v_cmp_eq_u32 vcc, s{NL}, v{r}")
        k(f"v_cmp_eq_u32 s[50:51], s{NH}, v{r+1}")
        k("s_and_b64 vcc, vcc, s[50:51]")
        if wide:
            k(f"v_cmp_eq_u32 s[50:51], s{NL}, v{r+2}")
            k("s_and_b64 vcc, vcc, s[50:51]")
            k(f"v_cmp_eq_u32 s[50:51], s{NH}, v{r+3}")
            k("s_and_b64 vcc, vcc, s[50:51]")
        k("s_cmp_eq_u64 vcc, exec")
        k(f"s_cbranch_scc1 {L}")
        issue(r)
    k("s_sub_u32 s48, s48, 1")
    k("s_cmp_lg_u32 s48, 0")
    k(f"s_cbranch_scc1 {Ll}")
    k.label(L)
    k("s_barrier")

def dbg_stamps(k):
    for wg, base in ((8, 2), (177, 9)):
        L = k.newlabel("dbgst")
        k(f"s_cmp_lg_u32 s2, {wg}")
        k(f"s_cbranch_scc1 {L}")
        k("s_cmp_lg_u32 s3, 0")
        k(f"s_cbranch_scc1 {L}")
        k("s_waitcnt lgkmcnt(0)")
        for i in range(1, 8):
            k(f"s_sub_u32 s48, s{S_STAMP+2*i}, s{S_STAMP}")
            k(f"v_mov_b32 v{VS+2}, s48")
            k(f"v_mov_b32 v{VS}, {(base+i-1)*4}")
            k("s_mov_b64 exec, 1")
            k(f"buffer_store_dword v{VS+2}, v{VS}, s[{SRD_DBG}:{SRD_DBG+3}], 0 offen")
            k("s_mov_b64 exec, -1")
        k.label(L)

def build(fn, st=False, inner=0, dbg=False):
    k = K()
    k("s_cmp_ge_u32 s2, 256")
    k("s_cbranch_scc1 L_end")
    if st: stamps_clear(k); stamp(k, 0)
    prologue(k)
    k.srd(SRD_DBG, S_PDBG, S_PDBG + 1, 256)
    nonce_publish(k)
    k("s_and_b32 s72, s2, 7")
    k("s_lshr_b32 s73, s2, 3")
    k("s_and_b32 s76, s73, 7")
    k("s_lshr_b32 s74, s73, 3")
    k("s_lshl_b32 s75, s72, 2")
    k("s_add_u32 s75, s75, s74")
    k("s_lshr_b32 s74, s75, 1")
    k("s_and_b32 s75, s75, 1")
    R = final_regs()
    k("s_cmp_ge_u32 s73, 22")
    k("s_cbranch_scc1 L_notg1")
    k("s_and_b32 s70, s73, 1")
    k("s_lshl_b32 s71, s72, 1")
    k("s_add_u32 s70, s70, s71")
    k("s_lshr_b32 s71, s73, 1")
    gemm1(k, "s70", "s71", st=False, sc1=True, tail_wait=False, pre_epi=lambda: nonce_issue(k))
    stamp(k, 1, st)
    k("s_waitcnt vmcnt(0)")
    k("s_barrier")
    L = wave0(k)
    nonce_check(k)
    def a():
        k("s_lshl_b32 s48, s70, 9")
        k("s_lshl_b32 s49, s71, 3")
        k("s_add_u32 s48, s48, s49")
        k(f"s_add_u32 s48, s48, {HF_OFF}")
        k(f"v_lshl_add_u32 v{VS}, v0, 8, s48")
    flag_store(k, 2, a)
    k.label(L)
    stamp(k, 2, st)
    vm = VM(k)
    final_setup(k, "s74", "s75", "s76", R)
    for j in range(10): final_w2_dma(k, vm, R, j, j)
    k("s_branch L_final")
    k.label("L_notg1")
    k("s_cmp_ge_u32 s73, 30")
    k("s_cbranch_scc1 L_nop1")
    k("s_sub_u32 s77, s73, 22")
    k("s_and_b32 s70, s77, 1")
    k("s_lshl_b32 s71, s72, 1")
    k("s_add_u32 s70, s70, s71")
    k("s_lshr_b32 s71, s77, 1")
    k("s_lshl_b32 s77, s77, 3")
    k("s_add_u32 s77, s77, s72")
    p1(k, "s70", "s71", st=False, sc1=True, lb=FB, tail_wait=False, pre_epi=lambda: nonce_issue(k))
    stamp(k, 1, st)
    k("s_waitcnt vmcnt(0)")
    k("s_barrier")
    L = wave0(k)
    nonce_check(k)
    def a():
        k("s_lshl_b32 s48, s70, 2")
        k("s_add_u32 s48, s48, s71")
        k("s_lshl_b32 s48, s48, 3")
        k(f"s_add_u32 s48, s48, {RF_OFF}")
        k(f"v_lshl_add_u32 v{VS}, v0, 10, s48")
        k("s_lshl_b32 s48, s70, 9")
        k("s_lshl_b32 s49, s71, 3")
        k("s_add_u32 s48, s48, s49")
        k(f"s_add_u32 s48, s48, {HF_OFF + 88 - 8*256}")
        k(f"v_lshl_add_u32 v{VS+1}, v0, 8, s48")
        k("v_cmp_gt_u32 vcc, 8, v0")
        k(f"v_cndmask_b32 v{VS}, v{VS+1}, v{VS}, vcc")
    flag_store(k, 10, a)
    k.label(L)
    stamp(k, 2, st)
    k("s_branch L_p2")
    k.label("L_nop1")
    L = wave0(k)
    nonce_check(k, issued=False)
    k.label(L)
    k("s_cmp_lg_u32 s2, 240")
    k("s_cbranch_scc1 L_idle")
    k("s_mov_b32 s77, 64")
    k.label("L_p2")
    roles.P2_E1 = FB; roles.P2_SLAB = FB + 32768; roles.P2_E2 = FB + 32768
    vm = VM(k)
    final_setup(k, "s74", "s75", "s76", R)
    R2 = p2_regs()
    p2_pre(k, "s77", R2)
    for j in range(5): final_w2_dma(k, vm, R, j, j)
    p2_consts(k, "s77", R2)
    p2_addr(k, "s77", R2)
    k("s_waitcnt vmcnt(0)")
    p2_wfix(k, R2)
    def so():
        k("s_lshl_b32 s49, s72, 10")
        k(f"s_add_u32 s49, s49, {RF_OFF}")
    poll(k, 64, so)
    stamp(k, 3, st)
    p2_slab_dma(k, "s77", R2)
    k("s_waitcnt vmcnt(0)")
    k("s_barrier")
    p2_main(k, "s77", R2, st=0, sc1=True)
    stamp(k, 4, st)
    k("s_waitcnt vmcnt(0)")
    k("s_barrier")
    L = wave0(k)
    def a():
        k("s_lshl_b32 s48, s77, 3")
        k(f"s_add_u32 s48, s48, {TF_OFF}")
        k(f"v_lshl_add_u32 v{VS}, v0, 10, s48")
    flag_store(k, 32, a)
    k.label(L)
    for j in range(5, 10): final_w2_dma(k, vm, R, j, j)
    k("s_branch L_final")
    k.label("L_idle")
    vm = VM(k)
    final_setup(k, "s74", "s75", "s76", R)
    for j in range(10): final_w2_dma(k, vm, R, j, j)
    k.label("L_final")
    vm = VM(k)
    for j in range(10): vm.q.append(f"w2_{j}"); vm.seen.add(f"w2_{j}")
    final_addr(k, "s74", "s75", "s76", R)
    final_small_loads(k, vm, "s74", R)
    def so():
        k("s_lshl_b32 s49, s74, 1")
        k("s_add_u32 s49, s49, s75")
        k("s_lshl_b32 s49, s49, 8")
        k(f"s_add_u32 s49, s49, {HF_OFF}")
    poll(k, 15, so)
    stamp(k, 5, st)
    final_gp_loads(k, vm, "s74", R)
    def after_h():
        vm.wait("gp")
        final_gate(k, R)
    def hook_t3():
        def so():
            k("s_and_b32 s49, s2, 31")
            k("s_lshl_b32 s49, s49, 10")
            k(f"s_add_u32 s49, s49, {TF_OFF}")
        poll(k, 64, so, second=512)
        stamp(k, 6, st)
    final_main(k, "s74", "s75", "s76", R, vm, st=False, hook_t3=hook_t3, after_h=after_h)
    if st:
        k("s_waitcnt vmcnt(0)")
        stamp(k, 7, st)
        if dbg: dbg_stamps(k)
        else: stamps_store(k)
    k.label("L_end")
    k("s_endpgm")
    txt, info = make_file([(NAME, k.l)], [(None, 256, 512, 163840)])
    open(fn, "w").write(txt); print(info)

if __name__ == "__main__":
    build("f1.s")
    build("f1_st.s", st=True)
    build("f1_dbg.s", st=True, dbg=True)
```

```python
import roles, roles2, sys
from roles2 import *
from roles3 import *
import roles3
from fused import (NAME, RF_OFF, TF_OFF, HF_OFF, SRD_DBG, NL, NH, VS, SPIN, FB, wave0, nonce_publish, nonce_issue, nonce_check,
                   flag_store, poll, poll2, poll3, dbg_stamps)

def wave0not(k):
    L = k.newlabel("w0only")
    k("s_cmp_eq_u32 s3, 0")
    k(f"s_cbranch_scc1 {L}")
    return L

def build(fn, stmap=None, dbg=False, rot=4, g1=None, opts=(), dbrot=0, esched=((0,1,2),(3,4),(),()), w56=False, nshadow=3, pos=(3, 6, 9), fiss_at='A', fchk_at='W', tpre=9, tail4=0, rot_j=0, p1x=0, dbmap=(), ppr=None, ppt=None, t3m=False, slp=(0,0,0), pm=(False, False), tperm=False):
    nearly = sum(len(e) for e in esched)
    st = stmap is not None
    roles2.STMAP.clear()
    if st: roles2.STMAP.update(stmap)
    k = K()
    k("s_cmp_ge_u32 s2, 256")
    k("s_cbranch_scc1 L_end")
    if rot_j:
        k("s_lshr_b32 s100, s2, 3")
        k(f"s_add_u32 s100, s100, {rot_j}")
        k("s_and_b32 s100, s100, 31")
        k("s_lshl_b32 s100, s100, 3")
        k("s_and_b32 s2, s2, 7")
        k("s_or_b32 s2, s2, s100")
    if st: stamps_clear(k); stamp(k, 0)
    pro_issue(k)
    k("s_and_b32 s72, s2, 7")
    k("s_lshr_b32 s73, s2, 3")
    k(f"s_add_u32 s76, s73, {dbrot}")
    k("s_and_b32 s76, s76, 7")
    for jj, dd in dbmap:
        k(f"s_cmp_eq_u32 s73, {jj}")
        k(f"s_cselect_b32 s76, {dd}, s76")
    k("s_lshr_b32 s74, s73, 3")
    k("s_lshl_b32 s75, s72, 2")
    k("s_add_u32 s75, s75, s74")
    k("s_lshr_b32 s74, s75, 1")
    k("s_and_b32 s75, s75, 1")
    R = fin_regs()
    fin_setup_pre(k, "s76", R, 232)
    k("s_cmp_ge_u32 s73, 22")
    k("s_cbranch_scc1 L_notg1")
    k("s_and_b32 s70, s73, 1")
    k("s_lshl_b32 s71, s72, 1")
    k("s_add_u32 s70, s70, s71")
    k("s_lshr_b32 s71, s73, 1")
    vm = VM(k)
    def post():
        fin_srd(k)
        k.srd(SRD_DBG, S_PDBG, S_PDBG + 1, 256)
        nonce_publish(k)
    left = gemm1b(k, "s70", "s71", R, vm, rot=rot, post_issue=post, pre_epi=lambda: nonce_issue(k), defer=("g1defer" in opts), **(g1 or {}))
    sn(k, "st1")
    nlate = 0
    if "g1defer" in opts and "g1post" not in opts:
        for pr in left:
            for j in pr:
                for ii in range(2): w2_piece(k, vm, R, j, ii); nlate += 1
    final_addr(k, "s74", "s75", "s76", R)
    final_small_loads(k, vm, "s74", R)
    k(f"s_waitcnt vmcnt({nlate + 1 if 'g1defer' in opts else 0})")
    k("s_barrier")
    L = wave0(k)
    nonce_check(k)
    def a():
        k("s_lshl_b32 s48, s70, 9")
        k("s_lshl_b32 s49, s71, 3")
        k("s_add_u32 s48, s48, s49")
        k(f"s_add_u32 s48, s48, {HF_OFF}")
        k(f"v_lshl_add_u32 v{VS}, v0, 8, s48")
    flag_store(k, 2, a)
    k.label(L)
    sn(k, "st2")
    if "g1post" in opts:
        for pr in left:
            for j in pr:
                for ii in range(2): w2_piece(k, vm, R, j, ii)
    for j in (4, 5):
        for ii in range(2): w2_piece(k, vm, R, j, ii)
    k("s_branch L_final")
    k.label("L_notg1")
    k("s_cmp_ge_u32 s73, 30")
    k("s_cbranch_scc1 L_nop1")
    k("s_sub_u32 s77, s73, 22")
    k("s_and_b32 s70, s77, 1")
    k("s_lshl_b32 s71, s72, 1")
    k("s_add_u32 s70, s70, s71")
    k("s_lshr_b32 s71, s77, 1")
    if p1x: k(f"s_xor_b32 s71, s71, {p1x}")
    k("s_lshl_b32 s77, s77, 3")
    k("s_add_u32 s77, s77, s72")
    roles.P2_PITCH = 1032; roles.P2_E1 = FB; roles.P2_SLAB = FB + 32768; roles.P2_E2 = FB + 32768
    R2 = p2_regs3(); R2["srdw"] = (SRD_C, SRD_D)
    vm = VM(k)
    p2_nq(k, R2)
    def wshuf():
        if "ws3" in opts: w_shuffle3(k, R2, "s77", 148, 2)
        elif "ws2" in opts: w_shuffle2(k, R2, "s77", 148, 2)
        else: w_shuffle(k, R2, "s77", 87, 2)
    def wraw(vm):
        if "ws3" in opts: w_raw3(k, vm, "s77", R2, 4)
        else: w_raw_load(k, vm, "s77", R2, 4)
    def ai():
        p2_wsrd(k, R2)
        p2_wload_row(k, vm, "s77", R2, 0, 88, 4)
        k.srd(SRD_DBG, S_PDBG, S_PDBG + 1, 256)
    def am():
        if "rflag" not in opts and "wlate" not in opts: p2_wload_row(k, vm, "s77", R2, 1, 88, 4)
        k(f"v_mov_b32 v{VS}, 0")
        k(f"buffer_load_dwordx2 v[{VS+2}:{VS+3}], v{VS}, s[{SRD_DBG}:{SRD_DBG+3}], 0 offen")
    if "p1c" in opts:
        def ac():
            p2_wsrd(k, R2)
            k.srd(SRD_DBG, S_PDBG, S_PDBG + 1, 256)
            if "wrc" in opts: wraw(vm)
            if "wtouch" in opts:
                k("v_mov_b32 v12, 0")
                k("s_mov_b64 exec, 1")
                vm.issue(f"buffer_load_ushort v13, v12, s[{SRD_C}:{SRD_C+3}], 0 offen", "tch")
                vm.issue(f"buffer_load_ushort v14, v12, s[{SRD_D}:{SRD_D+3}], 0 offen", "tch")
                if "wtouch2" in opts:
                    for n_, off in enumerate((R_OFF, GP_OFF, RF_OFF, T3_OFF)):
                        k(f"s_mov_b32 s53, {off}")
                        vm.issue(f"buffer_load_dword v15, v12, s[{SRD_WS}:{SRD_WS+3}], s53 offen", "tch")
                k("s_mov_b64 exec, -1")
        def ax():
            if "wrc" not in opts and "wrm" not in opts and "v3" not in opts: wraw(vm)
        inm = None
        if "wrm" in opts:
            wa, wp = (w_raw3_parts if "ws3" in opts else w_raw_parts)(k, vm, "s77", R2)
            ac0 = ac
            def ac():
                ac0(); wa()
            inm = {0: wp[0], 2: wp[1], 4: wp[2], 6: wp[3]}
        p1c(k, vm, "s70", "s71", FB, after_const=ac, after_x=ax, after_mfma=am, in_mfma=inm, gpearly=("v3" in opts))
    else:
        p1b(k, vm, "s70", "s71", FB, after_issue=ai, after_mfma=am)
    sn(k, "st1")
    if "v3" in opts:
        if "v1" not in opts:
            if "wrm" not in opts: wraw(vm)
            fin_srd(k)
        sn(k, "f_wiss")
        vm.wait("Rst")
        sn(k, "f_wait")
    elif "p1c" in opts:
        fin_srd(k)
        if "wsl" not in opts:
            vm.wait("Wr")
            wshuf()
        sn(k, "f_wiss")
        vm.wait("gp")
        sn(k, "f_wait")
    elif "wlate" in opts:
        p2_consts(k, "s77", R2)
        p2_addr3(k, "s77", R2)
        sn(k, "f_p2c")
        vm.wait("gp")
        sn(k, "f_wait")
    elif "rflag" in opts:
        p2_wload_row(k, vm, "s77", R2, 1, 88, 4)
        fin_srd(k)
        if "c_pre" in opts: p2_addr3(k, "s77", R2)
        sn(k, "f_wiss")
        vm.wait("gp")
        sn(k, "f_wait")
    else:
        fin_srd(k)
        p2_consts(k, "s77", R2)
        p2_addr3(k, "s77", R2)
        sn(k, "f_p2c")
        k("s_waitcnt vmcnt(0)")
        sn(k, "f_wait")
    k("s_barrier")
    sn(k, "f_bar")
    nonce_check(k)
    L = k.newlabel("w0skip"); L2_ = k.newlabel("w0j")
    k("s_cmp_lg_u32 s3, 0")
    k(f"s_cbranch_scc1 {L}")
    def a():
        k("s_lshl_b32 s48, s70, 2")
        k("s_add_u32 s48, s48, s71")
        k("s_lshl_b32 s48, s48, 3")
        k(f"s_add_u32 s48, s48, {RF_OFF}")
        k(f"v_lshl_add_u32 v{VS}, v0, 10, s48")
        k("s_lshl_b32 s48, s70, 9")
        k("s_lshl_b32 s49, s71, 3")
        k("s_add_u32 s48, s48, s49")
        k(f"s_add_u32 s48, s48, {HF_OFF + 88 - 8*256}")
        k(f"v_lshl_add_u32 v{VS+1}, v0, 8, s48")
        k("v_cmp_gt_u32 vcc, 8, v0")
        k(f"v_cndmask_b32 v{VS}, v{VS+1}, v{VS}, vcc")
    flag_store(k, 10, a)
    if "v1" in opts:
        wraw(VM(k))
        fin_srd(k)
    if "wlate" in opts:
        p2_wload_row(k, VM(k), "s77", R2, 1, 148, 4)
        fin_srd(k)
    k(f"s_branch {L2_}")
    k.label(L)
    if "v1" in opts:
        wraw(VM(k))
        fin_srd(k)
    if "wlate" in opts:
        p2_wload_row(k, VM(k), "s77", R2, 1, 148, 4)
        fin_srd(k)
    if "w2early" in opts:
        for j in range(5):
            for ii in range(2): w2_piece(k, VM(k), R, j, ii)
    k.label(L2_)
    sn(k, "st2")
    if "rflag" in opts and "cshare" not in opts:
        p2_consts(k, "s77", R2)
        if "c_pre" not in opts: p2_addr3(k, "s77", R2)
        sn(k, "f_p2c")
        L = k.newlabel("ww"); L2_ = k.newlabel("wwj")
        k("s_cmp_lg_u32 s3, 0")
        k(f"s_cbranch_scc1 {L}")
        k("s_waitcnt vmcnt(1)")
        k(f"s_branch {L2_}")
        k.label(L)
        k(f"s_waitcnt vmcnt({10 if 'w2early' in opts else 0})")
        k.label(L2_)
    k("s_branch L_p2")
    k.label("L_nop1")
    k("s_sub_u32 s50, s2, 240")
    k("s_mul_i32 s50, s50, 688")
    k("s_lshl_b32 s51, s3, 6")
    k("s_add_u32 s50, s50, s51")
    k("v_add_u32 v2, s50, v0")
    k("v_lshlrev_b32 v2, 7, v2")
    pro_wait(k)
    if "touch" in opts:
        fin_srd(k)
        k(f"buffer_load_dword v241, v2, s[{SRD_C}:{SRD_C+3}], 0 offen")
        L = k.newlabel("t2")
        k("s_cmp_ge_u32 s3, 3")
        k(f"s_cbranch_scc1 {L}")
        k("v_add_u32 v2, 0x10000, v2")
        k(f"buffer_load_dword v242, v2, s[{SRD_C}:{SRD_C+3}], 0 offen")
        k.label(L)
    k.srd(SRD_DBG, S_PDBG, S_PDBG + 1, 256)
    k("s_cmp_lg_u32 s2, 240")
    k("s_cbranch_scc1 L_idle")
    k("s_mov_b32 s77, 64")
    vm = VM(k)
    p2_nq(k, R2)
    p2_wsrd(k, R2)
    if "p1c" in opts:
        wraw(vm)
        fin_srd(k)
        nonce_check(k, issued=False)
        k("s_waitcnt vmcnt(0)")
        if "wsl" not in opts and "v3" not in opts: wshuf()
    else:
        p2_wload_row(k, vm, "s77", R2, 0, 148, 4)
        if "cshare" not in opts: p2_consts(k, "s77", R2)
        p2_wload_row(k, vm, "s77", R2, 1, 148, 4)
        if "cshare" not in opts: p2_addr3(k, "s77", R2)
        fin_srd(k)
        nonce_check(k, issued=False)
        k("s_waitcnt vmcnt(0)")
    if "w2early" in opts:
        L = wave0not(k)
        for j in range(5):
            for ii in range(2): w2_piece(k, VM(k), R, j, ii)
        k.label(L)
    k.label("L_p2")
    vm = VM(k)
    if "cshare" in opts:
        if "wsl" in opts: wshuf()
        p2_addr3(k, "s77", R2)
        p2_consts_share(k, "s77", R2, FB)
        if "v3" in opts and "v1" not in opts:
            L = wave0not(k)
            k("s_waitcnt vmcnt(10)")
            wshuf()
            k.label(L)
        k("s_waitcnt lgkmcnt(0)")
        sn(k, "f_p2c")
    elif "wlate" not in opts: p2_wfix(k, R2)
    def so():
        k("s_lshl_b32 s49, s72, 10")
        k(f"s_add_u32 s49, s49, {RF_OFF}")
    if ppr: poll2(k, 64, so, (244, 246, 252)[:ppr[0]], stag=ppr[1])
    elif pm[0]: poll3(k, so, slp[0])
    else: poll(k, 64, so, slp=slp[0])
    sn(k, "st3")
    p2_slab_dma(k, "s77", R2)
    if "cshare" in opts:
        p2_consts_read(k, R2, FB)
        if "v1" in opts:
            k("s_waitcnt vmcnt(14)")
            wshuf()
        elif "v3" in opts:
            L = wave0(k)
            wshuf()
            k.label(L)
        if "p1c" not in opts:
            k("s_waitcnt vmcnt(4)")
            p2_wfix(k, R2)
        k("s_waitcnt lgkmcnt(0)")
    if "wlate" in opts:
        k("s_waitcnt vmcnt(4)")
        p2_wfix(k, R2)
    if "w2early" in opts:
        k("s_waitcnt vmcnt(0)")
    else:
        for j in range(5):
            for ii in range(2): w2_piece(k, vm, R, j, ii)
        k("s_waitcnt vmcnt(10)")
    k("s_barrier")
    sn(k, "p_slab")
    V = {}
    RF = dict(R)
    if nearly > 5: RF['hmap'] = {5: 212, 6: 220}
    def fiss():
        k("s_lshl_b32 s61, s74, 1")
        k("s_add_u32 s61, s61, s75")
        k("s_lshl_b32 s61, s61, 8")
        k(f"s_add_u32 s61, s61, {HF_OFF}")
        flags_issue(k, 15, "s61")
    def fchk():
        sn(k, "p_hw")
        flags_check(k, "s61", "s60")
        sn(k, "p_hfl")
        V["vm"] = VM(k)
        k(f"v_lshlrev_b32 v{R['h']}, 4, v0")
        h_base(k, "s74", "s75")
    def hook(name, idx):
        def f():
            if name == "A" and "w2early" in opts:
                L = wave0(k)
                for j in range(5):
                    for ii in range(2): w2_piece(k, VM(k), R, j, ii)
                k.label(L)
            if fchk_at == name: fchk()
            if fiss_at == name: fiss()
            if idx is not None:
                assert not esched[idx] or "vm" in V
                for j in esched[idx]: h_load(k, V["vm"], RF, j)
            if name == "B": final_addr(k, "s74", "s75", "s76", R)
        return f
    hA, hW, hW2, hW3, hB = hook("A", None), hook("W", 0), hook("W2", 1), hook("W3", 2), hook("B", 3)
    def hC():
        final_gp_loads(k, V["vm"], "s74", R, sc1=False)
        if len(esched) > 4:
            for j in esched[4]: h_load(k, V["vm"], RF, j)
        if w56:
            for j in (5, 6):
                for ii in range(2): w2_piece(k, V["vm"], R, j, ii)
    p2_main3(k, "s77", R2, lambda: V["vm"], dict(A=hA, W=hW, W2=hW2, W3=hW3, B=hB, C=hC, V=lambda: k("s_barrier")))
    sn(k, "st4")
    vm = V["vm"]
    def w2l(j):
        for ii in range(2): w2_piece(k, vm, R, j, ii)
    def w10():
        k("s_cmp_eq_u32 s65, 3")
        k(f"s_mov_b32 s71, {10*32768}")
        k(f"s_cselect_b32 s71, {9*32768}, s71")
        for ii in range(2):
            k(f"s_add_u32 m0, s68, {ii*1024}")
            k(f"s_add_u32 s67, s66, s71")
            if ii: k("s_add_u32 s67, s67, 8192")
            vm.issue(f"buffer_load_dwordx4 v{R['dma']}, s[{SRD_C}:{SRD_C+3}], s67 offen lds", "w2_10")
    items = []
    if not w56: items += [lambda: (w2l(5), w2l(6))]
    for j in range(nearly, 7): items.append(lambda j=j: h_load(k, vm, RF, j))
    for j in (7, 8, 9): items.append(lambda j=j: (w2l(j), h_load(k, vm, RF, j)))
    n_late = len(items) - min(len(items), nshadow)
    pre = items[:len(items) - n_late]; post = items[len(items) - n_late:]
    def tflag():
        vm.wait("t3st")
        if "w2_6" in vm.q: vm.wait("w2_6")
        k("s_barrier")
        L = wave0(k)
        def a():
            if tperm:
                k("s_and_b32 s48, s77, 7")
                k("s_lshl_b32 s48, s48, 3")
                k("s_bfe_u32 s49, s77, 0x30003")
                k("s_or_b32 s48, s48, s49")
                k("s_and_b32 s49, s77, 64")
                k("s_or_b32 s48, s48, s49")
                k("s_lshl_b32 s48, s48, 3")
            else:
                k("s_lshl_b32 s48, s77, 3")
            k(f"s_add_u32 s48, s48, {TF_OFF}")
            k(f"v_lshl_add_u32 v{VS}, v0, 10, s48")
        flag_store(k, 32, a)
        k.label(L)
        sn(k, "f_tfl")
    if tail4:
        assert not pre or nshadow == 0
        vm.wait("gp")
        final_gate(k, R)
        sn(k, "f_gate")
        gemm2_run(k, vm, RF, gseq(RF, range(0, 5)), True)
        sn(k, "f_g04")
        vm.wait("t3st")
        k("s_barrier")
        def late(v):
            nonlocal vm
            vm0 = vm; vm = v
            for f in items: f()
            h_load(k, vm, RF, 10); w10(); final_small_loads(k, vm, "s74", R)
            vm = vm0
        import copy
        Lo, Lj = k.newlabel("t4o"), k.newlabel("t4j")
        k("s_cmp_lg_u32 s3, 0")
        k(f"s_cbranch_scc1 {Lo}")
        v0 = VM(k); v0.q = list(vm.q); v0.seen = set(vm.seen)
        late(v0)
        def a():
            k("s_lshl_b32 s48, s77, 3")
            k(f"s_add_u32 s48, s48, {TF_OFF}")
            k(f"v_lshl_add_u32 v{VS}, v0, 10, s48")
        flag_store(k, 32, a)
        v0.q.append("fl")
        sn(k, "f_tfl")
        gemm2_run(k, v0, RF, gseq(RF, (5, 6)), False)
        k(f"s_branch {Lj}")
        k.label(Lo)
        v1 = VM(k); v1.q = list(vm.q); v1.seen = set(vm.seen)
        if tail4 == 1:
            gemm2_run(k, v1, RF, gseq(RF, (5,)), False)
            late(v1)
        else:
            late(v1)
            gemm2_run(k, v1, RF, gseq(RF, (5,)), False)
        k(f"v_mov_b32 v{VS}, 0")
        k("s_mov_b64 exec, 1")
        v1.issue(f"buffer_load_dword v{VS+2}, v{VS}, s[{SRD_WS}:{SRD_WS+3}], 0 offen", "fl")
        k("s_mov_b64 exec, -1")
        gemm2_run(k, v1, RF, gseq(RF, (6,)), False)
        k.label(Lj)
        assert v0.q == v1.q, (v0.q, v1.q)
        vm.q = list(v1.q); vm.seen = set(v1.seen) | set(v0.seen)
        sn(k, "f_g56")
        for grp in ((7,), (8, 9)) if tail4 < 3 else ((7, 8, 9),):
            vm.wait(f"w2_{grp[-1]}")
            k("s_barrier")
            gemm2_run(k, vm, RF, gseq(RF, grp), False)
        sn(k, "st5")
        k("s_branch L_t3")
    if tpre == -2: tflag()
    vm.wait("gp")
    final_gate(k, R)
    sn(k, "f_gate")
    if tpre == -1: tflag()
    aft = {}
    for n_, f in enumerate(pre): aft[pos[n_]] = f
    if 0 <= tpre < 9:
        f0 = aft.get(tpre)
        def both():
            tflag()
            if f0: f0()
        aft[tpre] = both
    gemm2_run(k, vm, RF, gseq(RF, range(0, 5)), True, after=aft)
    sn(k, "f_g04")
    if tpre >= 9: tflag()
    for f in post: f()
    h_load(k, vm, RF, 10); w10(); final_small_loads(k, vm, "s74", R)
    gemm2_run(k, vm, RF, gseq(RF, (5, 6)), False)
    sn(k, "f_g56")
    if nshadow >= len(items):
        vm.wait("w2_9")
        k("s_barrier")
        gemm2_run(k, vm, RF, gseq(RF, (7, 8, 9)), False)
    else:
        for j in (7, 8, 9):
            vm.wait(f"w2_{j}")
            k("s_barrier")
            gemm2_run(k, vm, RF, gseq(RF, (j,)), False)
    sn(k, "st5")
    k("s_branch L_t3")
    k.label("L_idle")
    fin_srd(k)
    L = wave0(k)
    nonce_check(k, issued=False)
    k.label(L)
    vm = VM(k)
    for j in range(10):
        for ii in range(2): w2_piece(k, vm, R, j, ii)
    final_addr(k, "s74", "s75", "s76", R)
    final_small_loads(k, vm, "s74", R)
    k.label("L_final")
    vm = VM(k)
    for j in range(10): vm.q.append(f"w2_{j}"); vm.seen.add(f"w2_{j}")
    def so():
        k("s_lshl_b32 s49, s74, 1")
        k("s_add_u32 s49, s49, s75")
        k("s_lshl_b32 s49, s49, 8")
        k(f"s_add_u32 s49, s49, {HF_OFF}")
    poll(k, 15, so, slp=slp[1])
    sn(k, "st5")
    final_gp_loads(k, vm, "s74", R)
    def after_h():
        vm.wait("gp")
        final_gate(k, R)
    def hook_t3():
        k.label("L_t3")
        def so():
            k("s_and_b32 s49, s2, 31")
            k("s_lshl_b32 s49, s49, 10")
            k(f"s_add_u32 s49, s49, {TF_OFF}")
        if ppt or t3m:
            vm.wait("w2_10")
            assert not vm.q, vm.q
            k("s_waitcnt vmcnt(0)")
        if ppt: poll2(k, 64, so, (104, 108, 112, 116)[:ppt[0]], wide=True, stag=ppt[1])
        elif pm[1]: poll3(k, so, slp[2], second=512)
        else: poll(k, 64, so, second=512, slp=slp[2])
        sn(k, "st6")
    final_main(k, "s74", "s75", "s76", R, vm, st=False, hook_t3=hook_t3, after_h=after_h, t3merge=bool(ppt or t3m))
    if st:
        k("s_waitcnt vmcnt(0)")
        sn(k, "st7")
        if dbg: dbg_stamps(k)
        else: stamps_store(k)
    k.label("L_end")
    k("s_endpgm")
    txt, info = make_file([(NAME, k.l)], [(None, 256, 512, 163840)])
    open(fn, "w").write(txt); print(info)

STD = {f"st{i}": i for i in range(1, 8)}
if __name__ == "__main__":
    O = ("touch", "w2early", "rflag", "g1defer", "cshare", "p1c", "ws3", "v3", "wrm", "g1post")
    roles.STWAVE = 0
    A = {"f_x":1, "st1":2, "st2":3, "p_slab":4, "st5":5, "st6":6, "st7":7}
    e7 = ((0,1,2),(3,4),(5,6),())
    b2 = dict(w56=True, g1=dict(D=2, inloop=1), tpre=9, nshadow=3, pos=(3,6,9))
    DM = ((27,6),(30,3))
    H = (58, 16)
    def B(fn, h, t, r=0, **kw): build(fn, A, opts=O, esched=e7, dbmap=DM, slp=(r, h, t), **{**b2, **kw})
    B("g_a.s", (58,16), ((32,16),(56,10)))
    B("g_b.s", (58,32), ((32,16),(56,10)))
    B("g_c.s", (58,16), ((32,24),(56,12)))
    B("g_d.s", (58,16), ((48,20),(60,10)))
    B("g_e.s", (58,16), ((32,16),(62,10)))
    B("g_f.s", ((52,24),(60,10)), ((32,30),(56,14)))
```

```python
from asmlib import *

H_OFF = 0x0; H_CLS = 4 * 43 * 2048
R_OFF = 0x600000
T3_OFF = 0x800000
GP_OFF = 0xA00000
ST_OFF = 0xB00000
WS_SIZE = 0x1000000
NST = 8
STWAVE = 0

S_WG = 2
S_WAVE = 3
S_PX, S_PWR, S_PWI = 4, 6, 8
S_PW1, S_PB1, S_PW2, S_PB2 = 12, 14, 16, 18
S_PGW, S_POUT, S_PDBG, S_PWS = 20, 22, 24, 26
SRD_WS = 28
SRD_A = 32
SRD_B = 36
SRD_C = 40
SRD_D = 44
S_T = 48
S_STAMP = 80

def prologue(k):
    k("s_load_dwordx4 s[4:7], s[0:1], 0")
    k("s_load_dwordx2 s[8:9], s[0:1], 16")
    k("s_load_dwordx8 s[12:19], s[0:1], 32")
    k("s_load_dwordx8 s[20:27], s[0:1], 64")
    k("v_lshrrev_b32 v1, 6, v0")
    k("v_and_b32 v0, 63, v0")
    k("v_readfirstlane_b32 s3, v1")
    k("s_waitcnt lgkmcnt(0)")
    k.srd(SRD_WS, S_PWS, S_PWS + 1, WS_SIZE)

def stamp(k, i, on=True):
    if on: k(f"s_memrealtime s[{S_STAMP+2*i}:{S_STAMP+2*i+1}]")

def stamps_clear(k):
    for i in range(NST):
        k(f"s_mov_b64 s[{S_STAMP+2*i}:{S_STAMP+2*i+1}], 0")

def stamps_store(k):
    L = k.newlabel("nost")
    k(f"s_cmp_lg_u32 s3, {STWAVE}")
    k(f"s_cbranch_scc1 {L}")
    k("s_waitcnt lgkmcnt(0)")
    k(f"s_mul_i32 s48, s2, {NST*8}")
    k(f"s_add_u32 s48, s48, {ST_OFF}")
    for i in range(0, NST, 2):
        for j in range(4):
            k(f"v_mov_b32 v{4+j}, s{S_STAMP+2*i+j}")
        k(f"v_mov_b32 v8, {i*8}")
        k("v_cmp_eq_u32 vcc, 0, v0")
        k("s_and_saveexec_b64 s[50:51], vcc")
        k(f"buffer_store_dwordx4 v[4:7], v8, s[{SRD_WS}:{SRD_WS+3}], s48 offen")
        k("s_mov_b64 exec, s[50:51]")
    k("s_waitcnt vmcnt(0)")
    k.label(L)

GELU_C0 = -2.0 * 0.7978845608028654 * 1.4426950408889634
GELU_C1 = GELU_C0 * 0.044715
import struct
def f2u(f): return struct.unpack("<I", struct.pack("<f", f))[0]

def gemm1(k, s_cls, s_fb, st=False, sc1=False, nocomp=False, nodma=False, noepi=False, order=False, touch=0, tail_wait=True, pre_epi=None):
    SX, SW, SB = SRD_A, SRD_B, SRD_C
    k.srd(SX, S_PX, S_PX + 1, 2048 * 512 * 2)
    k.srd(SW, S_PW1, S_PW1 + 1, 512 * 1376 * 2)
    k.srd(SB, S_PB1, S_PB1 + 1, 1376 * 2)
    vXo = [2, 3]; vWo = [4, 5]
    vBa = 6
    vAa = 18
    vT = 24
    vB = 32
    vA = 48
    ACC = 80
    vBias = 112
    vE = 128
    sM0 = S_T
    k.c("x dma offsets")
    k(f"s_lshl_b32 s50, s3, 1")
    for i in range(2):
        k(f"v_lshrrev_b32 v{vT}, 3, v0")
        k(f"s_add_u32 s51, s50, {i}")
        k(f"s_lshl_b32 s51, s51, 3")
        k(f"v_add_u32 v{vT}, s51, v{vT}")
        k(f"v_lshlrev_b32 v{vT}, 14, v{vT}")
        k(f"v_lshrrev_b32 v{vT+1}, 4, v0")
        k(f"v_add_u32 v{vT+1}, {4*i}, v{vT+1}")
        k(f"v_and_b32 v{vT+2}, 7, v0")
        k(f"v_xor_b32 v{vT+1}, v{vT+1}, v{vT+2}")
        k(f"v_lshl_add_u32 v{vT}, v{vT+1}, 4, v{vT}")
        k(f"s_lshl_b32 s51, {s_cls}, 10")
        k(f"v_add_u32 v{vXo[i]}, s51, v{vT}")
    k.c("w1 dma offsets")
    for i in range(2):
        k(f"s_add_u32 s51, s50, {i}")
        k(f"s_lshl_b32 s51, s51, 2")
        k(f"v_lshrrev_b32 v{vT}, 4, v0")
        k(f"v_lshlrev_b32 v{vT+1}, 2, v{vT}")
        k(f"v_and_b32 v{vT+2}, 15, v0")
        k(f"v_xor_b32 v{vT+1}, v{vT+1}, v{vT+2}")
        k(f"v_lshlrev_b32 v{vT+1}, 4, v{vT+1}")
        k(f"s_lshl_b32 s52, {s_fb}, 8")
        k(f"v_add_u32 v{vT+1}, s52, v{vT+1}")
        k(f"v_min_u32 v{vT+1}, {2752-16}, v{vT+1}")
        k(f"v_add_u32 v{vT}, s51, v{vT}")
        k(f"v_mul_u32_u24 v{vT}, 2752, v{vT}")
        k(f"v_add_u32 v{vWo[i]}, v{vT}, v{vT+1}")
    k(f"s_lshl_b32 s48, s3, 11")
    k(f"s_add_u32 s49, s48, 16384")
    def dma(c):
        slot = c % 5
        for i in range(2):
            k(f"s_add_u32 m0, s48, {slot*32768 + i*1024}")
            k(f"s_mov_b32 s53, {c*128}")
            k(f"buffer_load_dwordx4 v{vXo[i]}, s[{SX}:{SX+3}], s53 offen lds")
        for i in range(2):
            k(f"s_add_u32 m0, s49, {slot*32768 + i*1024}")
            k(f"s_mov_b32 s53, {c*64*2752}")
            k(f"buffer_load_dwordx4 v{vWo[i]}, s[{SW}:{SW+3}], s53 offen lds")
    if touch:
        nx = (16384 + touch - 1) // touch; nw = (11008 + touch - 1) // touch
        k(f"s_mul_i32 s58, s2, {nx}")
        k(f"s_lshl_b32 s59, s3, 6")
        k(f"v_add_u32 v{vT+4}, s59, v0")
        k(f"v_cmp_gt_u32 vcc, {nx}, v{vT+4}")
        k(f"v_add_u32 v{vT+5}, s58, v{vT+4}")
        k(f"v_lshlrev_b32 v{vT+5}, 7, v{vT+5}")
        k("s_and_saveexec_b64 s[60:61], vcc")
        k(f"buffer_load_dword v{vE}, v{vT+5}, s[{SX}:{SX+3}], 0 offen")
        k("s_mov_b64 exec, s[60:61]")
        k(f"s_mul_i32 s58, s2, {nw}")
        k(f"v_subrev_u32 v{vT+4}, 256, v{vT+4}")
        k(f"v_cmp_gt_u32 vcc, {nw}, v{vT+4}")
        k(f"v_add_u32 v{vT+5}, s58, v{vT+4}")
        k(f"v_lshlrev_b32 v{vT+5}, 7, v{vT+5}")
        k("s_and_saveexec_b64 s[60:61], vcc")
        k(f"buffer_load_dword v{vE+1}, v{vT+5}, s[{SW}:{SW+3}], 0 offen")
        k("s_mov_b64 exec, s[60:61]")
    k.c("bias loads (first so that vmcnt accounting is simple)")
    k(f"s_lshr_b32 s54, s3, 2")
    k(f"s_lshl_b32 s55, s54, 7")
    k(f"s_lshl_b32 s52, {s_fb}, 8")
    k(f"s_add_u32 s55, s55, s52")
    k(f"v_lshrrev_b32 v{vT}, 5, v0")
    k(f"v_lshl_add_u32 v{vT}, v{vT}, 3, s55")
    for e in range(2):
        for g in range(4):
            k(f"buffer_load_dwordx2 v[{vBias+e*8+g*2}:{vBias+e*8+g*2+1}], v{vT}, s[{SB}:{SB+3}], 0 offen offset:{e*64+g*16}")
    for c in range(5):
        dma(c)
        if order and c < 4: k("s_barrier")
    stamp(k, 1, st)
    k.c("LDS read addresses")
    k(f"s_and_b32 s56, s3, 3")
    k(f"s_lshl_b32 s57, s56, 12")
    k(f"v_and_b32 v{vT}, 31, v0")
    k(f"v_lshrrev_b32 v{vT+1}, 1, v{vT}")
    k(f"v_and_b32 v{vT+1}, 7, v{vT+1}")
    k(f"v_lshrrev_b32 v{vT+2}, 5, v0")
    k(f"v_xor_b32 v{vT+1}, v{vT+1}, v{vT+2}")
    k(f"v_lshlrev_b32 v{vT}, 7, v{vT}")
    k(f"v_add_u32 v{vT}, s57, v{vT}")
    for ks in range(4):
        k(f"v_xor_b32 v{vT+2}, {2*ks}, v{vT+1}")
        k(f"v_lshl_add_u32 v{vBa+ks}, v{vT+2}, 4, v{vT}")
        k(f"v_add_u32 v{vBa+4+ks}, 0x10000, v{vBa+ks}")
        k(f"v_add_u32 v{vBa+8+ks}, 0x20000, v{vBa+ks}")
    k(f"v_bfe_u32 v{vT}, v0, 2, 2")
    k(f"v_lshrrev_b32 v{vT+1}, 5, v0")
    k(f"v_lshl_add_u32 v{vT+1}, v{vT+1}, 3, v{vT}")
    k(f"v_lshlrev_b32 v{vT+1}, 8, v{vT+1}")
    k(f"v_bfe_u32 v{vT+2}, v0, 4, 1")
    k(f"v_bfe_u32 v{vT+3}, v0, 1, 1")
    k(f"v_lshl_add_u32 v{vT+2}, v{vT+2}, 1, v{vT+3}")
    k(f"v_and_b32 v{vT+3}, 1, v0")
    k(f"v_lshlrev_b32 v{vT+3}, 3, v{vT+3}")
    k(f"v_add3_u32 v{vT+1}, v{vT+1}, v{vT+3}, 0")
    k(f"v_add_u32 v{vT+1}, 16384, v{vT+1}")
    for e in range(2):
        k(f"s_lshl_b32 s58, s54, 1")
        k(f"s_add_u32 s58, s58, {e}")
        k(f"v_xor_b32 v{vT+4}, s58, v{vT}")
        k(f"v_lshl_add_u32 v{vT+4}, v{vT+4}, 2, v{vT+2}")
        k(f"v_lshl_add_u32 v{vAa+e}, v{vT+4}, 4, v{vT+1}")
        k(f"v_add_u32 v{vAa+2+e}, 0x10000, v{vAa+e}")
        k(f"v_add_u32 v{vAa+4+e}, 0x20000, v{vAa+e}")
    k.c("acc init from bias")
    k("s_waitcnt vmcnt(20)")
    for e in range(2):
        for g in range(4):
            for h in range(2):
                src = vBias + e*8 + g*2 + h
                d = ACC + e*16 + g*4 + h*2
                k(f"v_lshlrev_b32 v{d}, 16, v{src}")
                k(f"v_and_b32 v{d+1}, 0xffff0000, v{src}")
    waits = {0: 16, 1: 12, 2: 12, 3: 12, 4: 12, 5: 8, 6: 4, 7: 0}
    for c in range(8):
        slot = c % 5
        grp = slot // 2; so = (slot % 2) * 32768
        k.c(f"chunk {c}")
        k(f"s_waitcnt vmcnt({waits[c] if not nodma else (waits[c] if c < 1 else 0)})")
        k("s_barrier")
        if c == 0: stamp(k, 2, st)
        if 1 <= c <= 3 and not nodma: dma(c + 4)
        def reads(ks):
            k(f"ds_read_b128 v[{vB+4*ks}:{vB+4*ks+3}], v{vBa+4*grp+ks} offset:{so}")
            for e in range(2):
                for h in range(2):
                    r = vA + e*16 + ks*4 + h*2
                    k(f"ds_read_b64_tr_b16 v[{r}:{r+1}], v{vAa+2*grp+e} offset:{so + ks*4096 + h*1024}")
        def mf(ks):
            for e in range(2):
                k(f"v_mfma_f32_32x32x16_bf16 v[{ACC+16*e}:{ACC+16*e+15}], v[{vA+e*16+ks*4}:{vA+e*16+ks*4+3}], v[{vB+4*ks}:{vB+4*ks+3}], v[{ACC+16*e}:{ACC+16*e+15}]")
        if nocomp: continue
        reads(0); reads(1); reads(2)
        k("s_waitcnt lgkmcnt(10)"); mf(0)
        reads(3)
        k("s_waitcnt lgkmcnt(10)"); mf(1)
        k("s_waitcnt lgkmcnt(5)"); mf(2)
        k("s_waitcnt lgkmcnt(0)"); mf(3)
    stamp(k, 3, st)
    if pre_epi: pre_epi()
    k.c("epilogue: gelu + store")
    k(f"s_mov_b32 s60, {f2u(GELU_C0):#x}")
    k(f"s_mov_b32 s61, s60")
    k(f"s_mov_b32 s62, {f2u(GELU_C1):#x}")
    k(f"s_mov_b32 s63, s62")
    k(f"v_mov_b32 v{vT+6}, s60")
    k(f"v_mov_b32 v{vT+7}, s60")
    k(f"s_mul_i32 s64, {s_cls}, {H_CLS}")
    k(f"s_mul_i32 s65, s56, {43*2048}")
    k(f"s_add_u32 s64, s64, s65")
    k(f"s_lshl_b32 s65, {s_fb}, 2")
    k(f"s_lshl_b32 s66, s54, 1")
    k(f"s_add_u32 s65, s65, s66")
    k(f"s_lshl_b32 s66, s65, 11")
    k(f"s_add_u32 s64, s64, s66")
    k(f"s_add_u32 s64, s64, {H_OFF}")
    k(f"v_lshlrev_b32 v{vT}, 4, v0")
    fl = " sc1" if sc1 else ""
    for e in range(2):
        Lskip = k.newlabel("g1skip")
        if e == 1:
            k("s_cmp_ge_u32 s65, 42")
            k(f"s_cbranch_scc1 {Lskip}")
        else:
            k("s_cmp_ge_u32 s65, 43")
            k(f"s_cbranch_scc1 {Lskip}")
        for stp in range(2):
            a = ACC + 16*e + 8*stp
            E = vE + (e*2+stp)*16
            P = vE + 64 + (e*2+stp)*4
            for p in range(4):
                u = a + 2*p; t = E + 2*p
                k(f"v_pk_mul_f32 v[{t}:{t+1}], v[{u}:{u+1}], v[{u}:{u+1}]")
            for p in range(4):
                t = E + 2*p
                k(f"v_pk_fma_f32 v[{t}:{t+1}], v[{t}:{t+1}], s[62:63], v[{vT+6}:{vT+7}]")
            for p in range(4):
                u = a + 2*p; t = E + 2*p
                k(f"v_pk_mul_f32 v[{t}:{t+1}], v[{t}:{t+1}], v[{u}:{u+1}]")
            for p in range(8): k(f"v_exp_f32 v{E+p}, v{E+p}")
            for p in range(4):
                t = E + 2*p
                k(f"v_pk_add_f32 v[{t}:{t+1}], v[{t}:{t+1}], 1.0 op_sel_hi:[1,0]")
            for p in range(8): k(f"v_rcp_f32 v{E+p}, v{E+p}")
            for p in range(4):
                u = a + 2*p; t = E + 2*p
                k(f"v_pk_mul_f32 v[{t}:{t+1}], v[{t}:{t+1}], v[{u}:{u+1}]")
            for p in range(4):
                k(f"v_cvt_pk_bf16_f32 v{P+p}, v{E+2*p}, v{E+2*p+1}")
            k(f"buffer_store_dwordx4 v[{P}:{P+3}], v{vT}, s[{SRD_WS}:{SRD_WS+3}], s64 offen offset:{e*2048+stp*1024}{fl}")
        k.label(Lskip)
    stamp(k, 4, st)
    if tail_wait:
        k("s_waitcnt vmcnt(0)")
        stamp(k, 5, st)

FM = "v_fmamk_f32"
def fhex(f): return f"{f2u(f):#x}"

def p1(k, s_s2, s_db, st=False, sc1=False, lb=0, tail_wait=True, pre_epi=None):
    SX, SG = SRD_A, SRD_B
    fl = " sc1" if sc1 else ""
    k.srd(SX, S_PX, S_PX + 1, 2048 * 512 * 2)
    k.srd(SG, S_PGW, S_PGW + 1, 1024)
    vT = 2
    vXo = 16
    vAa = 17
    vGW = 20
    vCB = 36
    vAng = 68
    vA = 84
    ACC = 148
    vQ = 180
    vR = 196
    k.c("x DMA")
    k(f"v_lshrrev_b32 v{vT}, 4, v0")
    k(f"v_lshlrev_b32 v{vT+1}, 2, v{vT}")
    k(f"v_and_b32 v{vT+2}, 15, v0")
    k(f"v_xor_b32 v{vT+1}, v{vT+1}, v{vT+2}")
    k(f"v_lshlrev_b32 v{vT+1}, 4, v{vT+1}")
    k(f"v_lshl_add_u32 v{vXo}, v{vT}, 14, v{vT+1}")
    k(f"s_lshl_b32 s50, {s_s2}, 10")
    k(f"s_lshl_b32 s51, {s_db}, 8")
    k(f"s_add_u32 s50, s50, s51")
    k(f"s_lshl_b32 s51, s3, 18")
    k(f"s_add_u32 s50, s50, s51")
    k(f"s_lshl_b32 s52, s3, 12")
    if lb: k(f"s_add_u32 s52, s52, {lb}")
    for i in range(4):
        k(f"s_add_u32 m0, s52, {i*1024}")
        k(f"s_add_u32 s53, s50, {i*4*16384}")
        k(f"buffer_load_dwordx4 v{vXo}, s[{SX}:{SX+3}], s53 offen lds")
    k.c("gate weights: 64 contiguous bytes per thread")
    k(f"v_and_b32 v{vT}, 3, v0")
    k(f"v_lshlrev_b32 v{vT}, 6, v{vT}")
    k(f"s_lshl_b32 s51, {s_db}, 8")
    for e in range(4):
        k(f"buffer_load_dwordx4 v[{vGW+4*e}:{vGW+4*e+3}], v{vT}, s[{SG}:{SG+3}], s51 offen offset:{16*e}")
    stamp(k, 1, st)
    k.c("B constants")
    k("s_and_b32 s54, s3, 3")
    k("s_lshr_b32 s55, s3, 2")
    k(f"v_bfe_u32 v{vT}, v0, 1, 4")
    k("s_lshl_b32 s56, s54, 4")
    k(f"v_add_u32 v{vT}, s56, v{vT}")
    k(f"v_cvt_f32_u32 v{vT+1}, v{vT}")
    k(f"v_mul_f32 v{vT+2}, {fhex(1/128)}, v{vT+1}")
    k(f"v_cvt_f32_u32 v{vT+3}, {s_s2}")
    k(f"v_mul_f32 v{vT+3}, {fhex(1/2048)}, v{vT+3}")
    k(f"v_mul_f32 v{vT+3}, v{vT+3}, v{vT+1}")
    k(f"v_and_b32 v{vT+4}, 1, v0")
    k(f"v_cvt_f32_u32 v{vT+5}, v{vT+4}")
    k(f"v_fmac_f32 v{vT+3}, 0.25, v{vT+5}")
    k(f"v_lshl_or_b32 v{vT+6}, v{vT}, 1, v{vT+4}")
    k(f"v_cmp_eq_u32 vcc, 1, v{vT+6}")
    k(f"v_mov_b32 v{vT+7}, 0.5")
    k(f"v_cndmask_b32 v{vT+2}, v{vT+2}, v{vT+7}, vcc")
    k(f"v_mov_b32 v{vT+7}, 0")
    k(f"v_cndmask_b32 v{vT+3}, v{vT+3}, v{vT+7}, vcc")
    k(f"v_lshrrev_b32 v{vT+4}, 5, v0")
    k(f"v_lshlrev_b32 v{vT+4}, 3, v{vT+4}")
    k(f"v_cvt_f32_u32 v{vT+4}, v{vT+4}")
    k(f"v_fmac_f32 v{vT+3}, v{vT+4}, v{vT+2}")
    vD, vA0 = vT + 2, vT + 3
    for t in range(8):
        for j in range(8):
            kk = 16 * t + j
            if kk == 0: k(f"v_mov_b32 v{vAng+j}, v{vA0}")
            else: k(f"{FM} v{vAng+j}, v{vD}, {fhex(float(kk))}, v{vA0}")
        for j in range(8): k(f"v_cos_f32 v{vAng+j}, v{vAng+j}")
        for j in range(4): k(f"v_cvt_pk_bf16_f32 v{vCB+4*t+j}, v{vAng+2*j}, v{vAng+2*j+1}")
    k.c("A frag addresses")
    k(f"v_bfe_u32 v{vT}, v0, 2, 2")
    k(f"v_lshrrev_b32 v{vT+1}, 5, v0")
    k(f"v_lshl_add_u32 v{vT+1}, v{vT+1}, 3, v{vT}")
    k(f"v_lshlrev_b32 v{vT+1}, 8, v{vT+1}")
    k(f"v_bfe_u32 v{vT+4}, v0, 4, 1")
    k(f"v_bfe_u32 v{vT+5}, v0, 1, 1")
    k(f"v_lshl_add_u32 v{vT+4}, v{vT+4}, 1, v{vT+5}")
    k(f"v_and_b32 v{vT+5}, 1, v0")
    k(f"v_lshl_add_u32 v{vT+1}, v{vT+5}, 3, v{vT+1}")
    if lb: k(f"v_add_u32 v{vT+1}, {lb}, v{vT+1}")
    for e in range(2):
        k(f"s_lshl_b32 s58, s55, 1")
        k(f"s_add_u32 s58, s58, {e}")
        k(f"v_xor_b32 v{vT+6}, s58, v{vT}")
        k(f"v_lshl_add_u32 v{vT+6}, v{vT+6}, 2, v{vT+4}")
        k(f"v_lshl_add_u32 v{vAa+e}, v{vT+6}, 4, v{vT+1}")
    k("s_waitcnt vmcnt(4)")
    k("s_barrier")
    stamp(k, 2, st)
    def rd(t):
        for e in range(2):
            for h in range(2):
                r = vA + e*32 + t*4 + h*2
                k(f"ds_read_b64_tr_b16 v[{r}:{r+1}], v{vAa+e} offset:{t*4096 + h*1024}")
    def mf(t):
        for e in range(2):
            c = "0" if t == 0 else f"v[{ACC+16*e}:{ACC+16*e+15}]"
            k(f"v_mfma_f32_32x32x16_bf16 v[{ACC+16*e}:{ACC+16*e+15}], v[{vA+e*32+t*4}:{vA+e*32+t*4+3}], v[{vCB+4*t}:{vCB+4*t+3}], {c}")
    rd(0); rd(1); rd(2)
    for t in range(8):
        if t + 3 < 8:
            k("s_waitcnt lgkmcnt(8)"); mf(t); rd(t + 3)
        else:
            k(f"s_waitcnt lgkmcnt({4*(7-t)})"); mf(t)
    stamp(k, 3, st)
    if pre_epi: pre_epi()
    k.c("pack, transpose through LDS")
    k(f"v_and_b32 v{vT}, 31, v0")
    k(f"s_lshl_b32 s58, s54, 5")
    k(f"v_add_u32 v{vT}, s58, v{vT}")
    k(f"v_mul_u32_u24 v{vT}, 272, v{vT}")
    k(f"v_lshrrev_b32 v{vT+1}, 5, v0")
    k(f"v_lshl_add_u32 v{vT}, v{vT+1}, 4, v{vT}")
    k(f"s_lshl_b32 s58, s55, 7")
    k(f"s_add_u32 s58, s58, {32768+lb}")
    k(f"v_add_u32 v{vT}, s58, v{vT}")
    for e in range(2):
        for g in range(4):
            for h in range(2):
                k(f"v_cvt_pk_bf16_f32 v{vQ+e*8+g*2+h}, v{ACC+16*e+4*g+2*h}, v{ACC+16*e+4*g+2*h+1}")
        for pr in range(2):
            q = vQ + e*8 + pr*4
            k(f"v_permlane32_swap_b32 v{q}, v{q+2}")
            k(f"v_permlane32_swap_b32 v{q+1}, v{q+3}")
            k(f"ds_write_b128 v{vT}, v[{q}:{q+3}] offset:{e*64 + pr*32}")
    k("s_waitcnt lgkmcnt(0)")
    k("s_barrier")
    k(f"v_lshrrev_b32 v{vT}, 4, v0")
    k(f"s_lshl_b32 s58, s3, 4")
    k(f"v_add_u32 v{vT+1}, s58, v{vT}")
    k(f"v_mul_u32_u24 v{vT+1}, 272, v{vT+1}")
    k(f"v_and_b32 v{vT+2}, 15, v0")
    k(f"v_lshl_add_u32 v{vT+1}, v{vT+2}, 4, v{vT+1}")
    k(f"v_add_u32 v{vT+1}, {32768+lb}, v{vT+1}")
    for i in range(4):
        k(f"ds_read_b128 v[{vR+4*i}:{vR+4*i+3}], v{vT+1} offset:{i*4*272}")
    k(f"v_lshrrev_b32 v{vT+3}, 1, v{vT}")
    k(f"v_lshlrev_b32 v{vT+3}, 15, v{vT+3}")
    k(f"v_and_b32 v{vT+4}, 1, v{vT}")
    k(f"v_lshl_add_u32 v{vT+3}, v{vT+4}, 10, v{vT+3}")
    k(f"v_lshl_add_u32 v{vT+3}, v{vT+2}, 4, v{vT+3}")
    k(f"s_lshl_b32 s58, s3, 18")
    k(f"s_lshl_b32 s59, {s_s2}, 11")
    k(f"s_add_u32 s58, s58, s59")
    k(f"s_lshl_b32 s59, {s_db}, 8")
    k(f"s_add_u32 s58, s58, s59")
    k(f"s_add_u32 s58, s58, {R_OFF}")
    for i in range(4):
        k(f"s_waitcnt lgkmcnt({3-i})")
        k(f"s_add_u32 s59, s58, {i*2*32768}")
        k(f"buffer_store_dwordx4 v[{vR+4*i}:{vR+4*i+3}], v{vT+3}, s[{SRD_WS}:{SRD_WS+3}], s59 offen{fl}")
    stamp(k, 4, st)
    k.c("gate partials")
    k(f"v_lshrrev_b32 v{vT}, 2, v0")
    k(f"s_lshl_b32 s58, s3, 4")
    k(f"v_add_u32 v{vT}, s58, v{vT}")
    k(f"v_and_b32 v{vT+1}, 3, v0")
    k(f"v_and_b32 v{vT+2}, 3, v{vT}")
    k(f"v_xor_b32 v{vT+1}, v{vT+1}, v{vT+2}")
    k(f"v_lshlrev_b32 v{vT+1}, 6, v{vT+1}")
    k(f"v_lshl_add_u32 v{vT+1}, v{vT}, 8, v{vT+1}")
    if lb: k(f"v_add_u32 v{vT+1}, {lb}, v{vT+1}")
    for e in range(4):
        k(f"ds_read_b128 v[{vA+4*e}:{vA+4*e+3}], v{vT+1} offset:{16*e}")
    k(f"v_mov_b32 v{vT+2}, 0")
    k("s_waitcnt lgkmcnt(0)")
    for e in range(16):
        k(f"v_dot2_f32_bf16 v{vT+2}, v{vA+e}, v{vGW+e}, v{vT+2}")
    k(f"v_add_f32_dpp v{vT+2}, v{vT+2}, v{vT+2} quad_perm:[1,0,3,2] row_mask:0xf bank_mask:0xf")
    k(f"v_add_f32_dpp v{vT+2}, v{vT+2}, v{vT+2} quad_perm:[2,3,0,1] row_mask:0xf bank_mask:0xf")
    k(f"s_lshl_b32 s58, {s_db}, 4")
    k(f"s_add_u32 s58, s58, {s_s2}")
    k(f"s_lshl_b32 s58, s58, 9")
    k(f"s_add_u32 s58, s58, {GP_OFF}")
    k(f"v_lshlrev_b32 v{vT}, 2, v{vT}")
    k(f"v_and_b32 v{vT+1}, 3, v0")
    k(f"v_cmp_eq_u32 vcc, 0, v{vT+1}")
    k("s_and_saveexec_b64 s[60:61], vcc")
    k(f"buffer_store_dword v{vT+2}, v{vT}, s[{SRD_WS}:{SRD_WS+3}], s58 offen{fl}")
    k("s_mov_b64 exec, s[60:61]")
    if tail_wait:
        k("s_waitcnt vmcnt(0)")
        stamp(k, 5, st)


def interleave(a, b):
    out = []; na, nb = len(a), len(b); j = 0
    for i, x in enumerate(a):
        out.append(x)
        tgt = (i + 1) * nb // na
        while j < tgt:
            out.append(b[j]); j += 1
    out += b[j:]
    return out

def sincos_set(k, vang0, vdelta, vt, dst_c, dst_s, scale=None):
    pass

PK = False
EXP = None
P2_SLAB = 0; P2_E1 = 32768; P2_E2 = 65536; P2_PITCH = 1056

def p2_pre(k, s_task, R):
    SWR, SWI = SRD_A, SRD_B
    k.srd(SWR, S_PWR, S_PWR + 1, 2048 * 514)
    k.srd(SWI, S_PWI, S_PWI + 1, 2048 * 514)
    vT = R["T"]; W = R["W"]; WX = R["WX"]; WA = R["work"]
    vN, vQ = R["n"], R["q"]
    k(f"v_and_b32 v{vN}, 15, v0")
    k(f"v_lshrrev_b32 v{vQ}, 4, v0")
    k.c("W loads")
    k(f"v_lshlrev_b32 v{vT}, 1, v{vN}")
    k(f"v_lshl_add_u32 v{vT}, v{vQ}, 8, v{vT}")
    k(f"v_sub_u32 v{vT+1}, 1024, v{vT}")
    k(f"v_cmp_gt_u32 vcc, 32, v0")
    k(f"v_mov_b32 v{vT+2}, -32")
    k(f"v_mov_b32 v{vT+3}, 32")
    k(f"v_cndmask_b32 v{vT+2}, v{vT+2}, v{vT+3}, vcc")
    k(f"v_and_b32 v{vT+3}, 31, v0")
    k(f"v_cmp_eq_u32 s[62:63], 0, v{vT+3}")
    for row in range(2):
        k(f"s_lshl_b32 s50, s3, 1")
        k(f"s_add_u32 s50, s50, {row}")
        k(f"s_lshl_b32 s50, s50, 7")
        k(f"s_add_u32 s50, s50, {s_task}")
        k(f"s_sub_u32 s51, 2048, s50")
        k(f"s_and_b32 s51, s51, 2047")
        k(f"s_mul_i32 s50, s50, 514")
        k(f"s_mul_i32 s51, s51, 514")
        k(f"v_add_u32 v{vT+4}, s50, v{vT}")
        k(f"v_add_u32 v{vT+5}, s51, v{vT+1}")
        k(f"v_cndmask_b32 v{vT+4}, v{vT+5}, v{vT+4}, vcc")
        k(f"s_add_u32 s52, s50, 512")
        k(f"v_mov_b32 v{vT+5}, s52")
        k(f"v_mov_b32 v{vT+6}, s51")
        k(f"v_cndmask_b32 v{vT+5}, v{vT+5}, v{vT+6}, vcc")
        k(f"v_cndmask_b32 v{vT+5}, v{vT+4}, v{vT+5}, s[62:63]")
        for m in range(1, 8):
            k(f"v_mad_i32_i24 v{WA+8*row+m}, v{vT+2}, {m}, v{vT+4}")
        for t in range(2):
            for i in range(4):
                m = t + 2 * i
                a = vT + 4 if m == 0 else WA + 8*row + m
                k(f"buffer_load_ushort v{W+16*row+8*t+i}, v{a}, s[{SWR}:{SWR+3}], 0 offen")
                k(f"buffer_load_ushort v{W+16*row+8*t+4+i}, v{a}, s[{SWI}:{SWI+3}], 0 offen")
        k(f"buffer_load_ushort v{WX+2*row}, v{vT+5}, s[{SWR}:{SWR+3}], 0 offen")
        k(f"buffer_load_ushort v{WX+2*row+1}, v{vT+5}, s[{SWI}:{SWI+3}], 0 offen")

def p2_consts(k, s_task, R):
    vT = R["T"]; vN, vQ = R["n"], R["q"]; WA = R["work"]
    FS, F16, A1, B5 = R["FS"], R["F16"], R["A1"], R["B5"]
    TW1C, TW1S, TW2C, TW2S = R["TW1C"], R["TW1S"], R["TW2C"], R["TW2S"]
    nf, q4 = vT, vT + 1
    k(f"v_cvt_f32_u32 v{nf}, v{vN}")
    k(f"v_lshlrev_b32 v{q4}, 2, v{vQ}")
    k(f"v_cvt_f32_u32 v{q4}, v{q4}")
    k(f"s_cmp_eq_u32 {s_task}, 64")
    k(f"s_cselect_b32 s54, 0x3f800000, 0")
    an = WA; cs = WA + 4; sn = WA + 8
    def cset(vdelta, va0, C01, C23, S01, S23):
        for j in range(4):
            if j == 0: k(f"v_mov_b32 v{an}, v{va0}")
            else: k(f"v_fma_f32 v{an+j}, v{vdelta}, {float(j)}, v{va0}" if j != 3 else f"v_fmamk_f32 v{an+j}, v{vdelta}, {fhex(3.0)}, v{va0}")
        for j in range(4): k(f"v_cos_f32 v{cs+j}, v{an+j}")
        for j in range(4): k(f"v_sin_f32 v{sn+j}, v{an+j}")
        k(f"v_cvt_pk_bf16_f32 v{C01}, v{cs}, v{cs+1}")
        k(f"v_cvt_pk_bf16_f32 v{C23}, v{cs+2}, v{cs+3}")
        k(f"v_cvt_pk_bf16_f32 v{S01}, v{sn}, v{sn+1}")
        k(f"v_cvt_pk_bf16_f32 v{S23}, v{sn+2}, v{sn+3}")
    d, a0 = vT + 2, vT + 3
    k.c("F32 sets")
    k(f"v_mul_f32 v{d}, {fhex(1/32)}, v{nf}")
    k(f"v_mul_f32 v{a0}, v{d}, v{q4}")
    cset(d, a0, FS + 2, FS + 3, FS + 4, FS + 5)
    k(f"v_xor_b32 v{FS}, 0x80008000, v{FS+4}")
    k(f"v_xor_b32 v{FS+1}, 0x80008000, v{FS+5}")
    k(f"v_and_b32 v{vT+4}, 1, v{vN}")
    k(f"v_mul_u32_u24 v{vT+4}, 0x8000, v{vT+4}")
    k(f"v_lshl_or_b32 v{vT+4}, v{vT+4}, 16, v{vT+4}")
    k(f"v_xor_b32 v{vT+5}, 0x80000000, v{vT+4}")
    for r in range(6):
        k(f"v_xor_b32 v{FS+6+r}, v{vT+4}, v{FS+r}")
        k(f"v_xor_b32 v{FS+12+r}, 0x80000000, v{FS+r}")
        k(f"v_xor_b32 v{FS+18+r}, v{vT+5}, v{FS+r}")
    k.c("F16 set")
    k(f"v_mul_f32 v{d}, {fhex(1/16)}, v{nf}")
    k(f"v_mul_f32 v{a0}, v{d}, v{q4}")
    cset(d, a0, F16 + 2, F16 + 3, F16 + 4, F16 + 5)
    k(f"v_xor_b32 v{F16}, 0x80008000, v{F16+4}")
    k(f"v_xor_b32 v{F16+1}, 0x80008000, v{F16+5}")
    k.c("A1: angle (4q+j)(2n+e)/32")
    k(f"v_fma_f32 v{d}, v{nf}, 2.0, s54")
    k(f"v_mul_f32 v{d}, {fhex(1/32)}, v{d}")
    k(f"v_mul_f32 v{a0}, v{d}, v{q4}")
    t0 = WA + 12
    cset(d, a0, t0, t0 + 1, t0 + 2, t0 + 3)
    k(f"v_xor_b32 v{t0+4}, 0x80008000, v{t0+2}")
    k(f"v_xor_b32 v{t0+5}, 0x80008000, v{t0+3}")
    L0, L64, Lj = k.newlabel("a1_0"), k.newlabel("a1_64"), k.newlabel("a1_j")
    C01, C23, S01, S23, N01, N23 = [f"v{t0+i}" for i in range(6)]
    def setA(vals):
        for r, x in enumerate(vals): k(f"v_mov_b32 v{A1+r}, {x}")
    k(f"s_cmp_eq_u32 {s_task}, 0"); k(f"s_cbranch_scc1 {L0}")
    k(f"s_cmp_eq_u32 {s_task}, 64"); k(f"s_cbranch_scc1 {L64}")
    setA([C01, C23, S01, S23, N01, N23, C01, C23]); k(f"s_branch {Lj}")
    k.label(L0); setA([C01, C23, 0, 0, N01, N23, 0, 0]); k(f"s_branch {Lj}")
    k.label(L64); setA([0, 0, C01, C23, 0, 0, N01, N23])
    k.label(Lj)
    k.c("B5: angle n(2u2+e)/32")
    k(f"v_mul_f32 v{d}, {fhex(1/16)}, v{nf}")
    k(f"v_mul_f32 v{a0}, s54, v{nf}")
    k(f"v_mul_f32 v{a0}, {fhex(1/32)}, v{a0}")
    k(f"v_fmac_f32 v{a0}, v{d}, v{q4}")
    cset(d, a0, B5, B5 + 2, B5 + 1, B5 + 3)
    k(f"v_mov_b32 v{B5+4}, v{B5+1}")
    k(f"v_xor_b32 v{B5+5}, 0x80008000, v{B5}")
    k(f"v_mov_b32 v{B5+6}, v{B5+3}")
    k(f"v_xor_b32 v{B5+7}, 0x80008000, v{B5+2}")
    k.c("twiddles")
    k(f"s_and_b32 s55, {s_task}, 63")
    k(f"s_cmp_eq_u32 s55, 0")
    k(f"s_mov_b32 s56, {fhex(2.0**-19)}")
    k(f"s_cselect_b32 s55, {fhex(2.0**-20)}, s56")
    for t in range(2):
        k(f"v_add_f32 v{d}, {fhex(16.0*t)}, v{nf}" if t else f"v_mov_b32 v{d}, v{nf}")
        k(f"v_mul_f32 v{d}, {fhex(1/512)}, v{d}")
        k(f"v_mul_f32 v{a0}, v{d}, v{q4}")
        for j in range(4):
            if j == 0: k(f"v_mov_b32 v{an}, v{a0}")
            elif j == 3: k(f"v_fmamk_f32 v{an+j}, v{d}, {fhex(3.0)}, v{a0}")
            else: k(f"v_fma_f32 v{an+j}, v{d}, {float(j)}, v{a0}")
        for j in range(4): k(f"v_cos_f32 v{TW1C+4*t+j}, v{an+j}")
        for j in range(4): k(f"v_sin_f32 v{TW1S+4*t+j}, v{an+j}")
        k(f"v_mul_f32 v{d}, {fhex(1/512)}, v{nf}")
        k(f"v_add_f32 v{a0}, {fhex(16.0*t)}, v{q4}" if t else f"v_mov_b32 v{a0}, v{q4}")
        k(f"v_mul_f32 v{a0}, v{a0}, v{d}")
        for j in range(4):
            if j == 0: k(f"v_mov_b32 v{an}, v{a0}")
            elif j == 3: k(f"v_fmamk_f32 v{an+j}, v{d}, {fhex(3.0)}, v{a0}")
            else: k(f"v_fma_f32 v{an+j}, v{d}, {float(j)}, v{a0}")
        for j in range(4): k(f"v_cos_f32 v{cs+j}, v{an+j}")
        for j in range(4): k(f"v_sin_f32 v{sn+j}, v{an+j}")
        for j in range(4): k(f"v_mul_f32 v{TW2C+4*t+j}, s55, v{cs+j}")
        for j in range(4): k(f"v_mul_f32 v{TW2S+4*t+j}, s55, v{sn+j}")

def p2_wfix(k, R):
    vT = R["T"]; W = R["W"]; WX = R["WX"]
    k(f"v_cmp_gt_u32 vcc, 32, v0")
    k(f"v_mov_b32 v{vT}, 0x80000000")
    k(f"v_mov_b32 v{vT+1}, 0")
    k(f"v_cndmask_b32 v{vT}, v{vT}, v{vT+1}, vcc")
    k(f"v_and_b32 v{vT+1}, 31, v0")
    k(f"v_cmp_eq_u32 vcc, 0, v{vT+1}")
    k(f"v_xor_b32 v{vT+1}, 0x80000000, v{vT}")
    k(f"v_cndmask_b32 v{vT+1}, v{vT}, v{vT+1}, vcc")
    for row in range(2):
        for t in range(2):
            for i in range(4):
                r = W + 16*row + 8*t + i
                k(f"v_lshlrev_b32 v{r}, 16, v{r}")
                k(f"v_lshl_add_u32 v{r+4}, v{r+4}, 16, v{vT}")
        k(f"v_lshlrev_b32 v{WX+2*row}, 16, v{WX+2*row}")
        k(f"v_lshl_add_u32 v{WX+2*row+1}, v{WX+2*row+1}, 16, v{vT+1}")
        r = W + 16*row
        k(f"v_add_f32 v{r}, v{r}, v{WX+2*row}")
        k(f"v_add_f32 v{r+4}, v{r+4}, v{WX+2*row+1}")
        k(f"v_mul_f32 v{r}, 0.5, v{r}")
        k(f"v_mul_f32 v{r+4}, 0.5, v{r+4}")

def p2_regs():
    R = dict(T=2, n=16, q=17, FS=20, F16=44, A1=50, B5=58, TW1C=66, TW1S=74, TW2C=82, TW2S=90, W=98, WX=130,
             dma=134, tr=136, e1w=140, e1r=141, e2w=142, e2r=143, t3=145, work=148)
    return R

def p2_addr(k, s_task, R):
    vT = R["T"]; vN, vQ = R["n"], R["q"]
    k.c("LDS addresses")
    k(f"v_bfe_u32 v{vT}, v0, 2, 2")
    k(f"v_lshl_add_u32 v{vT}, v{vQ}, 2, v{vT}")
    k(f"v_and_b32 v{vT+1}, 7, v{vT}")
    k(f"v_lshlrev_b32 v{vT+1}, 1, v{vT+1}")
    k(f"v_bfe_u32 v{vT+2}, v0, 1, 1")
    k(f"s_lshl_b32 s50, s3, 3")
    k(f"v_or_b32 v{vT+2}, s50, v{vT+2}")
    k(f"v_xor_b32 v{vT+2}, v{vT+2}, v{vT+1}")
    k(f"v_lshlrev_b32 v{vT+2}, 4, v{vT+2}")
    k(f"v_lshl_add_u32 v{vT+2}, v{vT}, 11, v{vT+2}")
    k(f"v_and_b32 v{vT+3}, 1, v0")
    k(f"v_lshl_add_u32 v{R['tr']}, v{vT+3}, 3, v{vT+2}")
    if P2_SLAB: k(f"v_add_u32 v{R['tr']}, {P2_SLAB}, v{R['tr']}")
    for dd in range(1, 4):
        k(f"v_xor_b32 v{R['tr']+dd}, {dd*32}, v{R['tr']}")
    k(f"v_lshlrev_b32 v{vT}, 13, v{vQ}")
    k(f"v_lshl_add_u32 v{vT}, v{vN}, 4, v{vT}")
    k(f"s_lshl_b32 s50, s3, 8")
    k(f"s_add_u32 s50, s50, {P2_E1}")
    k(f"v_add_u32 v{R['e1w']}, s50, v{vT}")
    k(f"s_lshl_b32 s50, s3, 12")
    k(f"s_add_u32 s50, s50, {P2_E1}")
    k(f"v_lshl_add_u32 v{R['e1r']}, v0, 4, s50")
    k(f"v_mul_u32_u24 v{vT}, {4*P2_PITCH}, v{vQ}")
    k(f"v_lshl_add_u32 v{vT}, v{vN}, 3, v{vT}")
    k(f"s_lshl_b32 s50, s3, 7")
    k(f"s_add_u32 s50, s50, {P2_E2}")
    k(f"v_add_u32 v{R['e2w']}, s50, v{vT}")
    k(f"v_lshrrev_b32 v{vT}, 3, v{vN}")
    k(f"s_lshl_b32 s50, s3, 2")
    k(f"v_add_u32 v{vT}, s50, v{vT}")
    k(f"v_mul_u32_u24 v{vT}, {P2_PITCH}, v{vT}")
    k(f"v_lshl_add_u32 v{vT}, v{vQ}, 8, v{vT}")
    k(f"v_bfe_u32 v{vT+1}, v0, 2, 1")
    k(f"v_lshl_add_u32 v{vT}, v{vT+1}, 6, v{vT}")
    k(f"v_and_b32 v{vT+1}, 3, v0")
    k(f"v_lshl_add_u32 v{vT}, v{vT+1}, 3, v{vT}")
    k(f"v_add_u32 v{R['e2r']}, {P2_E2}, v{vT}")
    k(f"v_add_u32 v{R['e2r']+1}, {P2_E2 + 2*P2_PITCH}, v{vT}")
    k(f"v_lshlrev_b32 v{vT}, 17, v{vN}")
    k(f"v_lshl_add_u32 v{vT}, v{vQ}, 4, v{vT}")
    k(f"s_lshl_b32 s50, s3, 7")
    k(f"v_add_u32 v{R['t3']}, s50, v{vT}")

def p2_slab_dma(k, s_task, R, sc1=False):
    vT = R["T"]
    fl = " sc1" if sc1 else ""
    k.c("R slab DMA")
    k(f"s_and_b32 s50, {s_task}, 63")
    k(f"s_lshl_b32 s50, s50, 15")
    k(f"s_add_u32 s50, s50, {R_OFF}")
    k(f"s_lshl_b32 s51, s3, 12")
    k(f"s_add_u32 s50, s50, s51")
    k(f"s_add_u32 s51, s51, {P2_SLAB}")
    for h in range(2):
        k(f"s_lshl_b32 s52, s3, 1")
        k(f"s_add_u32 s52, s52, {h}")
        k(f"s_and_b32 s52, s52, 7")
        k(f"s_lshl_b32 s52, s52, 1")
        k(f"v_xor_b32 v{R['dma']+h}, s52, v0")
        k(f"v_lshlrev_b32 v{R['dma']+h}, 4, v{R['dma']+h}")
    for r in range(4):
        k(f"s_add_u32 m0, s51, {r*1024}")
        k(f"s_add_u32 s53, s50, {r*1024}")
        k(f"buffer_load_dwordx4 v{R['dma']+(r>>1)}, s[{SRD_WS}:{SRD_WS+3}], s53 offen lds{fl}")

def p2_main(k, s_task, R, st=False, sc1=False, stbase=3):
    fl = " sc1" if sc1 else ""
    FS, F16, A1, B5 = R["FS"], R["F16"], R["A1"], R["B5"]
    TW1C, TW1S, TW2C, TW2S = R["TW1C"], R["TW1S"], R["TW2C"], R["TW2S"]
    W = R["W"]; WA = R["work"]
    BF = WA; D = WA + 16; P = WA + 48; X = WA + 64
    def fs(t, g, cp): return FS + 6*(2*t+g) + (2 if cp == 0 else 0)
    def f16(cp): return F16 + (2 if cp == 0 else 0)
    def mf(d, a, b, c=None):
        cc = "0" if c is None else f"v[{c}:{c+3}]"
        return f"v_mfma_f32_16x16x32_bf16 v[{d}:{d+3}], v[{a}:{a+3}], v[{b}:{b+3}], {cc}"
    k.c("stage (i)")
    for dd in range(4):
        for c in range(2):
            r = BF + 4*dd + 2*c
            k(f"ds_read_b64_tr_b16 v[{r}:{r+1}], v{R['tr']+dd} offset:{c*1024}")
    for dd in range(4):
        k(f"s_waitcnt lgkmcnt({6-2*dd})")
        for cp in range(2):
            k(mf(D + 8*dd + 4*cp, A1 + 4*cp, BF + 4*dd))
    for i in range(4):
        for cp in range(2):
            for h in range(2):
                k(f"v_cvt_pk_bf16_f32 v{P+4*i+2*cp+h}, v{D+8*(2*h)+4*cp+i}, v{D+8*(2*h+1)+4*cp+i}")
        k(f"ds_write_b128 v{R['e1w']}, v[{P+4*i}:{P+4*i+3}] offset:{i*2048}")
    k("s_waitcnt lgkmcnt(0)")
    k("s_barrier")
    stamp(k, stbase, st == 1)
    stamp(k, 7, st == 2)
    k.c("step A")
    AF = WA
    for row in range(2):
        for g in range(2):
            r = AF + 8*row + 4*g
            k(f"ds_read_b128 v[{r}:{r+3}], v{R['e1r']} offset:{row*2048 + g*1024}")
    def d1(row, t, cp): return D + 16*row + 8*t + 4*cp
    def frag(row, t): return P + 8*row + 4*t
    def stepA(row):
        o = []
        for g in range(2):
            for t in range(2):
                for cp in range(2):
                    o.append(mf(d1(row, t, cp), AF + 8*row + 4*g, fs(t, g, cp), None if g == 0 else d1(row, t, cp)))
        return o
    def cmul(row, C, S, kind):
        o = []
        for t in range(2):
            re, im = d1(row, t, 0), d1(row, t, 1)
            x = X + 8*t
            c_, s_ = C(t), S(t)
            def pr(a, h): return f"v[{a+2*h}:{a+2*h+1}]"
            if not PK:
                if kind == "tw":
                    for i in range(4): o.append(f"v_mul_f32 v{x+i}, v{re+i}, v{c_+i}")
                    for i in range(4): o.append(f"v_mul_f32 v{x+4+i}, v{im+i}, v{c_+i}")
                    for i in range(4): o.append(f"v_fmac_f32 v{x+i}, v{im+i}, v{s_+i}")
                    for i in range(4): o.append(f"v_fma_f32 v{x+4+i}, -v{re+i}, v{s_+i}, v{x+4+i}")
                else:
                    for i in range(4): o.append(f"v_mul_f32 v{x+i}, v{re+i}, v{c_+i}")
                    for i in range(4): o.append(f"v_mul_f32_e64 v{x+4+i}, -v{re+i}, v{s_+i}")
                    for i in range(4): o.append(f"v_fma_f32 v{x+i}, -v{im+i}, v{s_+i}, v{x+i}")
                    for i in range(4): o.append(f"v_fma_f32 v{x+4+i}, -v{im+i}, v{c_+i}, v{x+4+i}")
            elif kind == "tw":
                for h in range(2): o.append(f"v_pk_mul_f32 {pr(x,h)}, {pr(re,h)}, {pr(c_,h)}")
                for h in range(2): o.append(f"v_pk_mul_f32 {pr(x+4,h)}, {pr(im,h)}, {pr(c_,h)}")
                for h in range(2): o.append(f"v_pk_fma_f32 {pr(x,h)}, {pr(im,h)}, {pr(s_,h)}, {pr(x,h)}")
                for h in range(2): o.append(f"v_pk_fma_f32 {pr(x+4,h)}, {pr(re,h)}, {pr(s_,h)}, {pr(x+4,h)} neg_lo:[1,0,0] neg_hi:[1,0,0]")
            else:
                for h in range(2): o.append(f"v_pk_mul_f32 {pr(x,h)}, {pr(re,h)}, {pr(c_,h)}")
                for h in range(2): o.append(f"v_pk_mul_f32 {pr(x+4,h)}, {pr(re,h)}, {pr(s_,h)} neg_lo:[1,0] neg_hi:[1,0]")
                for h in range(2): o.append(f"v_pk_fma_f32 {pr(x,h)}, {pr(im,h)}, {pr(s_,h)}, {pr(x,h)} neg_lo:[1,0,0] neg_hi:[1,0,0]")
                for h in range(2): o.append(f"v_pk_fma_f32 {pr(x+4,h)}, {pr(im,h)}, {pr(c_,h)}, {pr(x+4,h)} neg_lo:[1,0,0] neg_hi:[1,0,0]")
            f = frag(row, t)
            for h in range(2): o.append(f"v_cvt_pk_bf16_f32 v{f+h}, v{x+2*h}, v{x+2*h+1}")
            for h in range(2): o.append(f"v_cvt_pk_bf16_f32 v{f+2+h}, v{x+4+2*h}, v{x+4+2*h+1}")
        return o
    tw1 = lambda row: cmul(row, lambda t: TW1C + 4*t, lambda t: TW1S + 4*t, "tw")
    wm = lambda row: cmul(row, lambda t: W + 16*row + 8*t, lambda t: W + 16*row + 8*t + 4, "w")
    tw2 = lambda row: cmul(row, lambda t: TW2C + 4*t, lambda t: TW2S + 4*t, "tw")
    def stepB(row):
        return [mf(d1(row, t, cp), f16(cp), frag(row, t)) for t in range(2) for cp in range(2)]
    def stepBp(row):
        return [mf(d1(row, t, cp), frag(row, t), f16(cp)) for t in range(2) for cp in range(2)]
    def stepAp(row):
        o = []
        for t in range(2):
            for tp in range(2):
                for cp in range(2):
                    o.append(mf(d1(row, tp, cp), fs(tp, t, cp), frag(row, t), None if t == 0 else d1(row, tp, cp)))
        return o
    def emit(l):
        for x in l:
            if EXP == "nomfma" and "mfma" in x: continue
            if EXP == "novalu" and "mfma" not in x: continue
            k(x)
    k("s_waitcnt lgkmcnt(2)")
    emit(stepA(0))
    k("s_waitcnt lgkmcnt(0)")
    emit(interleave(stepA(1), tw1(0)))
    emit(interleave(stepB(0), tw1(1)))
    emit(interleave(stepB(1), wm(0)))
    emit(interleave(stepBp(0), wm(1)))
    emit(interleave(stepBp(1), tw2(0)))
    emit(interleave(stepAp(0), tw2(1)))
    emit(stepAp(1))
    stamp(k, stbase + 1, st)
    k.c("E2 write")
    for tp in range(2):
        for i in range(4):
            p = P + 2*(4*tp + i)
            k(f"v_cvt_pk_bf16_f32 v{p}, v{d1(0,tp,0)+i}, v{d1(1,tp,0)+i}")
            k(f"v_cvt_pk_bf16_f32 v{p+1}, v{d1(0,tp,1)+i}, v{d1(1,tp,1)+i}")
            k(f"ds_write_b64 v{R['e2w']}, v[{p}:{p+1}] offset:{(16*tp+i)*P2_PITCH}")
    k("s_waitcnt lgkmcnt(0)")
    stamp(k, 1, st == 2)
    k("s_barrier")
    stamp(k, 2, st == 2)
    k.c("stage (v)")
    for r in range(4):
        o = 4*(r & 1)
        k(f"ds_read2_b64 v[{AF+4*r}:{AF+4*r+3}], v{R['e2r']+(r>>1)} offset0:{o} offset1:{o+16}")
    for r in range(4):
        k(f"s_waitcnt lgkmcnt({3-r})")
        for cp in range(2):
            k(mf(D + 8*r + 4*cp, AF + 4*r, B5 + 4*cp))
    stamp(k, 3, st == 2)
    k(f"s_and_b32 s50, {s_task}, 63")
    k(f"s_lshl_b32 s50, s50, 11")
    k(f"s_lshr_b32 s51, {s_task}, 6")
    k(f"s_lshl_b32 s51, s51, 10")
    k(f"s_add_u32 s50, s50, s51")
    k(f"s_add_u32 s50, s50, {T3_OFF}")
    Lsk = k.newlabel("p2sk")
    for cp in range(2):
        if cp == 1:
            k(f"s_and_b32 s51, {s_task}, 63")
            k(f"s_cmp_eq_u32 s51, 0")
            k(f"s_cbranch_scc1 {Lsk}")
        for hb in range(2):
            p = P + 8*cp + 4*hb
            for rr in range(2):
                r = 2*hb + rr
                for h in range(2):
                    k(f"v_cvt_pk_bf16_f32 v{p+2*rr+h}, v{D+8*r+4*cp+2*h}, v{D+8*r+4*cp+2*h+1}")
            k(f"buffer_store_dwordx4 v[{p}:{p+3}], v{R['t3']}, s[{SRD_WS}:{SRD_WS+3}], s50 offen offset:{cp*1024+hb*64}{fl}")
    k.label(Lsk)
    stamp(k, stbase + 2, st)

def p2(k, s_task, st=False, sc1=False):
    R = p2_regs()
    k(f"v_and_b32 v{R['n']}, 15, v0")
    p2_slab_dma(k, s_task, R, sc1)
    p2_pre(k, s_task, R)
    stamp(k, 1, st == 1)
    p2_consts(k, s_task, R)
    p2_addr(k, s_task, R)
    k("s_waitcnt vmcnt(0)")
    p2_wfix(k, R)
    k("s_barrier")
    stamp(k, 2, st == 1)
    p2_main(k, s_task, R, st, sc1)
    k("s_waitcnt vmcnt(0)")
    stamp(k, 6, st)


class VM:
    def __init__(self, k): self.k = k; self.q = []; self.seen = set()
    def issue(self, text, tag):
        self.k(text); self.q.append(tag); self.seen.add(tag)
    def wait(self, tag):
        assert tag in self.seen, tag
        if tag not in self.q: return
        idx = max(i for i, t in enumerate(self.q) if t == tag)
        n = len(self.q) - 1 - idx
        self.k(f"s_waitcnt vmcnt({min(n, 63)})")
        self.q = self.q[idx + 1:]
    def wait_all(self):
        self.k("s_waitcnt vmcnt(0)"); self.q = []

LOG2E = 1.4426950408889634

def final_regs():
    return dict(T=2, g=16, og=17, dma=18, h=19, tr=20, xw=26, xr=27, out=28, b2=30, gp=34, TB=40, AF=48, ACC=72, HB=104, XR=192)

def final_setup(k, s_cls, s_hf, s_db, R):
    vT = R["T"]
    SW2 = SRD_C
    k.srd(SW2, S_PW2, S_PW2 + 1, 1376 * 1024)
    k("s_and_b32 s64, s3, 1")
    k("s_lshr_b32 s65, s3, 1")
    k(f"v_lshrrev_b32 v{vT}, 3, v0")
    k(f"v_bfe_u32 v{vT+1}, v0, 4, 1")
    k(f"v_lshlrev_b32 v{vT+1}, 2, v{vT+1}")
    k(f"v_and_b32 v{vT+2}, 7, v0")
    k(f"v_xor_b32 v{vT+1}, v{vT+1}, v{vT+2}")
    k(f"v_lshlrev_b32 v{vT+1}, 4, v{vT+1}")
    k(f"v_lshl_add_u32 v{R['dma']}, v{vT}, 10, v{vT+1}")
    k("s_mul_i32 s66, s65, 352")
    k("s_lshl_b32 s67, s64, 4")
    k("s_add_u32 s66, s66, s67")
    k("s_lshl_b32 s66, s66, 10")
    k(f"s_lshl_b32 s67, {s_db}, 7")
    k("s_add_u32 s66, s66, s67")
    k("s_lshl_b32 s68, s65, 12")
    k("s_lshl_b32 s67, s64, 11")
    k("s_add_u32 s68, s68, s67")

def final_w2_dma(k, vm, R, j, slot):
    for ii in range(2):
        k(f"s_add_u32 m0, s68, {slot*16384 + ii*1024}")
        k(f"s_add_u32 s67, s66, {j*32768 + ii*8192}")
        vm.issue(f"buffer_load_dwordx4 v{R['dma']}, s[{SRD_C}:{SRD_C+3}], s67 offen lds", f"w2_{j}")

def final_addr(k, s_cls, s_hf, s_db, R):
    vT = R["T"]
    k.c("tr-read addresses")
    k(f"v_bfe_u32 v{vT}, v0, 2, 2")
    k(f"v_lshrrev_b32 v{vT+1}, 5, v0")
    k(f"v_lshl_add_u32 v{vT+1}, v{vT+1}, 2, v{vT}")
    k(f"v_lshlrev_b32 v{vT+1}, 7, v{vT+1}")
    k(f"v_bfe_u32 v{vT+2}, v0, 4, 1")
    k(f"v_and_b32 v{vT+3}, 1, v0")
    k(f"v_lshl_add_u32 v{vT+2}, v{vT+2}, 1, v{vT+3}")
    k(f"v_bfe_u32 v{vT+3}, v0, 3, 1")
    k(f"v_lshl_add_u32 v{vT+2}, v{vT+3}, 2, v{vT+2}")
    k(f"v_lshl_add_u32 v{vT+1}, v{vT+2}, 4, v{vT+1}")
    k(f"v_bfe_u32 v{vT+3}, v0, 1, 1")
    k(f"v_lshl_add_u32 v{vT+1}, v{vT+3}, 3, v{vT+1}")
    k("s_lshl_b32 s67, s65, 12")
    k(f"v_add_u32 v{R['tr']}, s67, v{vT+1}")
    k(f"v_xor_b32 v{R['tr']+1}, 64, v{R['tr']}")
    for grp in range(1, 3):
        for e in range(2):
            k(f"v_add_u32 v{R['tr']+2*grp+e}, {grp*65536}, v{R['tr']+e}")
    k(f"v_lshlrev_b32 v{R['h']}, 4, v0")
    k("s_mul_i32 s67, s64, 24576")
    k("s_add_u32 s67, s67, 32768")
    k(f"v_add_u32 v{R['xw']}, s67, v{R['h']}")
    k("s_mul_i32 s69, s65, 6144")
    k(f"v_add_u32 v{R['xr']}, s69, v{R['xw']}")
    k(f"s_lshl_b32 s69, {s_hf}, 6")
    k("s_lshl_b32 s67, s64, 5")
    k("s_add_u32 s69, s69, s67")
    k(f"v_and_b32 v{vT}, 31, v0")
    k(f"v_add_u32 v{vT}, s69, v{vT}")
    k(f"v_lshlrev_b32 v{R['gp']}, 2, v{vT}")
    k(f"v_lshlrev_b32 v{vT+1}, 4, v{vT}")
    k(f"v_add_u32 v{vT+1}, {s_cls}, v{vT+1}")
    k(f"v_cvt_f32_u32 v{R['out']+1}, v{vT+1}")
    k(f"v_lshlrev_b32 v{vT+1}, 10, v{vT+1}")
    k(f"v_lshrrev_b32 v{vT+2}, 5, v0")
    k(f"v_lshlrev_b32 v{vT+2}, 4, v{vT+2}")
    k(f"s_lshl_b32 s67, {s_db}, 7")
    k("s_lshl_b32 s69, s65, 5")
    k("s_add_u32 s67, s67, s69")
    k(f"v_add_u32 v{vT+2}, s67, v{vT+2}")
    k(f"v_add_u32 v{R['out']}, v{vT+1}, v{vT+2}")
    k(f"v_mov_b32 v{R['b2']}, v{vT+2}")

def final_small_loads(k, vm, s_cls, R, sc1=False):
    fl = " sc1" if sc1 else ""
    k.srd(SRD_B, S_PB2, S_PB2 + 1, 1024)
    vm.issue(f"buffer_load_dwordx4 v[{R['b2']}:{R['b2']+3}], v{R['b2']}, s[{SRD_B}:{SRD_B+3}], 0 offen", "b2")

def final_gp_loads(k, vm, s_cls, R, sc1=False):
    fl = " sc1" if sc1 else ""
    k(f"s_lshl_b32 s67, {s_cls}, 9")
    k(f"s_add_u32 s67, s67, {GP_OFF}")
    k(f"v_mov_b32 v{R['T']}, v{R['gp']}")
    for d in range(4):
        if d: k("s_add_u32 s67, s67, 8192")
        vm.issue(f"buffer_load_dword v{R['gp']+d}, v{R['T']}, s[{SRD_WS}:{SRD_WS+3}], s67 offen{fl}", "gp")

def final_gate(k, R):
    vT = R["T"]; G = R["gp"]; TB = R["TB"]; sf = R["out"] + 1
    k(f"v_add_f32 v{G}, v{G}, v{G+1}")
    k(f"v_add_f32 v{G+2}, v{G+2}, v{G+3}")
    k(f"v_add_f32 v{G}, v{G}, v{G+2}")
    k(f"v_mul_f32 v{G}, {fhex(-LOG2E)}, v{G}")
    k(f"v_exp_f32 v{G}, v{G}")
    k(f"v_add_f32 v{G}, 1.0, v{G}")
    k(f"v_rcp_f32 v{R['g']}, v{G}")
    k(f"v_sub_f32 v{R['og']}, 1.0, v{R['g']}")
    k(f"v_mul_f32 v{vT}, {fhex(1/2048)}, v{sf}")
    k(f"v_lshrrev_b32 v{vT+1}, 5, v0")
    k(f"v_lshlrev_b32 v{vT+1}, 1, v{vT+1}")
    k("s_lshl_b32 s67, s65, 4")
    k(f"v_add_u32 v{vT+1}, s67, v{vT+1}")
    k(f"v_cvt_f32_u32 v{vT+1}, v{vT+1}")
    k(f"v_mul_f32 v{vT+1}, v{vT+1}, v{vT}")
    k(f"v_sub_f32 v{vT+2}, 0, v{R['g']}")
    an = vT + 4
    C = R["XR"]; S = R["XR"] + 8
    idx = 0
    for st in range(2):
        for h in range(2):
            for p in range(2):
                off = 8*st + 4*h + p
                if off == 0: k(f"v_mov_b32 v{an+idx}, v{vT+1}")
                else: k(f"v_fmamk_f32 v{an+idx}, v{vT}, {fhex(float(off))}, v{vT+1}")
                idx += 1
    for i in range(8): k(f"v_cos_f32 v{C+i}, v{an+i}")
    for i in range(8): k(f"v_sin_f32 v{S+i}, v{an+i}")
    for i in range(8): k(f"v_mul_f32 v{C+i}, v{R['g']}, v{C+i}")
    for i in range(8): k(f"v_mul_f32 v{S+i}, v{vT+2}, v{S+i}")
    L = k.newlabel("nosp")
    k("s_cmp_lg_u32 s65, 0")
    k(f"s_cbranch_scc1 {L}")
    k(f"v_lshlrev_b32 v{vT+3}, 31, v0")
    k(f"v_xor_b32 v{vT+3}, v{vT+3}, v{R['g']}")
    k("v_cmp_gt_u32 vcc, 32, v0")
    k(f"v_cndmask_b32 v{S}, v{S}, v{vT+3}, vcc")
    k.label(L)
    for i in range(8):
        k(f"v_cvt_pk_bf16_f32 v{TB+i}, v{C+i}, v{S+i}")

def final_main(k, s_cls, s_hf, s_db, R, vm, st=False, hook_t3=None, sc1=False, stb=2, after_h=None, t3merge=False):
    fl = " sc1" if sc1 else ""
    AF, ACC, HB = R["AF"], R["ACC"], R["HB"]
    k.c("h fragment loads")
    k(f"s_mul_i32 s70, {s_cls}, {H_CLS}")
    k(f"s_lshl_b32 s71, {s_hf}, 1")
    k("s_add_u32 s71, s71, s64")
    k(f"s_mul_i32 s71, s71, {43*2048}")
    k("s_add_u32 s70, s70, s71")
    k(f"s_mul_i32 s71, s65, {11*2048}")
    k("s_add_u32 s70, s70, s71")
    if H_OFF: k(f"s_add_u32 s70, s70, {H_OFF}")
    for j in range(11):
        if j == 10:
            k("s_cmp_eq_u32 s65, 3")
            k(f"s_mov_b32 s71, {10*2048}")
            k(f"s_cselect_b32 s71, {9*2048}, s71")
            k("s_add_u32 s71, s70, s71")
        else:
            k(f"s_add_u32 s71, s70, {j*2048}")
        for stp in range(2):
            vm.issue(f"buffer_load_dwordx4 v[{HB+8*j+4*stp}:{HB+8*j+4*stp+3}], v{R['h']}, s[{SRD_WS}:{SRD_WS+3}], s71 offen offset:{stp*1024}{fl}", f"h_{j}")
    stamp(k, stb, st)
    if after_h: after_h()
    steps = [(j, s) for j in range(11) for s in range(2)]
    def slot_of(j): return 0 if j == 10 else j
    def reads(idx, slot, stp):
        buf = AF + 8*(idx % 3)
        grp, so = slot // 4, (slot % 4) * 16384
        for e in range(2):
            for h in range(2):
                r = buf + 4*e + 2*h
                k(f"ds_read_b64_tr_b16 v[{r}:{r+1}], v{R['tr']+2*grp+e} offset:{so + stp*2048 + h*1024}")
    def mfm(idx, b, first=False):
        buf = AF + 8*(idx % 3)
        for e in range(2):
            c = "0" if first else f"v[{ACC+16*e}:{ACC+16*e+15}]"
            k(f"v_mfma_f32_32x32x16_bf16 v[{ACC+16*e}:{ACC+16*e+15}], v[{buf+4*e}:{buf+4*e+3}], v[{b}:{b+3}], {c}")
    vm.wait("w2_9")
    k("s_barrier")
    stamp(k, stb + 1, st)
    def run(seq, first):
        n = len(seq)
        for a in range(min(2, n)): reads(seq[a][0], seq[a][1], seq[a][2])
        for a in range(n):
            idx, slot, stp, b, htag = seq[a]
            if a + 2 < n: reads(*seq[a + 2][:3])
            rem = min(2, n - 1 - a)
            if htag and stp == 0: vm.wait(htag)
            k(f"s_waitcnt lgkmcnt({4*rem})")
            mfm(idx, b, first and a == 0)
    seq = [(2*j + s, j, s, HB + 8*j + 4*s, f"h_{j}") for j in range(2) for s in range(2)]
    run(seq, True)
    k("s_barrier")
    k("s_cmp_eq_u32 s65, 3")
    k(f"s_mov_b32 s71, {10*32768}")
    k(f"s_cselect_b32 s71, {9*32768}, s71")
    for ii in range(2):
        k(f"s_add_u32 m0, s68, {ii*1024}")
        k(f"s_add_u32 s67, s66, s71")
        if ii: k("s_add_u32 s67, s67, 8192")
        vm.issue(f"buffer_load_dwordx4 v{R['dma']}, s[{SRD_C}:{SRD_C+3}], s67 offen lds", "w2_10")
    seq = [(2*j + s, j, s, HB + 8*j + 4*s, f"h_{j}") for j in range(2, 10) for s in range(2)]
    run(seq, False)
    stamp(k, stb + 2, st)
    if hook_t3: hook_t3()
    if not t3merge:
        vm.wait("w2_10")
        k("s_barrier")
    k.c("T3 tile DMA -> slot 1")
    k(f"s_lshl_b32 s70, {s_cls}, 17")
    k("s_lshl_b32 s71, s65, 15")
    k("s_add_u32 s70, s70, s71")
    k("s_lshl_b32 s71, s64, 14")
    k("s_add_u32 s70, s70, s71")
    k(f"s_lshl_b32 s71, {s_db}, 7")
    k("s_add_u32 s70, s70, s71")
    k(f"s_add_u32 s70, s70, {T3_OFF}")
    for ii in range(2):
        k(f"s_add_u32 m0, s68, {16384 + ii*1024}")
        k(f"s_add_u32 s67, s70, {ii*8192}")
        vm.issue(f"buffer_load_dwordx4 v{R['dma']}, s[{SRD_WS}:{SRD_WS+3}], s67 offen lds{fl}", "t3")
    L = k.newlabel("no10")
    k("s_cmp_eq_u32 s65, 3")
    k(f"s_cbranch_scc1 {L}")
    seq = [(20 + s, 0, s, HB + 80 + 4*s, None) for s in range(2)]
    run(seq, False)
    k.label(L)
    for r in range(32):
        k(f"v_mul_f32 v{ACC+r}, v{R['og']}, v{ACC+r}")
    vm.wait("t3")
    k("s_barrier")
    stamp(k, stb + 3, st)
    seq = [(22 + s, 1, s, R["TB"] + 4*s, None) for s in range(2)]
    run(seq, False)
    k.c("reduction")
    Ls = [k.newlabel("red") for _ in range(4)]; Lj = k.newlabel("redj")
    OWN = AF
    for q in range(4):
        if q < 3:
            k(f"s_cmp_lg_u32 s65, {q}")
            k(f"s_cbranch_scc1 {Ls[q+1]}")
        for x in range(1, 4):
            dst = q ^ x
            src = ACC + 16*(dst >> 1) + 8*(dst & 1)
            for h in range(2):
                k(f"ds_write_b128 v{R['xw']}, v[{src+4*h}:{src+4*h+3}] offset:{dst*6144 + (x-1)*2048 + h*1024}")
        own = ACC + 16*(q >> 1) + 8*(q & 1)
        for i in range(8): k(f"v_mov_b32 v{OWN+i}, v{own+i}")
        if q < 3:
            k(f"s_branch {Lj}")
            k.label(Ls[q+1])
    k.label(Lj)
    k("s_waitcnt lgkmcnt(0)")
    k("s_barrier")
    XR = R["XR"]
    for x in range(3):
        for h in range(2):
            k(f"ds_read_b128 v[{XR+8*x+4*h}:{XR+8*x+4*h+3}], v{R['xr']} offset:{x*2048 + h*1024}")
    B2 = R["HB"]
    for i in range(4):
        k(f"v_lshlrev_b32 v{B2+2*i}, 16, v{R['b2']+i}")
        k(f"v_and_b32 v{B2+2*i+1}, 0xffff0000, v{R['b2']+i}")
    for i in range(8): k(f"v_fmac_f32 v{OWN+i}, v{R['og']}, v{B2+i}")
    for x in range(3):
        k(f"s_waitcnt lgkmcnt({4-2*x})")
        for i in range(8): k(f"v_add_f32 v{OWN+i}, v{OWN+i}, v{XR+8*x+i}")
    for i in range(4): k(f"v_cvt_pk_bf16_f32 v{XR+i}, v{OWN+2*i}, v{OWN+2*i+1}")
    k.srd(SRD_B, S_POUT, S_POUT + 1, 2048 * 1024)
    k(f"buffer_store_dwordx4 v[{XR}:{XR+3}], v{R['out']}, s[{SRD_B}:{SRD_B+3}], 0 offen")
    stamp(k, stb + 4, st)

def final(k, s_cls, s_hf, s_db, st=False):
    R = final_regs(); vm = VM(k)
    final_setup(k, s_cls, s_hf, s_db, R)
    for j in range(10): final_w2_dma(k, vm, R, j, j)
    final_addr(k, s_cls, s_hf, s_db, R)
    final_small_loads(k, vm, s_cls, R)
    final_gp_loads(k, vm, s_cls, R)
    stamp(k, 1, st)
    vm.wait("gp")
    final_gate(k, R)
    final_main(k, s_cls, s_hf, s_db, R, vm, st)
    k("s_waitcnt vmcnt(0)")
    stamp(k, 7, st)
```

```python
import fused4, sys, roles
e7 = ((0,1,2),(3,4),(5,6),())
O = ("touch", "w2early", "rflag", "g1defer", "cshare", "p1c", "ws3", "v3", "wrm", "g1post")
base = dict(w56=True, nshadow=3, pos=(3,6,9), g1=dict(D=2, inloop=1), dbmap=((27,6),(30,3)))
fused4.build("f6_0.s", None, opts=O, esched=e7, w56=True, nshadow=3, pos=(3,6,9), g1=dict(D=2, inloop=1))
fused4.build("f6_1.s", None, opts=O, esched=e7, slp=(0,(58,16),((32,16),(56,10))), **base)
fused4.build("f6_2.s", None, opts=O, esched=e7, slp=(0,(58,16),((48,20),(60,10))), **base)
fused4.build("f6_3.s", None, opts=O, esched=e7, slp=(0,((52,24),(60,10)),((32,30),(56,14))), **base)
```

```python
import fused4, sys, roles
e7 = ((0,1,2),(3,4),(5,6),())
O = ("touch", "w2early", "rflag", "g1defer", "cshare", "p1c", "ws3", "v3", "wrm", "g1post")
base = dict(w56=True, nshadow=3, pos=(3,6,9), g1=dict(D=2, inloop=1), dbmap=((27,6),(30,3)))
fused4.build("f6_4.s", None, opts=O, esched=e7, slp=(0,(58,8),((32,10),(56,6))), **base)
fused4.build("f6_5.s", None, opts=O, esched=e7, slp=(0,(58,16),(56,10)), **base)
fused4.build("f6_6.s", None, opts=O, esched=e7, slp=(0,0,((32,16),(56,10))), **base)
fused4.build("f6_7.s", None, opts=O, esched=e7, slp=(0,(58,16),((32,16),(56,6))), **base)
fused4.build("f6_8.s", None, opts=O, esched=e7, slp=(0,(58,16),((32,16),(56,10))), **{**base, "dbmap": ()})
```

```python
import roles, roles2, sys
from roles2 import *
from roles3 import *
import roles3
from fused import (NAME, RF_OFF, TF_OFF, HF_OFF, SRD_DBG, NL, NH, VS, SPIN, FB, wave0, nonce_publish, nonce_issue, nonce_check,
                   flag_store, poll, poll2, poll3, dbg_stamps)

def wave0not(k):
    L = k.newlabel("w0only")
    k("s_cmp_eq_u32 s3, 0")
    k(f"s_cbranch_scc1 {L}")
    return L

def build(fn, stmap=None, dbg=False, rot=4, g1=None, opts=(), dbrot=0, esched=((0,1,2),(3,4),(),()), w56=False, nshadow=3, pos=(3, 6, 9), fiss_at='A', fchk_at='W', tpre=9, tail4=0, rot_j=0, p1x=0, dbmap=(), ppr=None, ppt=None, t3m=False, slp=(0,0,0), pm=(False, False), tperm=False, hthr=0, rw=None, rcopy=8, tcopy=32):
    RFO = RF_OFF if rcopy == 8 else 0xC80000
    TFO = TF_OFF if tcopy == 32 else 0xC40000
    nearly = sum(len(e) for e in esched)
    st = stmap is not None
    roles2.STMAP.clear()
    if st: roles2.STMAP.update(stmap)
    k = K()
    k("s_cmp_ge_u32 s2, 256")
    k("s_cbranch_scc1 L_end")
    if rot_j:
        k("s_lshr_b32 s100, s2, 3")
        k(f"s_add_u32 s100, s100, {rot_j}")
        k("s_and_b32 s100, s100, 31")
        k("s_lshl_b32 s100, s100, 3")
        k("s_and_b32 s2, s2, 7")
        k("s_or_b32 s2, s2, s100")
    if st: stamps_clear(k); stamp(k, 0)
    pro_issue(k)
    k("s_and_b32 s72, s2, 7")
    k("s_lshr_b32 s73, s2, 3")
    k(f"s_add_u32 s76, s73, {dbrot}")
    k("s_and_b32 s76, s76, 7")
    for jj, dd in dbmap:
        k(f"s_cmp_eq_u32 s73, {jj}")
        k(f"s_cselect_b32 s76, {dd}, s76")
    k("s_lshr_b32 s74, s73, 3")
    k("s_lshl_b32 s75, s72, 2")
    k("s_add_u32 s75, s75, s74")
    k("s_lshr_b32 s74, s75, 1")
    k("s_and_b32 s75, s75, 1")
    R = fin_regs()
    fin_setup_pre(k, "s76", R, 232)
    k("s_cmp_ge_u32 s73, 22")
    k("s_cbranch_scc1 L_notg1")
    k("s_and_b32 s70, s73, 1")
    k("s_lshl_b32 s71, s72, 1")
    k("s_add_u32 s70, s70, s71")
    k("s_lshr_b32 s71, s73, 1")
    vm = VM(k)
    def post():
        fin_srd(k)
        k.srd(SRD_DBG, S_PDBG, S_PDBG + 1, 256)
        nonce_publish(k)
    left = gemm1b(k, "s70", "s71", R, vm, rot=rot, post_issue=post, pre_epi=lambda: nonce_issue(k), defer=("g1defer" in opts), **(g1 or {}))
    sn(k, "st1")
    nlate = 0
    if "g1defer" in opts and "g1post" not in opts:
        for pr in left:
            for j in pr:
                for ii in range(2): w2_piece(k, vm, R, j, ii); nlate += 1
    final_addr(k, "s74", "s75", "s76", R)
    final_small_loads(k, vm, "s74", R)
    k(f"s_waitcnt vmcnt({nlate + 1 if 'g1defer' in opts else 0})")
    k("s_barrier")
    L = wave0(k)
    nonce_check(k)
    def a():
        k("s_lshl_b32 s48, s70, 9")
        k("s_lshl_b32 s49, s71, 3")
        k("s_add_u32 s48, s48, s49")
        k(f"s_add_u32 s48, s48, {HF_OFF}")
        k(f"v_lshl_add_u32 v{VS}, v0, 8, s48")
    flag_store(k, 2, a)
    k.label(L)
    sn(k, "st2")
    if "g1post" in opts:
        for pr in left:
            for j in pr:
                for ii in range(2): w2_piece(k, vm, R, j, ii)
    for j in (4, 5):
        for ii in range(2): w2_piece(k, vm, R, j, ii)
    k("s_branch L_final")
    k.label("L_notg1")
    k("s_cmp_ge_u32 s73, 30")
    k("s_cbranch_scc1 L_nop1")
    k("s_sub_u32 s77, s73, 22")
    k("s_and_b32 s70, s77, 1")
    k("s_lshl_b32 s71, s72, 1")
    k("s_add_u32 s70, s70, s71")
    k("s_lshr_b32 s71, s77, 1")
    if p1x: k(f"s_xor_b32 s71, s71, {p1x}")
    k("s_lshl_b32 s77, s77, 3")
    k("s_add_u32 s77, s77, s72")
    roles.P2_PITCH = 1032; roles.P2_E1 = FB; roles.P2_SLAB = FB + 32768; roles.P2_E2 = FB + 32768
    R2 = p2_regs3(); R2["srdw"] = (SRD_C, SRD_D)
    vm = VM(k)
    p2_nq(k, R2)
    def wshuf():
        if "ws3" in opts: w_shuffle3(k, R2, "s77", 148, 2)
        elif "ws2" in opts: w_shuffle2(k, R2, "s77", 148, 2)
        else: w_shuffle(k, R2, "s77", 87, 2)
    def wraw(vm):
        if "ws3" in opts: w_raw3(k, vm, "s77", R2, 4)
        else: w_raw_load(k, vm, "s77", R2, 4)
    def ai():
        p2_wsrd(k, R2)
        p2_wload_row(k, vm, "s77", R2, 0, 88, 4)
        k.srd(SRD_DBG, S_PDBG, S_PDBG + 1, 256)
    def am():
        if "rflag" not in opts and "wlate" not in opts: p2_wload_row(k, vm, "s77", R2, 1, 88, 4)
        k(f"v_mov_b32 v{VS}, 0")
        k(f"buffer_load_dwordx2 v[{VS+2}:{VS+3}], v{VS}, s[{SRD_DBG}:{SRD_DBG+3}], 0 offen")
    if "p1c" in opts:
        def ac():
            p2_wsrd(k, R2)
            k.srd(SRD_DBG, S_PDBG, S_PDBG + 1, 256)
            if "wrc" in opts: wraw(vm)
            if "wtouch" in opts:
                k("v_mov_b32 v12, 0")
                k("s_mov_b64 exec, 1")
                vm.issue(f"buffer_load_ushort v13, v12, s[{SRD_C}:{SRD_C+3}], 0 offen", "tch")
                vm.issue(f"buffer_load_ushort v14, v12, s[{SRD_D}:{SRD_D+3}], 0 offen", "tch")
                if "wtouch2" in opts:
                    for n_, off in enumerate((R_OFF, GP_OFF, RF_OFF, T3_OFF)):
                        k(f"s_mov_b32 s53, {off}")
                        vm.issue(f"buffer_load_dword v15, v12, s[{SRD_WS}:{SRD_WS+3}], s53 offen", "tch")
                k("s_mov_b64 exec, -1")
        def ax():
            if "wrc" not in opts and "wrm" not in opts and "v3" not in opts: wraw(vm)
        inm = None
        if "wrm" in opts:
            wa, wp = (w_raw3_parts if "ws3" in opts else w_raw_parts)(k, vm, "s77", R2)
            ac0 = ac
            def ac():
                ac0(); wa()
            inm = {0: wp[0], 2: wp[1], 4: wp[2], 6: wp[3]}
        p1c(k, vm, "s70", "s71", FB, after_const=ac, after_x=ax, after_mfma=am, in_mfma=inm, gpearly=("v3" in opts), gwreg=("gwreg" in opts))
    else:
        p1b(k, vm, "s70", "s71", FB, after_issue=ai, after_mfma=am)
    sn(k, "st1")
    if "v3" in opts:
        if "v1" not in opts:
            if "wrm" not in opts: wraw(vm)
            fin_srd(k)
        sn(k, "f_wiss")
        vm.wait("Rst")
        sn(k, "f_wait")
    elif "p1c" in opts:
        fin_srd(k)
        if "wsl" not in opts:
            vm.wait("Wr")
            wshuf()
        sn(k, "f_wiss")
        vm.wait("gp")
        sn(k, "f_wait")
    elif "wlate" in opts:
        p2_consts(k, "s77", R2)
        p2_addr3(k, "s77", R2)
        sn(k, "f_p2c")
        vm.wait("gp")
        sn(k, "f_wait")
    elif "rflag" in opts:
        p2_wload_row(k, vm, "s77", R2, 1, 88, 4)
        fin_srd(k)
        if "c_pre" in opts: p2_addr3(k, "s77", R2)
        sn(k, "f_wiss")
        vm.wait("gp")
        sn(k, "f_wait")
    else:
        fin_srd(k)
        p2_consts(k, "s77", R2)
        p2_addr3(k, "s77", R2)
        sn(k, "f_p2c")
        k("s_waitcnt vmcnt(0)")
        sn(k, "f_wait")
    k("s_barrier")
    sn(k, "f_bar")
    nonce_check(k)
    L = k.newlabel("w0skip"); L2_ = k.newlabel("w0j")
    k("s_cmp_lg_u32 s3, 0")
    k(f"s_cbranch_scc1 {L}")
    def a():
        k("s_lshl_b32 s48, s70, 2")
        k("s_add_u32 s48, s48, s71")
        k("s_lshl_b32 s48, s48, 3")
        k(f"s_add_u32 s48, s48, {RF_OFF}")
        k(f"v_lshl_add_u32 v{VS}, v0, 10, s48")
        k("s_lshl_b32 s48, s70, 9")
        k("s_lshl_b32 s49, s71, 3")
        k("s_add_u32 s48, s48, s49")
        k(f"s_add_u32 s48, s48, {HF_OFF + 88 - 8*256}")
        k(f"v_lshl_add_u32 v{VS+1}, v0, 8, s48")
        k("v_cmp_gt_u32 vcc, 8, v0")
        k(f"v_cndmask_b32 v{VS}, v{VS+1}, v{VS}, vcc")
    def a64():
        k("s_lshl_b32 s48, s70, 2")
        k("s_add_u32 s48, s48, s71")
        k("s_lshl_b32 s48, s48, 3")
        k(f"s_add_u32 s48, s48, {RFO}")
        k(f"v_lshl_add_u32 v{VS}, v0, 10, s48")
    def ahf():
        k("s_lshl_b32 s48, s70, 9")
        k("s_lshl_b32 s49, s71, 3")
        k("s_add_u32 s48, s48, s49")
        k(f"s_add_u32 s48, s48, {HF_OFF + 88}")
        k(f"v_lshl_add_u32 v{VS}, v0, 8, s48")
    if rcopy == 8: flag_store(k, 10, a)
    else:
        flag_store(k, rcopy, a64)
        flag_store(k, 2, ahf)
    if "v1" in opts:
        wraw(VM(k))
        fin_srd(k)
    if "wlate" in opts:
        p2_wload_row(k, VM(k), "s77", R2, 1, 148, 4)
        fin_srd(k)
    k(f"s_branch {L2_}")
    k.label(L)
    if "v1" in opts:
        wraw(VM(k))
        fin_srd(k)
    if "wlate" in opts:
        p2_wload_row(k, VM(k), "s77", R2, 1, 148, 4)
        fin_srd(k)
    if "w2early" in opts:
        for j in range(5):
            for ii in range(2): w2_piece(k, VM(k), R, j, ii)
    k.label(L2_)
    sn(k, "st2")
    if "rflag" in opts and "cshare" not in opts:
        p2_consts(k, "s77", R2)
        if "c_pre" not in opts: p2_addr3(k, "s77", R2)
        sn(k, "f_p2c")
        L = k.newlabel("ww"); L2_ = k.newlabel("wwj")
        k("s_cmp_lg_u32 s3, 0")
        k(f"s_cbranch_scc1 {L}")
        k("s_waitcnt vmcnt(1)")
        k(f"s_branch {L2_}")
        k.label(L)
        k(f"s_waitcnt vmcnt({10 if 'w2early' in opts else 0})")
        k.label(L2_)
    k("s_branch L_p2")
    k.label("L_nop1")
    k("s_sub_u32 s50, s2, 240")
    k("s_mul_i32 s50, s50, 688")
    k("s_lshl_b32 s51, s3, 6")
    k("s_add_u32 s50, s50, s51")
    k("v_add_u32 v2, s50, v0")
    k("v_lshlrev_b32 v2, 7, v2")
    pro_wait(k)
    if "touch" in opts:
        fin_srd(k)
        k(f"buffer_load_dword v241, v2, s[{SRD_C}:{SRD_C+3}], 0 offen")
        L = k.newlabel("t2")
        k("s_cmp_ge_u32 s3, 3")
        k(f"s_cbranch_scc1 {L}")
        k("v_add_u32 v2, 0x10000, v2")
        k(f"buffer_load_dword v242, v2, s[{SRD_C}:{SRD_C+3}], 0 offen")
        k.label(L)
    k.srd(SRD_DBG, S_PDBG, S_PDBG + 1, 256)
    k("s_cmp_lg_u32 s2, 240")
    k("s_cbranch_scc1 L_idle")
    k("s_mov_b32 s77, 64")
    vm = VM(k)
    p2_nq(k, R2)
    p2_wsrd(k, R2)
    if "p1c" in opts:
        wraw(vm)
        fin_srd(k)
        nonce_check(k, issued=False)
        k("s_waitcnt vmcnt(0)")
        if "wsl" not in opts and "v3" not in opts: wshuf()
    else:
        p2_wload_row(k, vm, "s77", R2, 0, 148, 4)
        if "cshare" not in opts: p2_consts(k, "s77", R2)
        p2_wload_row(k, vm, "s77", R2, 1, 148, 4)
        if "cshare" not in opts: p2_addr3(k, "s77", R2)
        fin_srd(k)
        nonce_check(k, issued=False)
        k("s_waitcnt vmcnt(0)")
    if "w2early" in opts:
        L = wave0not(k)
        for j in range(5):
            for ii in range(2): w2_piece(k, VM(k), R, j, ii)
        k.label(L)
    k.label("L_p2")
    vm = VM(k)
    if "cshare" in opts:
        if "wsl" in opts: wshuf()
        p2_addr3(k, "s77", R2)
        p2_consts_share(k, "s77", R2, FB)
        if "v3" in opts and "v1" not in opts:
            L = wave0not(k)
            k("s_waitcnt vmcnt(10)")
            wshuf()
            k.label(L)
        k("s_waitcnt lgkmcnt(0)")
        sn(k, "f_p2c")
    elif "wlate" not in opts: p2_wfix(k, R2)
    def so():
        if rcopy == 8: k("s_lshl_b32 s49, s72, 10")
        else:
            k(f"s_and_b32 s49, s77, {rcopy-1}")
            k("s_lshl_b32 s49, s49, 10")
        k(f"s_add_u32 s49, s49, {RFO}")
    if rw is not None:
        assert "cshare" in opts and "v3" in opts and "p1c" in opts
        k("s_barrier")
        p2_consts_read(k, R2, FB)
        L = wave0(k)
        wshuf()
        k.label(L)
        k("s_waitcnt lgkmcnt(0)")
        def sow():
            so()
            k("s_lshl_b32 s50, s3, 6")
            k("s_add_u32 s49, s49, s50")
        poll(k, 8, sow, slp=rw, allw=True)
        sn(k, "st3")
        p2_slab_dma(k, "s77", R2)
    else:
        if "wsh0" in opts:
            L = wave0(k)
            wshuf()
            k.label(L)
        if ppr: poll2(k, 64, so, (244, 246, 252)[:ppr[0]], stag=ppr[1])
        elif pm[0]: poll3(k, so, slp[0])
        else: poll(k, 64, so, slp=slp[0])
        sn(k, "st3")
        p2_slab_dma(k, "s77", R2)
        if "cshare" in opts:
            p2_consts_read(k, R2, FB)
            if "v1" in opts:
                k("s_waitcnt vmcnt(14)")
                wshuf()
            elif "v3" in opts and "wsh0" not in opts:
                L = wave0(k)
                wshuf()
                k.label(L)
        if "cshare" in opts:
            if "p1c" not in opts:
                k("s_waitcnt vmcnt(4)")
                p2_wfix(k, R2)
            k("s_waitcnt lgkmcnt(0)")
    if "wlate" in opts:
        k("s_waitcnt vmcnt(4)")
        p2_wfix(k, R2)
    if "w2early" in opts:
        k("s_waitcnt vmcnt(0)")
    else:
        for j in range(5):
            for ii in range(2): w2_piece(k, vm, R, j, ii)
        k("s_waitcnt vmcnt(10)")
    k("s_barrier")
    sn(k, "p_slab")
    V = {}
    RF = dict(R)
    if nearly > 5: RF['hmap'] = {5: 212, 6: 220}
    def fiss():
        k("s_lshl_b32 s61, s74, 1")
        k("s_add_u32 s61, s61, s75")
        k("s_lshl_b32 s61, s61, 8")
        k(f"s_add_u32 s61, s61, {HF_OFF}")
        flags_issue(k, 15, "s61")
    def fchk():
        sn(k, "p_hw")
        flags_check(k, "s61", "s60")
        sn(k, "p_hfl")
        V["vm"] = VM(k)
        k(f"v_lshlrev_b32 v{R['h']}, 4, v0")
        h_base(k, "s74", "s75")
    def hook(name, idx):
        def f():
            if name == "A" and "w2early" in opts:
                L = wave0(k)
                for j in range(5):
                    for ii in range(2): w2_piece(k, VM(k), R, j, ii)
                k.label(L)
            if fchk_at == name: fchk()
            if fiss_at == name: fiss()
            if idx is not None:
                assert not esched[idx] or "vm" in V
                for j in esched[idx]: h_load(k, V["vm"], RF, j)
            if name == "B": final_addr(k, "s74", "s75", "s76", R)
        return f
    hA, hW, hW2, hW3, hB = hook("A", None), hook("W", 0), hook("W2", 1), hook("W3", 2), hook("B", 3)
    def hC():
        final_gp_loads(k, V["vm"], "s74", R, sc1=False)
        if len(esched) > 4:
            for j in esched[4]: h_load(k, V["vm"], RF, j)
        if w56:
            for j in (5, 6):
                for ii in range(2): w2_piece(k, V["vm"], R, j, ii)
    p2_main3(k, "s77", R2, lambda: V["vm"], dict(A=hA, W=hW, W2=hW2, W3=hW3, B=hB, C=hC, V=lambda: k("s_barrier")))
    sn(k, "st4")
    vm = V["vm"]
    def w2l(j):
        for ii in range(2): w2_piece(k, vm, R, j, ii)
    def w10():
        k("s_cmp_eq_u32 s65, 3")
        k(f"s_mov_b32 s71, {10*32768}")
        k(f"s_cselect_b32 s71, {9*32768}, s71")
        for ii in range(2):
            k(f"s_add_u32 m0, s68, {ii*1024}")
            k(f"s_add_u32 s67, s66, s71")
            if ii: k("s_add_u32 s67, s67, 8192")
            vm.issue(f"buffer_load_dwordx4 v{R['dma']}, s[{SRD_C}:{SRD_C+3}], s67 offen lds", "w2_10")
    items = []
    if not w56: items += [lambda: (w2l(5), w2l(6))]
    for j in range(nearly, 7): items.append(lambda j=j: h_load(k, vm, RF, j))
    for j in (7, 8, 9): items.append(lambda j=j: (w2l(j), h_load(k, vm, RF, j)))
    n_late = len(items) - min(len(items), nshadow)
    pre = items[:len(items) - n_late]; post = items[len(items) - n_late:]
    def tflag():
        vm.wait("t3st")
        if "w2_6" in vm.q: vm.wait("w2_6")
        k("s_barrier")
        L = wave0(k)
        def a():
            if tperm:
                k("s_and_b32 s48, s77, 7")
                k("s_lshl_b32 s48, s48, 3")
                k("s_bfe_u32 s49, s77, 0x30003")
                k("s_or_b32 s48, s48, s49")
                k("s_and_b32 s49, s77, 64")
                k("s_or_b32 s48, s48, s49")
                k("s_lshl_b32 s48, s48, 3")
            else:
                k("s_lshl_b32 s48, s77, 3")
            k(f"s_add_u32 s48, s48, {TFO}")
            k(f"v_lshl_add_u32 v{VS}, v0, 10, s48")
        flag_store(k, tcopy, a)
        k.label(L)
        sn(k, "f_tfl")
    if tail4:
        assert not pre or nshadow == 0
        vm.wait("gp")
        final_gate(k, R)
        sn(k, "f_gate")
        gemm2_run(k, vm, RF, gseq(RF, range(0, 5)), True)
        sn(k, "f_g04")
        vm.wait("t3st")
        k("s_barrier")
        def late(v):
            nonlocal vm
            vm0 = vm; vm = v
            for f in items: f()
            h_load(k, vm, RF, 10); w10(); final_small_loads(k, vm, "s74", R)
            vm = vm0
        import copy
        Lo, Lj = k.newlabel("t4o"), k.newlabel("t4j")
        k("s_cmp_lg_u32 s3, 0")
        k(f"s_cbranch_scc1 {Lo}")
        v0 = VM(k); v0.q = list(vm.q); v0.seen = set(vm.seen)
        late(v0)
        def a():
            k("s_lshl_b32 s48, s77, 3")
            k(f"s_add_u32 s48, s48, {TF_OFF}")
            k(f"v_lshl_add_u32 v{VS}, v0, 10, s48")
        flag_store(k, 32, a)
        v0.q.append("fl")
        sn(k, "f_tfl")
        gemm2_run(k, v0, RF, gseq(RF, (5, 6)), False)
        k(f"s_branch {Lj}")
        k.label(Lo)
        v1 = VM(k); v1.q = list(vm.q); v1.seen = set(vm.seen)
        if tail4 == 1:
            gemm2_run(k, v1, RF, gseq(RF, (5,)), False)
            late(v1)
        else:
            late(v1)
            gemm2_run(k, v1, RF, gseq(RF, (5,)), False)
        k(f"v_mov_b32 v{VS}, 0")
        k("s_mov_b64 exec, 1")
        v1.issue(f"buffer_load_dword v{VS+2}, v{VS}, s[{SRD_WS}:{SRD_WS+3}], 0 offen", "fl")
        k("s_mov_b64 exec, -1")
        gemm2_run(k, v1, RF, gseq(RF, (6,)), False)
        k.label(Lj)
        assert v0.q == v1.q, (v0.q, v1.q)
        vm.q = list(v1.q); vm.seen = set(v1.seen) | set(v0.seen)
        sn(k, "f_g56")
        for grp in ((7,), (8, 9)) if tail4 < 3 else ((7, 8, 9),):
            vm.wait(f"w2_{grp[-1]}")
            k("s_barrier")
            gemm2_run(k, vm, RF, gseq(RF, grp), False)
        sn(k, "st5")
        k("s_branch L_t3")
    if tpre == -2: tflag()
    vm.wait("gp")
    final_gate(k, R)
    sn(k, "f_gate")
    if tpre == -1: tflag()
    aft = {}
    for n_, f in enumerate(pre): aft[pos[n_]] = f
    if 0 <= tpre < 9:
        f0 = aft.get(tpre)
        def both():
            tflag()
            if f0: f0()
        aft[tpre] = both
    gemm2_run(k, vm, RF, gseq(RF, range(0, 5)), True, after=aft)
    sn(k, "f_g04")
    if tpre >= 9: tflag()
    for f in post: f()
    h_load(k, vm, RF, 10); w10(); final_small_loads(k, vm, "s74", R)
    gemm2_run(k, vm, RF, gseq(RF, (5, 6)), False)
    sn(k, "f_g56")
    if nshadow >= len(items):
        vm.wait("w2_9")
        k("s_barrier")
        gemm2_run(k, vm, RF, gseq(RF, (7, 8, 9)), False)
    else:
        for j in (7, 8, 9):
            vm.wait(f"w2_{j}")
            k("s_barrier")
            gemm2_run(k, vm, RF, gseq(RF, (j,)), False)
    sn(k, "st5")
    k("s_branch L_t3")
    k.label("L_idle")
    fin_srd(k)
    L = wave0(k)
    nonce_check(k, issued=False)
    k.label(L)
    vm = VM(k)
    for j in range(10):
        for ii in range(2): w2_piece(k, vm, R, j, ii)
    final_addr(k, "s74", "s75", "s76", R)
    final_small_loads(k, vm, "s74", R)
    k.label("L_final")
    vm = VM(k)
    for j in range(10): vm.q.append(f"w2_{j}"); vm.seen.add(f"w2_{j}")
    def so():
        k("s_lshl_b32 s49, s74, 1")
        k("s_add_u32 s49, s49, s75")
        k("s_lshl_b32 s49, s49, 8")
        k(f"s_add_u32 s49, s49, {HF_OFF}")
    poll(k, 15, so, slp=slp[1])
    sn(k, "st5")
    final_gp_loads(k, vm, "s74", R)
    def after_h():
        vm.wait("gp")
        final_gate(k, R)
    def hook_t3():
        k.label("L_t3")
        def so():
            if tcopy == 32: k("s_and_b32 s49, s2, 31")
            else: k(f"s_and_b32 s49, s2, {tcopy-1}")
            k("s_lshl_b32 s49, s49, 10")
            k(f"s_add_u32 s49, s49, {TFO}")
        if ppt or t3m:
            vm.wait("w2_10")
            assert not vm.q, vm.q
            k("s_waitcnt vmcnt(0)")
        if ppt: poll2(k, 64, so, (104, 108, 112, 116)[:ppt[0]], wide=True, stag=ppt[1])
        elif pm[1]: poll3(k, so, slp[2], second=512)
        else: poll(k, 64, so, second=512, slp=slp[2])
        sn(k, "st6")
    final_main(k, "s74", "s75", "s76", R, vm, st=False, hook_t3=hook_t3, after_h=after_h, t3merge=bool(ppt or t3m), hthr=hthr)
    if st:
        k("s_waitcnt vmcnt(0)")
        sn(k, "st7")
        if dbg: dbg_stamps(k)
        else: stamps_store(k)
    k.label("L_end")
    k("s_endpgm")
    txt, info = make_file([(NAME, k.l)], [(None, 256, 512, 163840)])
    open(fn, "w").write(txt); print(info)

STD = {f"st{i}": i for i in range(1, 8)}
if __name__ == "__main__":
    O = ("touch", "w2early", "rflag", "g1defer", "cshare", "p1c", "ws3", "v3", "wrm", "g1post")
    roles.STWAVE = 0
    O_ = [O]
    A = {"f_x":1, "st1":2, "st2":3, "p_slab":4, "st5":5, "st6":6, "st7":7}
    e7 = ((0,1,2),(3,4),(5,6),())
    b2 = dict(w56=True, g1=dict(D=2, inloop=1), tpre=9, nshadow=3, pos=(3,6,9))
    DM = ((27,6),(30,3))
    H = (58, 16)
    def B(fn, h, t, r=0, **kw): build(fn, A, opts=O_[0], esched=e7, dbmap=DM, slp=(r, h, t), **{**b2, **kw})
    H = (58,16); T = ((32,16),(56,10))
    B("g_a.s", H, T)
    O0 = O_[0]
    O_[0] = O0 + ("wsh0",)
    B("g_b.s", H, T)
    O_[0] = O0
    B("g_c.s", H, T)
    O_[0] = O0 + ("wsh0",)
    B("g_d.s", H, T)
```

```python
from asmlib import *

H_OFF = 0x0; H_CLS = 4 * 43 * 2048
R_OFF = 0x600000
T3_OFF = 0x800000
GP_OFF = 0xA00000
ST_OFF = 0xB00000
WS_SIZE = 0x1000000
NST = 8
STWAVE = 0

S_WG = 2
S_WAVE = 3
S_PX, S_PWR, S_PWI = 4, 6, 8
S_PW1, S_PB1, S_PW2, S_PB2 = 12, 14, 16, 18
S_PGW, S_POUT, S_PDBG, S_PWS = 20, 22, 24, 26
SRD_WS = 28
SRD_A = 32
SRD_B = 36
SRD_C = 40
SRD_D = 44
S_T = 48
S_STAMP = 80

def prologue(k):
    k("s_load_dwordx4 s[4:7], s[0:1], 0")
    k("s_load_dwordx2 s[8:9], s[0:1], 16")
    k("s_load_dwordx8 s[12:19], s[0:1], 32")
    k("s_load_dwordx8 s[20:27], s[0:1], 64")
    k("v_lshrrev_b32 v1, 6, v0")
    k("v_and_b32 v0, 63, v0")
    k("v_readfirstlane_b32 s3, v1")
    k("s_waitcnt lgkmcnt(0)")
    k.srd(SRD_WS, S_PWS, S_PWS + 1, WS_SIZE)

def stamp(k, i, on=True):
    if on: k(f"s_memrealtime s[{S_STAMP+2*i}:{S_STAMP+2*i+1}]")

def stamps_clear(k):
    for i in range(NST):
        k(f"s_mov_b64 s[{S_STAMP+2*i}:{S_STAMP+2*i+1}], 0")

def stamps_store(k):
    L = k.newlabel("nost")
    k(f"s_cmp_lg_u32 s3, {STWAVE}")
    k(f"s_cbranch_scc1 {L}")
    k("s_waitcnt lgkmcnt(0)")
    k(f"s_mul_i32 s48, s2, {NST*8}")
    k(f"s_add_u32 s48, s48, {ST_OFF}")
    for i in range(0, NST, 2):
        for j in range(4):
            k(f"v_mov_b32 v{4+j}, s{S_STAMP+2*i+j}")
        k(f"v_mov_b32 v8, {i*8}")
        k("v_cmp_eq_u32 vcc, 0, v0")
        k("s_and_saveexec_b64 s[50:51], vcc")
        k(f"buffer_store_dwordx4 v[4:7], v8, s[{SRD_WS}:{SRD_WS+3}], s48 offen")
        k("s_mov_b64 exec, s[50:51]")
    k("s_waitcnt vmcnt(0)")
    k.label(L)

GELU_C0 = -2.0 * 0.7978845608028654 * 1.4426950408889634
GELU_C1 = GELU_C0 * 0.044715
import struct
def f2u(f): return struct.unpack("<I", struct.pack("<f", f))[0]

def gemm1(k, s_cls, s_fb, st=False, sc1=False, nocomp=False, nodma=False, noepi=False, order=False, touch=0, tail_wait=True, pre_epi=None):
    SX, SW, SB = SRD_A, SRD_B, SRD_C
    k.srd(SX, S_PX, S_PX + 1, 2048 * 512 * 2)
    k.srd(SW, S_PW1, S_PW1 + 1, 512 * 1376 * 2)
    k.srd(SB, S_PB1, S_PB1 + 1, 1376 * 2)
    vXo = [2, 3]; vWo = [4, 5]
    vBa = 6
    vAa = 18
    vT = 24
    vB = 32
    vA = 48
    ACC = 80
    vBias = 112
    vE = 128
    sM0 = S_T
    k.c("x dma offsets")
    k(f"s_lshl_b32 s50, s3, 1")
    for i in range(2):
        k(f"v_lshrrev_b32 v{vT}, 3, v0")
        k(f"s_add_u32 s51, s50, {i}")
        k(f"s_lshl_b32 s51, s51, 3")
        k(f"v_add_u32 v{vT}, s51, v{vT}")
        k(f"v_lshlrev_b32 v{vT}, 14, v{vT}")
        k(f"v_lshrrev_b32 v{vT+1}, 4, v0")
        k(f"v_add_u32 v{vT+1}, {4*i}, v{vT+1}")
        k(f"v_and_b32 v{vT+2}, 7, v0")
        k(f"v_xor_b32 v{vT+1}, v{vT+1}, v{vT+2}")
        k(f"v_lshl_add_u32 v{vT}, v{vT+1}, 4, v{vT}")
        k(f"s_lshl_b32 s51, {s_cls}, 10")
        k(f"v_add_u32 v{vXo[i]}, s51, v{vT}")
    k.c("w1 dma offsets")
    for i in range(2):
        k(f"s_add_u32 s51, s50, {i}")
        k(f"s_lshl_b32 s51, s51, 2")
        k(f"v_lshrrev_b32 v{vT}, 4, v0")
        k(f"v_lshlrev_b32 v{vT+1}, 2, v{vT}")
        k(f"v_and_b32 v{vT+2}, 15, v0")
        k(f"v_xor_b32 v{vT+1}, v{vT+1}, v{vT+2}")
        k(f"v_lshlrev_b32 v{vT+1}, 4, v{vT+1}")
        k(f"s_lshl_b32 s52, {s_fb}, 8")
        k(f"v_add_u32 v{vT+1}, s52, v{vT+1}")
        k(f"v_min_u32 v{vT+1}, {2752-16}, v{vT+1}")
        k(f"v_add_u32 v{vT}, s51, v{vT}")
        k(f"v_mul_u32_u24 v{vT}, 2752, v{vT}")
        k(f"v_add_u32 v{vWo[i]}, v{vT}, v{vT+1}")
    k(f"s_lshl_b32 s48, s3, 11")
    k(f"s_add_u32 s49, s48, 16384")
    def dma(c):
        slot = c % 5
        for i in range(2):
            k(f"s_add_u32 m0, s48, {slot*32768 + i*1024}")
            k(f"s_mov_b32 s53, {c*128}")
            k(f"buffer_load_dwordx4 v{vXo[i]}, s[{SX}:{SX+3}], s53 offen lds")
        for i in range(2):
            k(f"s_add_u32 m0, s49, {slot*32768 + i*1024}")
            k(f"s_mov_b32 s53, {c*64*2752}")
            k(f"buffer_load_dwordx4 v{vWo[i]}, s[{SW}:{SW+3}], s53 offen lds")
    if touch:
        nx = (16384 + touch - 1) // touch; nw = (11008 + touch - 1) // touch
        k(f"s_mul_i32 s58, s2, {nx}")
        k(f"s_lshl_b32 s59, s3, 6")
        k(f"v_add_u32 v{vT+4}, s59, v0")
        k(f"v_cmp_gt_u32 vcc, {nx}, v{vT+4}")
        k(f"v_add_u32 v{vT+5}, s58, v{vT+4}")
        k(f"v_lshlrev_b32 v{vT+5}, 7, v{vT+5}")
        k("s_and_saveexec_b64 s[60:61], vcc")
        k(f"buffer_load_dword v{vE}, v{vT+5}, s[{SX}:{SX+3}], 0 offen")
        k("s_mov_b64 exec, s[60:61]")
        k(f"s_mul_i32 s58, s2, {nw}")
        k(f"v_subrev_u32 v{vT+4}, 256, v{vT+4}")
        k(f"v_cmp_gt_u32 vcc, {nw}, v{vT+4}")
        k(f"v_add_u32 v{vT+5}, s58, v{vT+4}")
        k(f"v_lshlrev_b32 v{vT+5}, 7, v{vT+5}")
        k("s_and_saveexec_b64 s[60:61], vcc")
        k(f"buffer_load_dword v{vE+1}, v{vT+5}, s[{SW}:{SW+3}], 0 offen")
        k("s_mov_b64 exec, s[60:61]")
    k.c("bias loads (first so that vmcnt accounting is simple)")
    k(f"s_lshr_b32 s54, s3, 2")
    k(f"s_lshl_b32 s55, s54, 7")
    k(f"s_lshl_b32 s52, {s_fb}, 8")
    k(f"s_add_u32 s55, s55, s52")
    k(f"v_lshrrev_b32 v{vT}, 5, v0")
    k(f"v_lshl_add_u32 v{vT}, v{vT}, 3, s55")
    for e in range(2):
        for g in range(4):
            k(f"buffer_load_dwordx2 v[{vBias+e*8+g*2}:{vBias+e*8+g*2+1}], v{vT}, s[{SB}:{SB+3}], 0 offen offset:{e*64+g*16}")
    for c in range(5):
        dma(c)
        if order and c < 4: k("s_barrier")
    stamp(k, 1, st)
    k.c("LDS read addresses")
    k(f"s_and_b32 s56, s3, 3")
    k(f"s_lshl_b32 s57, s56, 12")
    k(f"v_and_b32 v{vT}, 31, v0")
    k(f"v_lshrrev_b32 v{vT+1}, 1, v{vT}")
    k(f"v_and_b32 v{vT+1}, 7, v{vT+1}")
    k(f"v_lshrrev_b32 v{vT+2}, 5, v0")
    k(f"v_xor_b32 v{vT+1}, v{vT+1}, v{vT+2}")
    k(f"v_lshlrev_b32 v{vT}, 7, v{vT}")
    k(f"v_add_u32 v{vT}, s57, v{vT}")
    for ks in range(4):
        k(f"v_xor_b32 v{vT+2}, {2*ks}, v{vT+1}")
        k(f"v_lshl_add_u32 v{vBa+ks}, v{vT+2}, 4, v{vT}")
        k(f"v_add_u32 v{vBa+4+ks}, 0x10000, v{vBa+ks}")
        k(f"v_add_u32 v{vBa+8+ks}, 0x20000, v{vBa+ks}")
    k(f"v_bfe_u32 v{vT}, v0, 2, 2")
    k(f"v_lshrrev_b32 v{vT+1}, 5, v0")
    k(f"v_lshl_add_u32 v{vT+1}, v{vT+1}, 3, v{vT}")
    k(f"v_lshlrev_b32 v{vT+1}, 8, v{vT+1}")
    k(f"v_bfe_u32 v{vT+2}, v0, 4, 1")
    k(f"v_bfe_u32 v{vT+3}, v0, 1, 1")
    k(f"v_lshl_add_u32 v{vT+2}, v{vT+2}, 1, v{vT+3}")
    k(f"v_and_b32 v{vT+3}, 1, v0")
    k(f"v_lshlrev_b32 v{vT+3}, 3, v{vT+3}")
    k(f"v_add3_u32 v{vT+1}, v{vT+1}, v{vT+3}, 0")
    k(f"v_add_u32 v{vT+1}, 16384, v{vT+1}")
    for e in range(2):
        k(f"s_lshl_b32 s58, s54, 1")
        k(f"s_add_u32 s58, s58, {e}")
        k(f"v_xor_b32 v{vT+4}, s58, v{vT}")
        k(f"v_lshl_add_u32 v{vT+4}, v{vT+4}, 2, v{vT+2}")
        k(f"v_lshl_add_u32 v{vAa+e}, v{vT+4}, 4, v{vT+1}")
        k(f"v_add_u32 v{vAa+2+e}, 0x10000, v{vAa+e}")
        k(f"v_add_u32 v{vAa+4+e}, 0x20000, v{vAa+e}")
    k.c("acc init from bias")
    k("s_waitcnt vmcnt(20)")
    for e in range(2):
        for g in range(4):
            for h in range(2):
                src = vBias + e*8 + g*2 + h
                d = ACC + e*16 + g*4 + h*2
                k(f"v_lshlrev_b32 v{d}, 16, v{src}")
                k(f"v_and_b32 v{d+1}, 0xffff0000, v{src}")
    waits = {0: 16, 1: 12, 2: 12, 3: 12, 4: 12, 5: 8, 6: 4, 7: 0}
    for c in range(8):
        slot = c % 5
        grp = slot // 2; so = (slot % 2) * 32768
        k.c(f"chunk {c}")
        k(f"s_waitcnt vmcnt({waits[c] if not nodma else (waits[c] if c < 1 else 0)})")
        k("s_barrier")
        if c == 0: stamp(k, 2, st)
        if 1 <= c <= 3 and not nodma: dma(c + 4)
        def reads(ks):
            k(f"ds_read_b128 v[{vB+4*ks}:{vB+4*ks+3}], v{vBa+4*grp+ks} offset:{so}")
            for e in range(2):
                for h in range(2):
                    r = vA + e*16 + ks*4 + h*2
                    k(f"ds_read_b64_tr_b16 v[{r}:{r+1}], v{vAa+2*grp+e} offset:{so + ks*4096 + h*1024}")
        def mf(ks):
            for e in range(2):
                k(f"v_mfma_f32_32x32x16_bf16 v[{ACC+16*e}:{ACC+16*e+15}], v[{vA+e*16+ks*4}:{vA+e*16+ks*4+3}], v[{vB+4*ks}:{vB+4*ks+3}], v[{ACC+16*e}:{ACC+16*e+15}]")
        if nocomp: continue
        reads(0); reads(1); reads(2)
        k("s_waitcnt lgkmcnt(10)"); mf(0)
        reads(3)
        k("s_waitcnt lgkmcnt(10)"); mf(1)
        k("s_waitcnt lgkmcnt(5)"); mf(2)
        k("s_waitcnt lgkmcnt(0)"); mf(3)
    stamp(k, 3, st)
    if pre_epi: pre_epi()
    k.c("epilogue: gelu + store")
    k(f"s_mov_b32 s60, {f2u(GELU_C0):#x}")
    k(f"s_mov_b32 s61, s60")
    k(f"s_mov_b32 s62, {f2u(GELU_C1):#x}")
    k(f"s_mov_b32 s63, s62")
    k(f"v_mov_b32 v{vT+6}, s60")
    k(f"v_mov_b32 v{vT+7}, s60")
    k(f"s_mul_i32 s64, {s_cls}, {H_CLS}")
    k(f"s_mul_i32 s65, s56, {43*2048}")
    k(f"s_add_u32 s64, s64, s65")
    k(f"s_lshl_b32 s65, {s_fb}, 2")
    k(f"s_lshl_b32 s66, s54, 1")
    k(f"s_add_u32 s65, s65, s66")
    k(f"s_lshl_b32 s66, s65, 11")
    k(f"s_add_u32 s64, s64, s66")
    k(f"s_add_u32 s64, s64, {H_OFF}")
    k(f"v_lshlrev_b32 v{vT}, 4, v0")
    fl = " sc1" if sc1 else ""
    for e in range(2):
        Lskip = k.newlabel("g1skip")
        if e == 1:
            k("s_cmp_ge_u32 s65, 42")
            k(f"s_cbranch_scc1 {Lskip}")
        else:
            k("s_cmp_ge_u32 s65, 43")
            k(f"s_cbranch_scc1 {Lskip}")
        for stp in range(2):
            a = ACC + 16*e + 8*stp
            E = vE + (e*2+stp)*16
            P = vE + 64 + (e*2+stp)*4
            for p in range(4):
                u = a + 2*p; t = E + 2*p
                k(f"v_pk_mul_f32 v[{t}:{t+1}], v[{u}:{u+1}], v[{u}:{u+1}]")
            for p in range(4):
                t = E + 2*p
                k(f"v_pk_fma_f32 v[{t}:{t+1}], v[{t}:{t+1}], s[62:63], v[{vT+6}:{vT+7}]")
            for p in range(4):
                u = a + 2*p; t = E + 2*p
                k(f"v_pk_mul_f32 v[{t}:{t+1}], v[{t}:{t+1}], v[{u}:{u+1}]")
            for p in range(8): k(f"v_exp_f32 v{E+p}, v{E+p}")
            for p in range(4):
                t = E + 2*p
                k(f"v_pk_add_f32 v[{t}:{t+1}], v[{t}:{t+1}], 1.0 op_sel_hi:[1,0]")
            for p in range(8): k(f"v_rcp_f32 v{E+p}, v{E+p}")
            for p in range(4):
                u = a + 2*p; t = E + 2*p
                k(f"v_pk_mul_f32 v[{t}:{t+1}], v[{t}:{t+1}], v[{u}:{u+1}]")
            for p in range(4):
                k(f"v_cvt_pk_bf16_f32 v{P+p}, v{E+2*p}, v{E+2*p+1}")
            k(f"buffer_store_dwordx4 v[{P}:{P+3}], v{vT}, s[{SRD_WS}:{SRD_WS+3}], s64 offen offset:{e*2048+stp*1024}{fl}")
        k.label(Lskip)
    stamp(k, 4, st)
    if tail_wait:
        k("s_waitcnt vmcnt(0)")
        stamp(k, 5, st)

FM = "v_fmamk_f32"
def fhex(f): return f"{f2u(f):#x}"

def p1(k, s_s2, s_db, st=False, sc1=False, lb=0, tail_wait=True, pre_epi=None):
    SX, SG = SRD_A, SRD_B
    fl = " sc1" if sc1 else ""
    k.srd(SX, S_PX, S_PX + 1, 2048 * 512 * 2)
    k.srd(SG, S_PGW, S_PGW + 1, 1024)
    vT = 2
    vXo = 16
    vAa = 17
    vGW = 20
    vCB = 36
    vAng = 68
    vA = 84
    ACC = 148
    vQ = 180
    vR = 196
    k.c("x DMA")
    k(f"v_lshrrev_b32 v{vT}, 4, v0")
    k(f"v_lshlrev_b32 v{vT+1}, 2, v{vT}")
    k(f"v_and_b32 v{vT+2}, 15, v0")
    k(f"v_xor_b32 v{vT+1}, v{vT+1}, v{vT+2}")
    k(f"v_lshlrev_b32 v{vT+1}, 4, v{vT+1}")
    k(f"v_lshl_add_u32 v{vXo}, v{vT}, 14, v{vT+1}")
    k(f"s_lshl_b32 s50, {s_s2}, 10")
    k(f"s_lshl_b32 s51, {s_db}, 8")
    k(f"s_add_u32 s50, s50, s51")
    k(f"s_lshl_b32 s51, s3, 18")
    k(f"s_add_u32 s50, s50, s51")
    k(f"s_lshl_b32 s52, s3, 12")
    if lb: k(f"s_add_u32 s52, s52, {lb}")
    for i in range(4):
        k(f"s_add_u32 m0, s52, {i*1024}")
        k(f"s_add_u32 s53, s50, {i*4*16384}")
        k(f"buffer_load_dwordx4 v{vXo}, s[{SX}:{SX+3}], s53 offen lds")
    k.c("gate weights: 64 contiguous bytes per thread")
    k(f"v_and_b32 v{vT}, 3, v0")
    k(f"v_lshlrev_b32 v{vT}, 6, v{vT}")
    k(f"s_lshl_b32 s51, {s_db}, 8")
    for e in range(4):
        k(f"buffer_load_dwordx4 v[{vGW+4*e}:{vGW+4*e+3}], v{vT}, s[{SG}:{SG+3}], s51 offen offset:{16*e}")
    stamp(k, 1, st)
    k.c("B constants")
    k("s_and_b32 s54, s3, 3")
    k("s_lshr_b32 s55, s3, 2")
    k(f"v_bfe_u32 v{vT}, v0, 1, 4")
    k("s_lshl_b32 s56, s54, 4")
    k(f"v_add_u32 v{vT}, s56, v{vT}")
    k(f"v_cvt_f32_u32 v{vT+1}, v{vT}")
    k(f"v_mul_f32 v{vT+2}, {fhex(1/128)}, v{vT+1}")
    k(f"v_cvt_f32_u32 v{vT+3}, {s_s2}")
    k(f"v_mul_f32 v{vT+3}, {fhex(1/2048)}, v{vT+3}")
    k(f"v_mul_f32 v{vT+3}, v{vT+3}, v{vT+1}")
    k(f"v_and_b32 v{vT+4}, 1, v0")
    k(f"v_cvt_f32_u32 v{vT+5}, v{vT+4}")
    k(f"v_fmac_f32 v{vT+3}, 0.25, v{vT+5}")
    k(f"v_lshl_or_b32 v{vT+6}, v{vT}, 1, v{vT+4}")
    k(f"v_cmp_eq_u32 vcc, 1, v{vT+6}")
    k(f"v_mov_b32 v{vT+7}, 0.5")
    k(f"v_cndmask_b32 v{vT+2}, v{vT+2}, v{vT+7}, vcc")
    k(f"v_mov_b32 v{vT+7}, 0")
    k(f"v_cndmask_b32 v{vT+3}, v{vT+3}, v{vT+7}, vcc")
    k(f"v_lshrrev_b32 v{vT+4}, 5, v0")
    k(f"v_lshlrev_b32 v{vT+4}, 3, v{vT+4}")
    k(f"v_cvt_f32_u32 v{vT+4}, v{vT+4}")
    k(f"v_fmac_f32 v{vT+3}, v{vT+4}, v{vT+2}")
    vD, vA0 = vT + 2, vT + 3
    for t in range(8):
        for j in range(8):
            kk = 16 * t + j
            if kk == 0: k(f"v_mov_b32 v{vAng+j}, v{vA0}")
            else: k(f"{FM} v{vAng+j}, v{vD}, {fhex(float(kk))}, v{vA0}")
        for j in range(8): k(f"v_cos_f32 v{vAng+j}, v{vAng+j}")
        for j in range(4): k(f"v_cvt_pk_bf16_f32 v{vCB+4*t+j}, v{vAng+2*j}, v{vAng+2*j+1}")
    k.c("A frag addresses")
    k(f"v_bfe_u32 v{vT}, v0, 2, 2")
    k(f"v_lshrrev_b32 v{vT+1}, 5, v0")
    k(f"v_lshl_add_u32 v{vT+1}, v{vT+1}, 3, v{vT}")
    k(f"v_lshlrev_b32 v{vT+1}, 8, v{vT+1}")
    k(f"v_bfe_u32 v{vT+4}, v0, 4, 1")
    k(f"v_bfe_u32 v{vT+5}, v0, 1, 1")
    k(f"v_lshl_add_u32 v{vT+4}, v{vT+4}, 1, v{vT+5}")
    k(f"v_and_b32 v{vT+5}, 1, v0")
    k(f"v_lshl_add_u32 v{vT+1}, v{vT+5}, 3, v{vT+1}")
    if lb: k(f"v_add_u32 v{vT+1}, {lb}, v{vT+1}")
    for e in range(2):
        k(f"s_lshl_b32 s58, s55, 1")
        k(f"s_add_u32 s58, s58, {e}")
        k(f"v_xor_b32 v{vT+6}, s58, v{vT}")
        k(f"v_lshl_add_u32 v{vT+6}, v{vT+6}, 2, v{vT+4}")
        k(f"v_lshl_add_u32 v{vAa+e}, v{vT+6}, 4, v{vT+1}")
    k("s_waitcnt vmcnt(4)")
    k("s_barrier")
    stamp(k, 2, st)
    def rd(t):
        for e in range(2):
            for h in range(2):
                r = vA + e*32 + t*4 + h*2
                k(f"ds_read_b64_tr_b16 v[{r}:{r+1}], v{vAa+e} offset:{t*4096 + h*1024}")
    def mf(t):
        for e in range(2):
            c = "0" if t == 0 else f"v[{ACC+16*e}:{ACC+16*e+15}]"
            k(f"v_mfma_f32_32x32x16_bf16 v[{ACC+16*e}:{ACC+16*e+15}], v[{vA+e*32+t*4}:{vA+e*32+t*4+3}], v[{vCB+4*t}:{vCB+4*t+3}], {c}")
    rd(0); rd(1); rd(2)
    for t in range(8):
        if t + 3 < 8:
            k("s_waitcnt lgkmcnt(8)"); mf(t); rd(t + 3)
        else:
            k(f"s_waitcnt lgkmcnt({4*(7-t)})"); mf(t)
    stamp(k, 3, st)
    if pre_epi: pre_epi()
    k.c("pack, transpose through LDS")
    k(f"v_and_b32 v{vT}, 31, v0")
    k(f"s_lshl_b32 s58, s54, 5")
    k(f"v_add_u32 v{vT}, s58, v{vT}")
    k(f"v_mul_u32_u24 v{vT}, 272, v{vT}")
    k(f"v_lshrrev_b32 v{vT+1}, 5, v0")
    k(f"v_lshl_add_u32 v{vT}, v{vT+1}, 4, v{vT}")
    k(f"s_lshl_b32 s58, s55, 7")
    k(f"s_add_u32 s58, s58, {32768+lb}")
    k(f"v_add_u32 v{vT}, s58, v{vT}")
    for e in range(2):
        for g in range(4):
            for h in range(2):
                k(f"v_cvt_pk_bf16_f32 v{vQ+e*8+g*2+h}, v{ACC+16*e+4*g+2*h}, v{ACC+16*e+4*g+2*h+1}")
        for pr in range(2):
            q = vQ + e*8 + pr*4
            k(f"v_permlane32_swap_b32 v{q}, v{q+2}")
            k(f"v_permlane32_swap_b32 v{q+1}, v{q+3}")
            k(f"ds_write_b128 v{vT}, v[{q}:{q+3}] offset:{e*64 + pr*32}")
    k("s_waitcnt lgkmcnt(0)")
    k("s_barrier")
    k(f"v_lshrrev_b32 v{vT}, 4, v0")
    k(f"s_lshl_b32 s58, s3, 4")
    k(f"v_add_u32 v{vT+1}, s58, v{vT}")
    k(f"v_mul_u32_u24 v{vT+1}, 272, v{vT+1}")
    k(f"v_and_b32 v{vT+2}, 15, v0")
    k(f"v_lshl_add_u32 v{vT+1}, v{vT+2}, 4, v{vT+1}")
    k(f"v_add_u32 v{vT+1}, {32768+lb}, v{vT+1}")
    for i in range(4):
        k(f"ds_read_b128 v[{vR+4*i}:{vR+4*i+3}], v{vT+1} offset:{i*4*272}")
    k(f"v_lshrrev_b32 v{vT+3}, 1, v{vT}")
    k(f"v_lshlrev_b32 v{vT+3}, 15, v{vT+3}")
    k(f"v_and_b32 v{vT+4}, 1, v{vT}")
    k(f"v_lshl_add_u32 v{vT+3}, v{vT+4}, 10, v{vT+3}")
    k(f"v_lshl_add_u32 v{vT+3}, v{vT+2}, 4, v{vT+3}")
    k(f"s_lshl_b32 s58, s3, 18")
    k(f"s_lshl_b32 s59, {s_s2}, 11")
    k(f"s_add_u32 s58, s58, s59")
    k(f"s_lshl_b32 s59, {s_db}, 8")
    k(f"s_add_u32 s58, s58, s59")
    k(f"s_add_u32 s58, s58, {R_OFF}")
    for i in range(4):
        k(f"s_waitcnt lgkmcnt({3-i})")
        k(f"s_add_u32 s59, s58, {i*2*32768}")
        k(f"buffer_store_dwordx4 v[{vR+4*i}:{vR+4*i+3}], v{vT+3}, s[{SRD_WS}:{SRD_WS+3}], s59 offen{fl}")
    stamp(k, 4, st)
    k.c("gate partials")
    k(f"v_lshrrev_b32 v{vT}, 2, v0")
    k(f"s_lshl_b32 s58, s3, 4")
    k(f"v_add_u32 v{vT}, s58, v{vT}")
    k(f"v_and_b32 v{vT+1}, 3, v0")
    k(f"v_and_b32 v{vT+2}, 3, v{vT}")
    k(f"v_xor_b32 v{vT+1}, v{vT+1}, v{vT+2}")
    k(f"v_lshlrev_b32 v{vT+1}, 6, v{vT+1}")
    k(f"v_lshl_add_u32 v{vT+1}, v{vT}, 8, v{vT+1}")
    if lb: k(f"v_add_u32 v{vT+1}, {lb}, v{vT+1}")
    for e in range(4):
        k(f"ds_read_b128 v[{vA+4*e}:{vA+4*e+3}], v{vT+1} offset:{16*e}")
    k(f"v_mov_b32 v{vT+2}, 0")
    k("s_waitcnt lgkmcnt(0)")
    for e in range(16):
        k(f"v_dot2_f32_bf16 v{vT+2}, v{vA+e}, v{vGW+e}, v{vT+2}")
    k(f"v_add_f32_dpp v{vT+2}, v{vT+2}, v{vT+2} quad_perm:[1,0,3,2] row_mask:0xf bank_mask:0xf")
    k(f"v_add_f32_dpp v{vT+2}, v{vT+2}, v{vT+2} quad_perm:[2,3,0,1] row_mask:0xf bank_mask:0xf")
    k(f"s_lshl_b32 s58, {s_db}, 4")
    k(f"s_add_u32 s58, s58, {s_s2}")
    k(f"s_lshl_b32 s58, s58, 9")
    k(f"s_add_u32 s58, s58, {GP_OFF}")
    k(f"v_lshlrev_b32 v{vT}, 2, v{vT}")
    k(f"v_and_b32 v{vT+1}, 3, v0")
    k(f"v_cmp_eq_u32 vcc, 0, v{vT+1}")
    k("s_and_saveexec_b64 s[60:61], vcc")
    k(f"buffer_store_dword v{vT+2}, v{vT}, s[{SRD_WS}:{SRD_WS+3}], s58 offen{fl}")
    k("s_mov_b64 exec, s[60:61]")
    if tail_wait:
        k("s_waitcnt vmcnt(0)")
        stamp(k, 5, st)


def interleave(a, b):
    out = []; na, nb = len(a), len(b); j = 0
    for i, x in enumerate(a):
        out.append(x)
        tgt = (i + 1) * nb // na
        while j < tgt:
            out.append(b[j]); j += 1
    out += b[j:]
    return out

def sincos_set(k, vang0, vdelta, vt, dst_c, dst_s, scale=None):
    pass

PK = False
EXP = None
P2_SLAB = 0; P2_E1 = 32768; P2_E2 = 65536; P2_PITCH = 1056

def p2_pre(k, s_task, R):
    SWR, SWI = SRD_A, SRD_B
    k.srd(SWR, S_PWR, S_PWR + 1, 2048 * 514)
    k.srd(SWI, S_PWI, S_PWI + 1, 2048 * 514)
    vT = R["T"]; W = R["W"]; WX = R["WX"]; WA = R["work"]
    vN, vQ = R["n"], R["q"]
    k(f"v_and_b32 v{vN}, 15, v0")
    k(f"v_lshrrev_b32 v{vQ}, 4, v0")
    k.c("W loads")
    k(f"v_lshlrev_b32 v{vT}, 1, v{vN}")
    k(f"v_lshl_add_u32 v{vT}, v{vQ}, 8, v{vT}")
    k(f"v_sub_u32 v{vT+1}, 1024, v{vT}")
    k(f"v_cmp_gt_u32 vcc, 32, v0")
    k(f"v_mov_b32 v{vT+2}, -32")
    k(f"v_mov_b32 v{vT+3}, 32")
    k(f"v_cndmask_b32 v{vT+2}, v{vT+2}, v{vT+3}, vcc")
    k(f"v_and_b32 v{vT+3}, 31, v0")
    k(f"v_cmp_eq_u32 s[62:63], 0, v{vT+3}")
    for row in range(2):
        k(f"s_lshl_b32 s50, s3, 1")
        k(f"s_add_u32 s50, s50, {row}")
        k(f"s_lshl_b32 s50, s50, 7")
        k(f"s_add_u32 s50, s50, {s_task}")
        k(f"s_sub_u32 s51, 2048, s50")
        k(f"s_and_b32 s51, s51, 2047")
        k(f"s_mul_i32 s50, s50, 514")
        k(f"s_mul_i32 s51, s51, 514")
        k(f"v_add_u32 v{vT+4}, s50, v{vT}")
        k(f"v_add_u32 v{vT+5}, s51, v{vT+1}")
        k(f"v_cndmask_b32 v{vT+4}, v{vT+5}, v{vT+4}, vcc")
        k(f"s_add_u32 s52, s50, 512")
        k(f"v_mov_b32 v{vT+5}, s52")
        k(f"v_mov_b32 v{vT+6}, s51")
        k(f"v_cndmask_b32 v{vT+5}, v{vT+5}, v{vT+6}, vcc")
        k(f"v_cndmask_b32 v{vT+5}, v{vT+4}, v{vT+5}, s[62:63]")
        for m in range(1, 8):
            k(f"v_mad_i32_i24 v{WA+8*row+m}, v{vT+2}, {m}, v{vT+4}")
        for t in range(2):
            for i in range(4):
                m = t + 2 * i
                a = vT + 4 if m == 0 else WA + 8*row + m
                k(f"buffer_load_ushort v{W+16*row+8*t+i}, v{a}, s[{SWR}:{SWR+3}], 0 offen")
                k(f"buffer_load_ushort v{W+16*row+8*t+4+i}, v{a}, s[{SWI}:{SWI+3}], 0 offen")
        k(f"buffer_load_ushort v{WX+2*row}, v{vT+5}, s[{SWR}:{SWR+3}], 0 offen")
        k(f"buffer_load_ushort v{WX+2*row+1}, v{vT+5}, s[{SWI}:{SWI+3}], 0 offen")

def p2_consts(k, s_task, R):
    vT = R["T"]; vN, vQ = R["n"], R["q"]; WA = R["work"]
    FS, F16, A1, B5 = R["FS"], R["F16"], R["A1"], R["B5"]
    TW1C, TW1S, TW2C, TW2S = R["TW1C"], R["TW1S"], R["TW2C"], R["TW2S"]
    nf, q4 = vT, vT + 1
    k(f"v_cvt_f32_u32 v{nf}, v{vN}")
    k(f"v_lshlrev_b32 v{q4}, 2, v{vQ}")
    k(f"v_cvt_f32_u32 v{q4}, v{q4}")
    k(f"s_cmp_eq_u32 {s_task}, 64")
    k(f"s_cselect_b32 s54, 0x3f800000, 0")
    an = WA; cs = WA + 4; sn = WA + 8
    def cset(vdelta, va0, C01, C23, S01, S23):
        for j in range(4):
            if j == 0: k(f"v_mov_b32 v{an}, v{va0}")
            else: k(f"v_fma_f32 v{an+j}, v{vdelta}, {float(j)}, v{va0}" if j != 3 else f"v_fmamk_f32 v{an+j}, v{vdelta}, {fhex(3.0)}, v{va0}")
        for j in range(4): k(f"v_cos_f32 v{cs+j}, v{an+j}")
        for j in range(4): k(f"v_sin_f32 v{sn+j}, v{an+j}")
        k(f"v_cvt_pk_bf16_f32 v{C01}, v{cs}, v{cs+1}")
        k(f"v_cvt_pk_bf16_f32 v{C23}, v{cs+2}, v{cs+3}")
        k(f"v_cvt_pk_bf16_f32 v{S01}, v{sn}, v{sn+1}")
        k(f"v_cvt_pk_bf16_f32 v{S23}, v{sn+2}, v{sn+3}")
    d, a0 = vT + 2, vT + 3
    k.c("F32 sets")
    k(f"v_mul_f32 v{d}, {fhex(1/32)}, v{nf}")
    k(f"v_mul_f32 v{a0}, v{d}, v{q4}")
    cset(d, a0, FS + 2, FS + 3, FS + 4, FS + 5)
    k(f"v_xor_b32 v{FS}, 0x80008000, v{FS+4}")
    k(f"v_xor_b32 v{FS+1}, 0x80008000, v{FS+5}")
    k(f"v_and_b32 v{vT+4}, 1, v{vN}")
    k(f"v_mul_u32_u24 v{vT+4}, 0x8000, v{vT+4}")
    k(f"v_lshl_or_b32 v{vT+4}, v{vT+4}, 16, v{vT+4}")
    k(f"v_xor_b32 v{vT+5}, 0x80000000, v{vT+4}")
    for r in range(6):
        k(f"v_xor_b32 v{FS+6+r}, v{vT+4}, v{FS+r}")
        k(f"v_xor_b32 v{FS+12+r}, 0x80000000, v{FS+r}")
        k(f"v_xor_b32 v{FS+18+r}, v{vT+5}, v{FS+r}")
    k.c("F16 set")
    k(f"v_mul_f32 v{d}, {fhex(1/16)}, v{nf}")
    k(f"v_mul_f32 v{a0}, v{d}, v{q4}")
    cset(d, a0, F16 + 2, F16 + 3, F16 + 4, F16 + 5)
    k(f"v_xor_b32 v{F16}, 0x80008000, v{F16+4}")
    k(f"v_xor_b32 v{F16+1}, 0x80008000, v{F16+5}")
    k.c("A1: angle (4q+j)(2n+e)/32")
    k(f"v_fma_f32 v{d}, v{nf}, 2.0, s54")
    k(f"v_mul_f32 v{d}, {fhex(1/32)}, v{d}")
    k(f"v_mul_f32 v{a0}, v{d}, v{q4}")
    t0 = WA + 12
    cset(d, a0, t0, t0 + 1, t0 + 2, t0 + 3)
    k(f"v_xor_b32 v{t0+4}, 0x80008000, v{t0+2}")
    k(f"v_xor_b32 v{t0+5}, 0x80008000, v{t0+3}")
    L0, L64, Lj = k.newlabel("a1_0"), k.newlabel("a1_64"), k.newlabel("a1_j")
    C01, C23, S01, S23, N01, N23 = [f"v{t0+i}" for i in range(6)]
    def setA(vals):
        for r, x in enumerate(vals): k(f"v_mov_b32 v{A1+r}, {x}")
    k(f"s_cmp_eq_u32 {s_task}, 0"); k(f"s_cbranch_scc1 {L0}")
    k(f"s_cmp_eq_u32 {s_task}, 64"); k(f"s_cbranch_scc1 {L64}")
    setA([C01, C23, S01, S23, N01, N23, C01, C23]); k(f"s_branch {Lj}")
    k.label(L0); setA([C01, C23, 0, 0, N01, N23, 0, 0]); k(f"s_branch {Lj}")
    k.label(L64); setA([0, 0, C01, C23, 0, 0, N01, N23])
    k.label(Lj)
    k.c("B5: angle n(2u2+e)/32")
    k(f"v_mul_f32 v{d}, {fhex(1/16)}, v{nf}")
    k(f"v_mul_f32 v{a0}, s54, v{nf}")
    k(f"v_mul_f32 v{a0}, {fhex(1/32)}, v{a0}")
    k(f"v_fmac_f32 v{a0}, v{d}, v{q4}")
    cset(d, a0, B5, B5 + 2, B5 + 1, B5 + 3)
    k(f"v_mov_b32 v{B5+4}, v{B5+1}")
    k(f"v_xor_b32 v{B5+5}, 0x80008000, v{B5}")
    k(f"v_mov_b32 v{B5+6}, v{B5+3}")
    k(f"v_xor_b32 v{B5+7}, 0x80008000, v{B5+2}")
    k.c("twiddles")
    k(f"s_and_b32 s55, {s_task}, 63")
    k(f"s_cmp_eq_u32 s55, 0")
    k(f"s_mov_b32 s56, {fhex(2.0**-19)}")
    k(f"s_cselect_b32 s55, {fhex(2.0**-20)}, s56")
    for t in range(2):
        k(f"v_add_f32 v{d}, {fhex(16.0*t)}, v{nf}" if t else f"v_mov_b32 v{d}, v{nf}")
        k(f"v_mul_f32 v{d}, {fhex(1/512)}, v{d}")
        k(f"v_mul_f32 v{a0}, v{d}, v{q4}")
        for j in range(4):
            if j == 0: k(f"v_mov_b32 v{an}, v{a0}")
            elif j == 3: k(f"v_fmamk_f32 v{an+j}, v{d}, {fhex(3.0)}, v{a0}")
            else: k(f"v_fma_f32 v{an+j}, v{d}, {float(j)}, v{a0}")
        for j in range(4): k(f"v_cos_f32 v{TW1C+4*t+j}, v{an+j}")
        for j in range(4): k(f"v_sin_f32 v{TW1S+4*t+j}, v{an+j}")
        k(f"v_mul_f32 v{d}, {fhex(1/512)}, v{nf}")
        k(f"v_add_f32 v{a0}, {fhex(16.0*t)}, v{q4}" if t else f"v_mov_b32 v{a0}, v{q4}")
        k(f"v_mul_f32 v{a0}, v{a0}, v{d}")
        for j in range(4):
            if j == 0: k(f"v_mov_b32 v{an}, v{a0}")
            elif j == 3: k(f"v_fmamk_f32 v{an+j}, v{d}, {fhex(3.0)}, v{a0}")
            else: k(f"v_fma_f32 v{an+j}, v{d}, {float(j)}, v{a0}")
        for j in range(4): k(f"v_cos_f32 v{cs+j}, v{an+j}")
        for j in range(4): k(f"v_sin_f32 v{sn+j}, v{an+j}")
        for j in range(4): k(f"v_mul_f32 v{TW2C+4*t+j}, s55, v{cs+j}")
        for j in range(4): k(f"v_mul_f32 v{TW2S+4*t+j}, s55, v{sn+j}")

def p2_wfix(k, R):
    vT = R["T"]; W = R["W"]; WX = R["WX"]
    k(f"v_cmp_gt_u32 vcc, 32, v0")
    k(f"v_mov_b32 v{vT}, 0x80000000")
    k(f"v_mov_b32 v{vT+1}, 0")
    k(f"v_cndmask_b32 v{vT}, v{vT}, v{vT+1}, vcc")
    k(f"v_and_b32 v{vT+1}, 31, v0")
    k(f"v_cmp_eq_u32 vcc, 0, v{vT+1}")
    k(f"v_xor_b32 v{vT+1}, 0x80000000, v{vT}")
    k(f"v_cndmask_b32 v{vT+1}, v{vT}, v{vT+1}, vcc")
    for row in range(2):
        for t in range(2):
            for i in range(4):
                r = W + 16*row + 8*t + i
                k(f"v_lshlrev_b32 v{r}, 16, v{r}")
                k(f"v_lshl_add_u32 v{r+4}, v{r+4}, 16, v{vT}")
        k(f"v_lshlrev_b32 v{WX+2*row}, 16, v{WX+2*row}")
        k(f"v_lshl_add_u32 v{WX+2*row+1}, v{WX+2*row+1}, 16, v{vT+1}")
        r = W + 16*row
        k(f"v_add_f32 v{r}, v{r}, v{WX+2*row}")
        k(f"v_add_f32 v{r+4}, v{r+4}, v{WX+2*row+1}")
        k(f"v_mul_f32 v{r}, 0.5, v{r}")
        k(f"v_mul_f32 v{r+4}, 0.5, v{r+4}")

def p2_regs():
    R = dict(T=2, n=16, q=17, FS=20, F16=44, A1=50, B5=58, TW1C=66, TW1S=74, TW2C=82, TW2S=90, W=98, WX=130,
             dma=134, tr=136, e1w=140, e1r=141, e2w=142, e2r=143, t3=145, work=148)
    return R

def p2_addr(k, s_task, R):
    vT = R["T"]; vN, vQ = R["n"], R["q"]
    k.c("LDS addresses")
    k(f"v_bfe_u32 v{vT}, v0, 2, 2")
    k(f"v_lshl_add_u32 v{vT}, v{vQ}, 2, v{vT}")
    k(f"v_and_b32 v{vT+1}, 7, v{vT}")
    k(f"v_lshlrev_b32 v{vT+1}, 1, v{vT+1}")
    k(f"v_bfe_u32 v{vT+2}, v0, 1, 1")
    k(f"s_lshl_b32 s50, s3, 3")
    k(f"v_or_b32 v{vT+2}, s50, v{vT+2}")
    k(f"v_xor_b32 v{vT+2}, v{vT+2}, v{vT+1}")
    k(f"v_lshlrev_b32 v{vT+2}, 4, v{vT+2}")
    k(f"v_lshl_add_u32 v{vT+2}, v{vT}, 11, v{vT+2}")
    k(f"v_and_b32 v{vT+3}, 1, v0")
    k(f"v_lshl_add_u32 v{R['tr']}, v{vT+3}, 3, v{vT+2}")
    if P2_SLAB: k(f"v_add_u32 v{R['tr']}, {P2_SLAB}, v{R['tr']}")
    for dd in range(1, 4):
        k(f"v_xor_b32 v{R['tr']+dd}, {dd*32}, v{R['tr']}")
    k(f"v_lshlrev_b32 v{vT}, 13, v{vQ}")
    k(f"v_lshl_add_u32 v{vT}, v{vN}, 4, v{vT}")
    k(f"s_lshl_b32 s50, s3, 8")
    k(f"s_add_u32 s50, s50, {P2_E1}")
    k(f"v_add_u32 v{R['e1w']}, s50, v{vT}")
    k(f"s_lshl_b32 s50, s3, 12")
    k(f"s_add_u32 s50, s50, {P2_E1}")
    k(f"v_lshl_add_u32 v{R['e1r']}, v0, 4, s50")
    k(f"v_mul_u32_u24 v{vT}, {4*P2_PITCH}, v{vQ}")
    k(f"v_lshl_add_u32 v{vT}, v{vN}, 3, v{vT}")
    k(f"s_lshl_b32 s50, s3, 7")
    k(f"s_add_u32 s50, s50, {P2_E2}")
    k(f"v_add_u32 v{R['e2w']}, s50, v{vT}")
    k(f"v_lshrrev_b32 v{vT}, 3, v{vN}")
    k(f"s_lshl_b32 s50, s3, 2")
    k(f"v_add_u32 v{vT}, s50, v{vT}")
    k(f"v_mul_u32_u24 v{vT}, {P2_PITCH}, v{vT}")
    k(f"v_lshl_add_u32 v{vT}, v{vQ}, 8, v{vT}")
    k(f"v_bfe_u32 v{vT+1}, v0, 2, 1")
    k(f"v_lshl_add_u32 v{vT}, v{vT+1}, 6, v{vT}")
    k(f"v_and_b32 v{vT+1}, 3, v0")
    k(f"v_lshl_add_u32 v{vT}, v{vT+1}, 3, v{vT}")
    k(f"v_add_u32 v{R['e2r']}, {P2_E2}, v{vT}")
    k(f"v_add_u32 v{R['e2r']+1}, {P2_E2 + 2*P2_PITCH}, v{vT}")
    k(f"v_lshlrev_b32 v{vT}, 17, v{vN}")
    k(f"v_lshl_add_u32 v{vT}, v{vQ}, 4, v{vT}")
    k(f"s_lshl_b32 s50, s3, 7")
    k(f"v_add_u32 v{R['t3']}, s50, v{vT}")

def p2_slab_dma(k, s_task, R, sc1=False):
    vT = R["T"]
    fl = " sc1" if sc1 else ""
    k.c("R slab DMA")
    k(f"s_and_b32 s50, {s_task}, 63")
    k(f"s_lshl_b32 s50, s50, 15")
    k(f"s_add_u32 s50, s50, {R_OFF}")
    k(f"s_lshl_b32 s51, s3, 12")
    k(f"s_add_u32 s50, s50, s51")
    k(f"s_add_u32 s51, s51, {P2_SLAB}")
    for h in range(2):
        k(f"s_lshl_b32 s52, s3, 1")
        k(f"s_add_u32 s52, s52, {h}")
        k(f"s_and_b32 s52, s52, 7")
        k(f"s_lshl_b32 s52, s52, 1")
        k(f"v_xor_b32 v{R['dma']+h}, s52, v0")
        k(f"v_lshlrev_b32 v{R['dma']+h}, 4, v{R['dma']+h}")
    for r in range(4):
        k(f"s_add_u32 m0, s51, {r*1024}")
        k(f"s_add_u32 s53, s50, {r*1024}")
        k(f"buffer_load_dwordx4 v{R['dma']+(r>>1)}, s[{SRD_WS}:{SRD_WS+3}], s53 offen lds{fl}")

def p2_main(k, s_task, R, st=False, sc1=False, stbase=3):
    fl = " sc1" if sc1 else ""
    FS, F16, A1, B5 = R["FS"], R["F16"], R["A1"], R["B5"]
    TW1C, TW1S, TW2C, TW2S = R["TW1C"], R["TW1S"], R["TW2C"], R["TW2S"]
    W = R["W"]; WA = R["work"]
    BF = WA; D = WA + 16; P = WA + 48; X = WA + 64
    def fs(t, g, cp): return FS + 6*(2*t+g) + (2 if cp == 0 else 0)
    def f16(cp): return F16 + (2 if cp == 0 else 0)
    def mf(d, a, b, c=None):
        cc = "0" if c is None else f"v[{c}:{c+3}]"
        return f"v_mfma_f32_16x16x32_bf16 v[{d}:{d+3}], v[{a}:{a+3}], v[{b}:{b+3}], {cc}"
    k.c("stage (i)")
    for dd in range(4):
        for c in range(2):
            r = BF + 4*dd + 2*c
            k(f"ds_read_b64_tr_b16 v[{r}:{r+1}], v{R['tr']+dd} offset:{c*1024}")
    for dd in range(4):
        k(f"s_waitcnt lgkmcnt({6-2*dd})")
        for cp in range(2):
            k(mf(D + 8*dd + 4*cp, A1 + 4*cp, BF + 4*dd))
    for i in range(4):
        for cp in range(2):
            for h in range(2):
                k(f"v_cvt_pk_bf16_f32 v{P+4*i+2*cp+h}, v{D+8*(2*h)+4*cp+i}, v{D+8*(2*h+1)+4*cp+i}")
        k(f"ds_write_b128 v{R['e1w']}, v[{P+4*i}:{P+4*i+3}] offset:{i*2048}")
    k("s_waitcnt lgkmcnt(0)")
    k("s_barrier")
    stamp(k, stbase, st == 1)
    stamp(k, 7, st == 2)
    k.c("step A")
    AF = WA
    for row in range(2):
        for g in range(2):
            r = AF + 8*row + 4*g
            k(f"ds_read_b128 v[{r}:{r+3}], v{R['e1r']} offset:{row*2048 + g*1024}")
    def d1(row, t, cp): return D + 16*row + 8*t + 4*cp
    def frag(row, t): return P + 8*row + 4*t
    def stepA(row):
        o = []
        for g in range(2):
            for t in range(2):
                for cp in range(2):
                    o.append(mf(d1(row, t, cp), AF + 8*row + 4*g, fs(t, g, cp), None if g == 0 else d1(row, t, cp)))
        return o
    def cmul(row, C, S, kind):
        o = []
        for t in range(2):
            re, im = d1(row, t, 0), d1(row, t, 1)
            x = X + 8*t
            c_, s_ = C(t), S(t)
            def pr(a, h): return f"v[{a+2*h}:{a+2*h+1}]"
            if not PK:
                if kind == "tw":
                    for i in range(4): o.append(f"v_mul_f32 v{x+i}, v{re+i}, v{c_+i}")
                    for i in range(4): o.append(f"v_mul_f32 v{x+4+i}, v{im+i}, v{c_+i}")
                    for i in range(4): o.append(f"v_fmac_f32 v{x+i}, v{im+i}, v{s_+i}")
                    for i in range(4): o.append(f"v_fma_f32 v{x+4+i}, -v{re+i}, v{s_+i}, v{x+4+i}")
                else:
                    for i in range(4): o.append(f"v_mul_f32 v{x+i}, v{re+i}, v{c_+i}")
                    for i in range(4): o.append(f"v_mul_f32_e64 v{x+4+i}, -v{re+i}, v{s_+i}")
                    for i in range(4): o.append(f"v_fma_f32 v{x+i}, -v{im+i}, v{s_+i}, v{x+i}")
                    for i in range(4): o.append(f"v_fma_f32 v{x+4+i}, -v{im+i}, v{c_+i}, v{x+4+i}")
            elif kind == "tw":
                for h in range(2): o.append(f"v_pk_mul_f32 {pr(x,h)}, {pr(re,h)}, {pr(c_,h)}")
                for h in range(2): o.append(f"v_pk_mul_f32 {pr(x+4,h)}, {pr(im,h)}, {pr(c_,h)}")
                for h in range(2): o.append(f"v_pk_fma_f32 {pr(x,h)}, {pr(im,h)}, {pr(s_,h)}, {pr(x,h)}")
                for h in range(2): o.append(f"v_pk_fma_f32 {pr(x+4,h)}, {pr(re,h)}, {pr(s_,h)}, {pr(x+4,h)} neg_lo:[1,0,0] neg_hi:[1,0,0]")
            else:
                for h in range(2): o.append(f"v_pk_mul_f32 {pr(x,h)}, {pr(re,h)}, {pr(c_,h)}")
                for h in range(2): o.append(f"v_pk_mul_f32 {pr(x+4,h)}, {pr(re,h)}, {pr(s_,h)} neg_lo:[1,0] neg_hi:[1,0]")
                for h in range(2): o.append(f"v_pk_fma_f32 {pr(x,h)}, {pr(im,h)}, {pr(s_,h)}, {pr(x,h)} neg_lo:[1,0,0] neg_hi:[1,0,0]")
                for h in range(2): o.append(f"v_pk_fma_f32 {pr(x+4,h)}, {pr(im,h)}, {pr(c_,h)}, {pr(x+4,h)} neg_lo:[1,0,0] neg_hi:[1,0,0]")
            f = frag(row, t)
            for h in range(2): o.append(f"v_cvt_pk_bf16_f32 v{f+h}, v{x+2*h}, v{x+2*h+1}")
            for h in range(2): o.append(f"v_cvt_pk_bf16_f32 v{f+2+h}, v{x+4+2*h}, v{x+4+2*h+1}")
        return o
    tw1 = lambda row: cmul(row, lambda t: TW1C + 4*t, lambda t: TW1S + 4*t, "tw")
    wm = lambda row: cmul(row, lambda t: W + 16*row + 8*t, lambda t: W + 16*row + 8*t + 4, "w")
    tw2 = lambda row: cmul(row, lambda t: TW2C + 4*t, lambda t: TW2S + 4*t, "tw")
    def stepB(row):
        return [mf(d1(row, t, cp), f16(cp), frag(row, t)) for t in range(2) for cp in range(2)]
    def stepBp(row):
        return [mf(d1(row, t, cp), frag(row, t), f16(cp)) for t in range(2) for cp in range(2)]
    def stepAp(row):
        o = []
        for t in range(2):
            for tp in range(2):
                for cp in range(2):
                    o.append(mf(d1(row, tp, cp), fs(tp, t, cp), frag(row, t), None if t == 0 else d1(row, tp, cp)))
        return o
    def emit(l):
        for x in l:
            if EXP == "nomfma" and "mfma" in x: continue
            if EXP == "novalu" and "mfma" not in x: continue
            k(x)
    k("s_waitcnt lgkmcnt(2)")
    emit(stepA(0))
    k("s_waitcnt lgkmcnt(0)")
    emit(interleave(stepA(1), tw1(0)))
    emit(interleave(stepB(0), tw1(1)))
    emit(interleave(stepB(1), wm(0)))
    emit(interleave(stepBp(0), wm(1)))
    emit(interleave(stepBp(1), tw2(0)))
    emit(interleave(stepAp(0), tw2(1)))
    emit(stepAp(1))
    stamp(k, stbase + 1, st)
    k.c("E2 write")
    for tp in range(2):
        for i in range(4):
            p = P + 2*(4*tp + i)
            k(f"v_cvt_pk_bf16_f32 v{p}, v{d1(0,tp,0)+i}, v{d1(1,tp,0)+i}")
            k(f"v_cvt_pk_bf16_f32 v{p+1}, v{d1(0,tp,1)+i}, v{d1(1,tp,1)+i}")
            k(f"ds_write_b64 v{R['e2w']}, v[{p}:{p+1}] offset:{(16*tp+i)*P2_PITCH}")
    k("s_waitcnt lgkmcnt(0)")
    stamp(k, 1, st == 2)
    k("s_barrier")
    stamp(k, 2, st == 2)
    k.c("stage (v)")
    for r in range(4):
        o = 4*(r & 1)
        k(f"ds_read2_b64 v[{AF+4*r}:{AF+4*r+3}], v{R['e2r']+(r>>1)} offset0:{o} offset1:{o+16}")
    for r in range(4):
        k(f"s_waitcnt lgkmcnt({3-r})")
        for cp in range(2):
            k(mf(D + 8*r + 4*cp, AF + 4*r, B5 + 4*cp))
    stamp(k, 3, st == 2)
    k(f"s_and_b32 s50, {s_task}, 63")
    k(f"s_lshl_b32 s50, s50, 11")
    k(f"s_lshr_b32 s51, {s_task}, 6")
    k(f"s_lshl_b32 s51, s51, 10")
    k(f"s_add_u32 s50, s50, s51")
    k(f"s_add_u32 s50, s50, {T3_OFF}")
    Lsk = k.newlabel("p2sk")
    for cp in range(2):
        if cp == 1:
            k(f"s_and_b32 s51, {s_task}, 63")
            k(f"s_cmp_eq_u32 s51, 0")
            k(f"s_cbranch_scc1 {Lsk}")
        for hb in range(2):
            p = P + 8*cp + 4*hb
            for rr in range(2):
                r = 2*hb + rr
                for h in range(2):
                    k(f"v_cvt_pk_bf16_f32 v{p+2*rr+h}, v{D+8*r+4*cp+2*h}, v{D+8*r+4*cp+2*h+1}")
            k(f"buffer_store_dwordx4 v[{p}:{p+3}], v{R['t3']}, s[{SRD_WS}:{SRD_WS+3}], s50 offen offset:{cp*1024+hb*64}{fl}")
    k.label(Lsk)
    stamp(k, stbase + 2, st)

def p2(k, s_task, st=False, sc1=False):
    R = p2_regs()
    k(f"v_and_b32 v{R['n']}, 15, v0")
    p2_slab_dma(k, s_task, R, sc1)
    p2_pre(k, s_task, R)
    stamp(k, 1, st == 1)
    p2_consts(k, s_task, R)
    p2_addr(k, s_task, R)
    k("s_waitcnt vmcnt(0)")
    p2_wfix(k, R)
    k("s_barrier")
    stamp(k, 2, st == 1)
    p2_main(k, s_task, R, st, sc1)
    k("s_waitcnt vmcnt(0)")
    stamp(k, 6, st)


class VM:
    def __init__(self, k): self.k = k; self.q = []; self.seen = set()
    def issue(self, text, tag):
        self.k(text); self.q.append(tag); self.seen.add(tag)
    def wait(self, tag):
        assert tag in self.seen, tag
        if tag not in self.q: return
        idx = max(i for i, t in enumerate(self.q) if t == tag)
        n = len(self.q) - 1 - idx
        self.k(f"s_waitcnt vmcnt({min(n, 63)})")
        self.q = self.q[idx + 1:]
    def wait_all(self):
        self.k("s_waitcnt vmcnt(0)"); self.q = []

LOG2E = 1.4426950408889634

def final_regs():
    return dict(T=2, g=16, og=17, dma=18, h=19, tr=20, xw=26, xr=27, out=28, b2=30, gp=34, TB=40, AF=48, ACC=72, HB=104, XR=192)

def final_setup(k, s_cls, s_hf, s_db, R):
    vT = R["T"]
    SW2 = SRD_C
    k.srd(SW2, S_PW2, S_PW2 + 1, 1376 * 1024)
    k("s_and_b32 s64, s3, 1")
    k("s_lshr_b32 s65, s3, 1")
    k(f"v_lshrrev_b32 v{vT}, 3, v0")
    k(f"v_bfe_u32 v{vT+1}, v0, 4, 1")
    k(f"v_lshlrev_b32 v{vT+1}, 2, v{vT+1}")
    k(f"v_and_b32 v{vT+2}, 7, v0")
    k(f"v_xor_b32 v{vT+1}, v{vT+1}, v{vT+2}")
    k(f"v_lshlrev_b32 v{vT+1}, 4, v{vT+1}")
    k(f"v_lshl_add_u32 v{R['dma']}, v{vT}, 10, v{vT+1}")
    k("s_mul_i32 s66, s65, 352")
    k("s_lshl_b32 s67, s64, 4")
    k("s_add_u32 s66, s66, s67")
    k("s_lshl_b32 s66, s66, 10")
    k(f"s_lshl_b32 s67, {s_db}, 7")
    k("s_add_u32 s66, s66, s67")
    k("s_lshl_b32 s68, s65, 12")
    k("s_lshl_b32 s67, s64, 11")
    k("s_add_u32 s68, s68, s67")

def final_w2_dma(k, vm, R, j, slot):
    for ii in range(2):
        k(f"s_add_u32 m0, s68, {slot*16384 + ii*1024}")
        k(f"s_add_u32 s67, s66, {j*32768 + ii*8192}")
        vm.issue(f"buffer_load_dwordx4 v{R['dma']}, s[{SRD_C}:{SRD_C+3}], s67 offen lds", f"w2_{j}")

def final_addr(k, s_cls, s_hf, s_db, R):
    vT = R["T"]
    k.c("tr-read addresses")
    k(f"v_bfe_u32 v{vT}, v0, 2, 2")
    k(f"v_lshrrev_b32 v{vT+1}, 5, v0")
    k(f"v_lshl_add_u32 v{vT+1}, v{vT+1}, 2, v{vT}")
    k(f"v_lshlrev_b32 v{vT+1}, 7, v{vT+1}")
    k(f"v_bfe_u32 v{vT+2}, v0, 4, 1")
    k(f"v_and_b32 v{vT+3}, 1, v0")
    k(f"v_lshl_add_u32 v{vT+2}, v{vT+2}, 1, v{vT+3}")
    k(f"v_bfe_u32 v{vT+3}, v0, 3, 1")
    k(f"v_lshl_add_u32 v{vT+2}, v{vT+3}, 2, v{vT+2}")
    k(f"v_lshl_add_u32 v{vT+1}, v{vT+2}, 4, v{vT+1}")
    k(f"v_bfe_u32 v{vT+3}, v0, 1, 1")
    k(f"v_lshl_add_u32 v{vT+1}, v{vT+3}, 3, v{vT+1}")
    k("s_lshl_b32 s67, s65, 12")
    k(f"v_add_u32 v{R['tr']}, s67, v{vT+1}")
    k(f"v_xor_b32 v{R['tr']+1}, 64, v{R['tr']}")
    for grp in range(1, 3):
        for e in range(2):
            k(f"v_add_u32 v{R['tr']+2*grp+e}, {grp*65536}, v{R['tr']+e}")
    k(f"v_lshlrev_b32 v{R['h']}, 4, v0")
    k("s_mul_i32 s67, s64, 24576")
    k("s_add_u32 s67, s67, 32768")
    k(f"v_add_u32 v{R['xw']}, s67, v{R['h']}")
    k("s_mul_i32 s69, s65, 6144")
    k(f"v_add_u32 v{R['xr']}, s69, v{R['xw']}")
    k(f"s_lshl_b32 s69, {s_hf}, 6")
    k("s_lshl_b32 s67, s64, 5")
    k("s_add_u32 s69, s69, s67")
    k(f"v_and_b32 v{vT}, 31, v0")
    k(f"v_add_u32 v{vT}, s69, v{vT}")
    k(f"v_lshlrev_b32 v{R['gp']}, 2, v{vT}")
    k(f"v_lshlrev_b32 v{vT+1}, 4, v{vT}")
    k(f"v_add_u32 v{vT+1}, {s_cls}, v{vT+1}")
    k(f"v_cvt_f32_u32 v{R['out']+1}, v{vT+1}")
    k(f"v_lshlrev_b32 v{vT+1}, 10, v{vT+1}")
    k(f"v_lshrrev_b32 v{vT+2}, 5, v0")
    k(f"v_lshlrev_b32 v{vT+2}, 4, v{vT+2}")
    k(f"s_lshl_b32 s67, {s_db}, 7")
    k("s_lshl_b32 s69, s65, 5")
    k("s_add_u32 s67, s67, s69")
    k(f"v_add_u32 v{vT+2}, s67, v{vT+2}")
    k(f"v_add_u32 v{R['out']}, v{vT+1}, v{vT+2}")
    k(f"v_mov_b32 v{R['b2']}, v{vT+2}")

def final_small_loads(k, vm, s_cls, R, sc1=False):
    fl = " sc1" if sc1 else ""
    k.srd(SRD_B, S_PB2, S_PB2 + 1, 1024)
    vm.issue(f"buffer_load_dwordx4 v[{R['b2']}:{R['b2']+3}], v{R['b2']}, s[{SRD_B}:{SRD_B+3}], 0 offen", "b2")

def final_gp_loads(k, vm, s_cls, R, sc1=False):
    fl = " sc1" if sc1 else ""
    k(f"s_lshl_b32 s67, {s_cls}, 9")
    k(f"s_add_u32 s67, s67, {GP_OFF}")
    k(f"v_mov_b32 v{R['T']}, v{R['gp']}")
    for d in range(4):
        if d: k("s_add_u32 s67, s67, 8192")
        vm.issue(f"buffer_load_dword v{R['gp']+d}, v{R['T']}, s[{SRD_WS}:{SRD_WS+3}], s67 offen{fl}", "gp")

def final_gate(k, R):
    vT = R["T"]; G = R["gp"]; TB = R["TB"]; sf = R["out"] + 1
    k(f"v_add_f32 v{G}, v{G}, v{G+1}")
    k(f"v_add_f32 v{G+2}, v{G+2}, v{G+3}")
    k(f"v_add_f32 v{G}, v{G}, v{G+2}")
    k(f"v_mul_f32 v{G}, {fhex(-LOG2E)}, v{G}")
    k(f"v_exp_f32 v{G}, v{G}")
    k(f"v_add_f32 v{G}, 1.0, v{G}")
    k(f"v_rcp_f32 v{R['g']}, v{G}")
    k(f"v_sub_f32 v{R['og']}, 1.0, v{R['g']}")
    k(f"v_mul_f32 v{vT}, {fhex(1/2048)}, v{sf}")
    k(f"v_lshrrev_b32 v{vT+1}, 5, v0")
    k(f"v_lshlrev_b32 v{vT+1}, 1, v{vT+1}")
    k("s_lshl_b32 s67, s65, 4")
    k(f"v_add_u32 v{vT+1}, s67, v{vT+1}")
    k(f"v_cvt_f32_u32 v{vT+1}, v{vT+1}")
    k(f"v_mul_f32 v{vT+1}, v{vT+1}, v{vT}")
    k(f"v_sub_f32 v{vT+2}, 0, v{R['g']}")
    an = vT + 4
    C = R["XR"]; S = R["XR"] + 8
    idx = 0
    for st in range(2):
        for h in range(2):
            for p in range(2):
                off = 8*st + 4*h + p
                if off == 0: k(f"v_mov_b32 v{an+idx}, v{vT+1}")
                else: k(f"v_fmamk_f32 v{an+idx}, v{vT}, {fhex(float(off))}, v{vT+1}")
                idx += 1
    for i in range(8): k(f"v_cos_f32 v{C+i}, v{an+i}")
    for i in range(8): k(f"v_sin_f32 v{S+i}, v{an+i}")
    for i in range(8): k(f"v_mul_f32 v{C+i}, v{R['g']}, v{C+i}")
    for i in range(8): k(f"v_mul_f32 v{S+i}, v{vT+2}, v{S+i}")
    L = k.newlabel("nosp")
    k("s_cmp_lg_u32 s65, 0")
    k(f"s_cbranch_scc1 {L}")
    k(f"v_lshlrev_b32 v{vT+3}, 31, v0")
    k(f"v_xor_b32 v{vT+3}, v{vT+3}, v{R['g']}")
    k("v_cmp_gt_u32 vcc, 32, v0")
    k(f"v_cndmask_b32 v{S}, v{S}, v{vT+3}, vcc")
    k.label(L)
    for i in range(8):
        k(f"v_cvt_pk_bf16_f32 v{TB+i}, v{C+i}, v{S+i}")

def final_main(k, s_cls, s_hf, s_db, R, vm, st=False, hook_t3=None, sc1=False, stb=2, after_h=None, t3merge=False, hthr=0):
    fl = " sc1" if sc1 else ""
    AF, ACC, HB = R["AF"], R["ACC"], R["HB"]
    k.c("h fragment loads")
    k(f"s_mul_i32 s70, {s_cls}, {H_CLS}")
    k(f"s_lshl_b32 s71, {s_hf}, 1")
    k("s_add_u32 s71, s71, s64")
    k(f"s_mul_i32 s71, s71, {43*2048}")
    k("s_add_u32 s70, s70, s71")
    k(f"s_mul_i32 s71, s65, {11*2048}")
    k("s_add_u32 s70, s70, s71")
    if H_OFF: k(f"s_add_u32 s70, s70, {H_OFF}")
    def hissue(j):
        if j == 10:
            k("s_cmp_eq_u32 s65, 3")
            k(f"s_mov_b32 s71, {10*2048}")
            k(f"s_cselect_b32 s71, {9*2048}, s71")
            k("s_add_u32 s71, s70, s71")
        else:
            k(f"s_add_u32 s71, s70, {j*2048}")
        for stp in range(2):
            vm.issue(f"buffer_load_dwordx4 v[{HB+8*j+4*stp}:{HB+8*j+4*stp+3}], v{R['h']}, s[{SRD_WS}:{SRD_WS+3}], s71 offen offset:{stp*1024}{fl}", f"h_{j}")
    for j in range(min(hthr or 11, 11)): hissue(j)
    stamp(k, stb, st)
    if after_h: after_h()
    steps = [(j, s) for j in range(11) for s in range(2)]
    def slot_of(j): return 0 if j == 10 else j
    def reads(idx, slot, stp):
        buf = AF + 8*(idx % 3)
        grp, so = slot // 4, (slot % 4) * 16384
        for e in range(2):
            for h in range(2):
                r = buf + 4*e + 2*h
                k(f"ds_read_b64_tr_b16 v[{r}:{r+1}], v{R['tr']+2*grp+e} offset:{so + stp*2048 + h*1024}")
    def mfm(idx, b, first=False):
        buf = AF + 8*(idx % 3)
        for e in range(2):
            c = "0" if first else f"v[{ACC+16*e}:{ACC+16*e+15}]"
            k(f"v_mfma_f32_32x32x16_bf16 v[{ACC+16*e}:{ACC+16*e+15}], v[{buf+4*e}:{buf+4*e+3}], v[{b}:{b+3}], {c}")
    vm.wait("w2_9")
    k("s_barrier")
    stamp(k, stb + 1, st)
    def run(seq, first):
        n = len(seq)
        for a in range(min(2, n)): reads(seq[a][0], seq[a][1], seq[a][2])
        for a in range(n):
            idx, slot, stp, b, htag = seq[a]
            if a + 2 < n: reads(*seq[a + 2][:3])
            rem = min(2, n - 1 - a)
            if htag and stp == 0:
                vm.wait(htag)
                if hthr and int(htag[2:]) + hthr <= 10: hissue(int(htag[2:]) + hthr)
            k(f"s_waitcnt lgkmcnt({4*rem})")
            mfm(idx, b, first and a == 0)
    seq = [(2*j + s, j, s, HB + 8*j + 4*s, f"h_{j}") for j in range(2) for s in range(2)]
    run(seq, True)
    k("s_barrier")
    k("s_cmp_eq_u32 s65, 3")
    k(f"s_mov_b32 s71, {10*32768}")
    k(f"s_cselect_b32 s71, {9*32768}, s71")
    for ii in range(2):
        k(f"s_add_u32 m0, s68, {ii*1024}")
        k(f"s_add_u32 s67, s66, s71")
        if ii: k("s_add_u32 s67, s67, 8192")
        vm.issue(f"buffer_load_dwordx4 v{R['dma']}, s[{SRD_C}:{SRD_C+3}], s67 offen lds", "w2_10")
    seq = [(2*j + s, j, s, HB + 8*j + 4*s, f"h_{j}") for j in range(2, 10) for s in range(2)]
    run(seq, False)
    stamp(k, stb + 2, st)
    if hook_t3: hook_t3()
    if not t3merge:
        if hthr: vm.wait_all()
        else: vm.wait("w2_10")
        k("s_barrier")
    k.c("T3 tile DMA -> slot 1")
    k(f"s_lshl_b32 s70, {s_cls}, 17")
    k("s_lshl_b32 s71, s65, 15")
    k("s_add_u32 s70, s70, s71")
    k("s_lshl_b32 s71, s64, 14")
    k("s_add_u32 s70, s70, s71")
    k(f"s_lshl_b32 s71, {s_db}, 7")
    k("s_add_u32 s70, s70, s71")
    k(f"s_add_u32 s70, s70, {T3_OFF}")
    for ii in range(2):
        k(f"s_add_u32 m0, s68, {16384 + ii*1024}")
        k(f"s_add_u32 s67, s70, {ii*8192}")
        vm.issue(f"buffer_load_dwordx4 v{R['dma']}, s[{SRD_WS}:{SRD_WS+3}], s67 offen lds{fl}", "t3")
    L = k.newlabel("no10")
    k("s_cmp_eq_u32 s65, 3")
    k(f"s_cbranch_scc1 {L}")
    seq = [(20 + s, 0, s, HB + 80 + 4*s, None) for s in range(2)]
    run(seq, False)
    k.label(L)
    for r in range(32):
        k(f"v_mul_f32 v{ACC+r}, v{R['og']}, v{ACC+r}")
    vm.wait("t3")
    k("s_barrier")
    stamp(k, stb + 3, st)
    seq = [(22 + s, 1, s, R["TB"] + 4*s, None) for s in range(2)]
    run(seq, False)
    k.c("reduction")
    Ls = [k.newlabel("red") for _ in range(4)]; Lj = k.newlabel("redj")
    OWN = AF
    for q in range(4):
        if q < 3:
            k(f"s_cmp_lg_u32 s65, {q}")
            k(f"s_cbranch_scc1 {Ls[q+1]}")
        for x in range(1, 4):
            dst = q ^ x
            src = ACC + 16*(dst >> 1) + 8*(dst & 1)
            for h in range(2):
                k(f"ds_write_b128 v{R['xw']}, v[{src+4*h}:{src+4*h+3}] offset:{dst*6144 + (x-1)*2048 + h*1024}")
        own = ACC + 16*(q >> 1) + 8*(q & 1)
        for i in range(8): k(f"v_mov_b32 v{OWN+i}, v{own+i}")
        if q < 3:
            k(f"s_branch {Lj}")
            k.label(Ls[q+1])
    k.label(Lj)
    k("s_waitcnt lgkmcnt(0)")
    k("s_barrier")
    XR = R["XR"]
    for x in range(3):
        for h in range(2):
            k(f"ds_read_b128 v[{XR+8*x+4*h}:{XR+8*x+4*h+3}], v{R['xr']} offset:{x*2048 + h*1024}")
    B2 = R["HB"]
    for i in range(4):
        k(f"v_lshlrev_b32 v{B2+2*i}, 16, v{R['b2']+i}")
        k(f"v_and_b32 v{B2+2*i+1}, 0xffff0000, v{R['b2']+i}")
    for i in range(8): k(f"v_fmac_f32 v{OWN+i}, v{R['og']}, v{B2+i}")
    for x in range(3):
        k(f"s_waitcnt lgkmcnt({4-2*x})")
        for i in range(8): k(f"v_add_f32 v{OWN+i}, v{OWN+i}, v{XR+8*x+i}")
    for i in range(4): k(f"v_cvt_pk_bf16_f32 v{XR+i}, v{OWN+2*i}, v{OWN+2*i+1}")
    k.srd(SRD_B, S_POUT, S_POUT + 1, 2048 * 1024)
    k(f"buffer_store_dwordx4 v[{XR}:{XR+3}], v{R['out']}, s[{SRD_B}:{SRD_B+3}], 0 offen")
    stamp(k, stb + 4, st)

def final(k, s_cls, s_hf, s_db, st=False):
    R = final_regs(); vm = VM(k)
    final_setup(k, s_cls, s_hf, s_db, R)
    for j in range(10): final_w2_dma(k, vm, R, j, j)
    final_addr(k, s_cls, s_hf, s_db, R)
    final_small_loads(k, vm, s_cls, R)
    final_gp_loads(k, vm, s_cls, R)
    stamp(k, 1, st)
    vm.wait("gp")
    final_gate(k, R)
    final_main(k, s_cls, s_hf, s_db, R, vm, st)
    k("s_waitcnt vmcnt(0)")
    stamp(k, 7, st)
```

```python
from roles2 import *
import roles, roles2
from fused import (RF_OFF, TF_OFF, HF_OFF, SRD_DBG, NL, NH, VS, SPIN, FB, wave0, flag_store, poll)

DUMP_OFF = 0xD00000

def p2_regs3():
    R = p2_regs()
    R.update(e1w=228, e1r=229, e2w=230, e2r=231, t3=233)
    return R

def p2_addr3(k, s_task, R):
    roles.p2_addr(k, s_task, R)
    vT = R["T"]; vN, vQ = R["n"], R["q"]
    k.c("stage (v) variant: column n <-> d = 4n + r")
    k(f"v_lshrrev_b32 v{vT}, 2, v{vN}")
    k(f"s_lshl_b32 s50, s3, 2")
    k(f"v_add_u32 v{vT}, s50, v{vT}")
    k(f"v_mul_u32_u24 v{vT}, {roles.P2_PITCH}, v{vT}")
    k(f"v_lshl_add_u32 v{vT}, v{vQ}, 8, v{vT}")
    k(f"v_and_b32 v{vT+1}, 3, v0")
    k(f"v_lshl_add_u32 v{vT}, v{vT+1}, 5, v{vT}")
    k(f"v_add_u32 v{R['e2r']}, {roles.P2_E2}, v{vT}")
    k(f"v_lshlrev_b32 v{vT}, 19, v{vQ}")
    k(f"v_lshl_add_u32 v{vT}, v{vN}, 3, v{vT}")
    k(f"s_lshl_b32 s50, s3, 7")
    k(f"v_add_u32 v{R['t3']}, s50, v{vT}")

def p2_main3(k, s_task, R, vmf, hooks, sc1=True):
    H = lambda n: hooks[n]() if n in hooks else None
    fl = " sc1" if sc1 else ""
    FS, F16, A1, B5 = R["FS"], R["F16"], R["A1"], R["B5"]
    TW1C, TW1S, TW2C, TW2S = R["TW1C"], R["TW1S"], R["TW2C"], R["TW2S"]
    W = R["W"]; WA = R["work"]
    P2_PITCH = roles.P2_PITCH
    BF = WA; D = WA + 16; P = WA + 48; X = WA + 64
    def fs(t, g, cp): return FS + 6*(2*t+g) + (2 if cp == 0 else 0)
    def f16(cp): return F16 + (2 if cp == 0 else 0)
    def mf(d, a, b, c=None):
        cc = "0" if c is None else f"v[{c}:{c+3}]"
        return f"v_mfma_f32_16x16x32_bf16 v[{d}:{d+3}], v[{a}:{a+3}], v[{b}:{b+3}], {cc}"
    k.c("stage (i)")
    for dd in range(4):
        for c in range(2):
            r = BF + 4*dd + 2*c
            k(f"ds_read_b64_tr_b16 v[{r}:{r+1}], v{R['tr']+dd} offset:{c*1024}")
    for dd in range(4):
        k(f"s_waitcnt lgkmcnt({6-2*dd})")
        for cp in range(2):
            k(mf(D + 8*dd + 4*cp, A1 + 4*cp, BF + 4*dd))
    for i in range(4):
        for cp in range(2):
            for h in range(2):
                k(f"v_cvt_pk_bf16_f32 v{P+4*i+2*cp+h}, v{D+8*(2*h)+4*cp+i}, v{D+8*(2*h+1)+4*cp+i}")
        k(f"ds_write_b128 v{R['e1w']}, v[{P+4*i}:{P+4*i+3}] offset:{i*2048}")
    k("s_waitcnt lgkmcnt(0)")
    k("s_barrier")
    sn(k, "p_e1")
    k.c("step A")
    AF = WA
    for row in range(2):
        for g in range(2):
            r = AF + 8*row + 4*g
            k(f"ds_read_b128 v[{r}:{r+3}], v{R['e1r']} offset:{row*2048 + g*1024}")
    H("A")
    def d1(row, t, cp): return D + 16*row + 8*t + 4*cp
    def frag(row, t): return P + 8*row + 4*t
    def stepA(row):
        o = []
        for g in range(2):
            for t in range(2):
                for cp in range(2):
                    o.append(mf(d1(row, t, cp), AF + 8*row + 4*g, fs(t, g, cp), None if g == 0 else d1(row, t, cp)))
        return o
    def cmul(row, C, S, kind):
        o = []
        for t in range(2):
            re, im = d1(row, t, 0), d1(row, t, 1)
            x = X + 8*t
            c_, s_ = C(t), S(t)
            if kind == "tw":
                for i in range(4): o.append(f"v_mul_f32 v{x+i}, v{re+i}, v{c_+i}")
                for i in range(4): o.append(f"v_mul_f32 v{x+4+i}, v{im+i}, v{c_+i}")
                for i in range(4): o.append(f"v_fmac_f32 v{x+i}, v{im+i}, v{s_+i}")
                for i in range(4): o.append(f"v_fma_f32 v{x+4+i}, -v{re+i}, v{s_+i}, v{x+4+i}")
            else:
                for i in range(4): o.append(f"v_mul_f32 v{x+i}, v{re+i}, v{c_+i}")
                for i in range(4): o.append(f"v_mul_f32_e64 v{x+4+i}, -v{re+i}, v{s_+i}")
                for i in range(4): o.append(f"v_fma_f32 v{x+i}, -v{im+i}, v{s_+i}, v{x+i}")
                for i in range(4): o.append(f"v_fma_f32 v{x+4+i}, -v{im+i}, v{c_+i}, v{x+4+i}")
            f = frag(row, t)
            for h in range(2): o.append(f"v_cvt_pk_bf16_f32 v{f+h}, v{x+2*h}, v{x+2*h+1}")
            for h in range(2): o.append(f"v_cvt_pk_bf16_f32 v{f+2+h}, v{x+4+2*h}, v{x+4+2*h+1}")
        return o
    tw1 = lambda row: cmul(row, lambda t: TW1C + 4*t, lambda t: TW1S + 4*t, "tw")
    wm = lambda row: cmul(row, lambda t: W + 16*row + 8*t, lambda t: W + 16*row + 8*t + 4, "w")
    tw2 = lambda row: cmul(row, lambda t: TW2C + 4*t, lambda t: TW2S + 4*t, "tw")
    def stepB(row):
        return [mf(d1(row, t, cp), f16(cp), frag(row, t)) for t in range(2) for cp in range(2)]
    def stepBp(row):
        return [mf(d1(row, t, cp), frag(row, t), f16(cp)) for t in range(2) for cp in range(2)]
    def stepAp(row):
        o = []
        for t in range(2):
            for tp in range(2):
                for cp in range(2):
                    o.append(mf(d1(row, tp, cp), fs(tp, t, cp), frag(row, t), None if t == 0 else d1(row, tp, cp)))
        return o
    def emit(l):
        for x in l: k(x)
    k("s_waitcnt lgkmcnt(2)")
    emit(stepA(0))
    k("s_waitcnt lgkmcnt(0)")
    emit(interleave(stepA(1), tw1(0)))
    emit(interleave(stepB(0), tw1(1)))
    emit(interleave(stepB(1), wm(0)))
    emit(interleave(stepBp(0), wm(1)))
    H("W")
    emit(interleave(stepBp(1), tw2(0)))
    H("W2")
    emit(interleave(stepAp(0), tw2(1)))
    H("W3")
    emit(stepAp(1))
    sn(k, "p_ap")
    k.c("E2 write")
    for tp in range(2):
        for i in range(4):
            p = P + 2*(4*tp + i)
            k(f"v_cvt_pk_bf16_f32 v{p}, v{d1(0,tp,0)+i}, v{d1(1,tp,0)+i}")
            k(f"v_cvt_pk_bf16_f32 v{p+1}, v{d1(0,tp,1)+i}, v{d1(1,tp,1)+i}")
            k(f"ds_write_b64 v{R['e2w']}, v[{p}:{p+1}] offset:{(16*tp+i)*P2_PITCH}")
    H("B")
    k("s_waitcnt lgkmcnt(0)")
    k("s_barrier")
    sn(k, "p_e2")
    k.c("stage (v)")
    for r in range(4):
        k(f"ds_read2_b64 v[{AF+4*r}:{AF+4*r+3}], v{R['e2r']} offset0:{r} offset1:{r+16}")
    H("C")
    k(f"s_and_b32 s52, {s_task}, 63")
    k(f"s_lshl_b32 s50, s52, 11")
    k(f"s_lshr_b32 s51, {s_task}, 6")
    k(f"s_lshl_b32 s51, s51, 10")
    k(f"s_add_u32 s50, s50, s51")
    k(f"s_add_u32 s50, s50, {T3_OFF}")
    k(f"s_cmp_eq_u32 s52, 0")
    k(f"s_cselect_b32 s51, {DUMP_OFF}, s50")
    for r in range(4):
        k(f"s_waitcnt lgkmcnt({3-r})")
        for cp in range(2):
            k(mf(D + 8*r + 4*cp, B5 + 4*cp, AF + 4*r))
    H("V")
    vm = vmf()
    for i in range(4):
        for cp in range(2):
            p = P + 4*i + 2*cp
            for h in range(2):
                k(f"v_cvt_pk_bf16_f32 v{p+h}, v{D+8*(2*h)+4*cp+i}, v{D+8*(2*h+1)+4*cp+i}")
            if i: k(f"s_add_u32 s{52+cp}, s{50+cp}, {i*131072}")
            vm.issue(f"buffer_store_dwordx2 v[{p}:{p+1}], v{R['t3']}, s[{SRD_WS}:{SRD_WS+3}], s{(52 if i else 50)+cp} offen offset:{cp*1024}{fl}", "t3st")

def h_base(k, s_cls, s_hf):
    k(f"s_mul_i32 s70, {s_cls}, {H_CLS}")
    k(f"s_lshl_b32 s71, {s_hf}, 1")
    k("s_add_u32 s71, s71, s64")
    k(f"s_mul_i32 s71, s71, {43*2048}")
    k("s_add_u32 s70, s70, s71")
    k(f"s_mul_i32 s71, s65, {11*2048}")
    k("s_add_u32 s70, s70, s71")
    if H_OFF: k(f"s_add_u32 s70, s70, {H_OFF}")

def hreg(R, j):
    return R.get("hmap", {}).get(j, R["HB"] + 8*j)

def h_load(k, vm, R, j):
    HB = hreg(R, j) - 8*j
    if j == 10:
        k("s_cmp_eq_u32 s65, 3")
        k(f"s_mov_b32 s71, {10*2048}")
        k(f"s_cselect_b32 s71, {9*2048}, s71")
        k("s_add_u32 s71, s70, s71")
    else:
        k(f"s_add_u32 s71, s70, {j*2048}")
    for stp in range(2):
        vm.issue(f"buffer_load_dwordx4 v[{HB+8*j+4*stp}:{HB+8*j+4*stp+3}], v{R['h']}, s[{SRD_WS}:{SRD_WS+3}], s71 offen offset:{stp*1024}", f"h_{j}")

def flags_issue(k, nfl, s_off):
    k(f"v_min_u32 v{VS}, {nfl-1}, v0")
    k(f"v_lshlrev_b32 v{VS}, 3, v{VS}")
    k(f"buffer_load_dwordx2 v[{VS+2}:{VS+3}], v{VS}, s[{SRD_WS}:{SRD_WS+3}], {s_off} offen sc1")

def flags_check(k, s_off, s_cnt):
    Ll, Lok = k.newlabel("fchk"), k.newlabel("fok")
    k(f"s_mov_b32 {s_cnt}, {SPIN}")
    k.label(Ll)
    k("s_waitcnt vmcnt(0)")
    k(f"v_cmp_eq_u32 vcc, s{NL}, v{VS+2}")
    k(f"v_cmp_eq_u32 s[62:63], s{NH}, v{VS+3}")
    k("s_and_b64 vcc, vcc, s[62:63]")
    k("s_cmp_eq_u64 vcc, exec")
    k(f"s_cbranch_scc1 {Lok}")
    k(f"s_sub_u32 {s_cnt}, {s_cnt}, 1")
    k(f"s_cmp_eq_u32 {s_cnt}, 0")
    k(f"s_cbranch_scc1 {Lok}")
    k(f"buffer_load_dwordx2 v[{VS+2}:{VS+3}], v{VS}, s[{SRD_WS}:{SRD_WS+3}], {s_off} offen sc1")
    k(f"s_branch {Ll}")
    k.label(Lok)

def gemm2_run(k, vm, R, seq, first, after=None):
    AF, ACC = R["AF"], R["ACC"]
    def reads(idx, slot, stp):
        buf = AF + 8*(idx % 3)
        grp, so = slot // 4, (slot % 4) * 16384
        for e in range(2):
            for h in range(2):
                r = buf + 4*e + 2*h
                k(f"ds_read_b64_tr_b16 v[{r}:{r+1}], v{R['tr']+2*grp+e} offset:{so + stp*2048 + h*1024}")
    def mfm(idx, b, first=False):
        buf = AF + 8*(idx % 3)
        for e in range(2):
            c = "0" if first else f"v[{ACC+16*e}:{ACC+16*e+15}]"
            k(f"v_mfma_f32_32x32x16_bf16 v[{ACC+16*e}:{ACC+16*e+15}], v[{buf+4*e}:{buf+4*e+3}], v[{b}:{b+3}], {c}")
    n = len(seq)
    for a in range(min(2, n)): reads(seq[a][0], seq[a][1], seq[a][2])
    for a in range(n):
        idx, slot, stp, b, htag = seq[a]
        if a + 2 < n: reads(*seq[a + 2][:3])
        rem = min(2, n - 1 - a)
        if htag and stp == 0: vm.wait(htag)
        k(f"s_waitcnt lgkmcnt({4*rem})")
        mfm(idx, b, first and a == 0)
        if after and idx in after: after[idx]()

def gseq(R, js):
    return [(2*j + s, j, s, hreg(R, j) + 4*s, f"h_{j}") for j in js for s in range(2)]

def p2_consts_share(k, s_task, R, tbl):
    vT = R["T"]; vN, vQ = R["n"], R["q"]; WA = R["work"]
    FS, F16, A1, B5 = R["FS"], R["F16"], R["A1"], R["B5"]
    TW1C, TW1S, TW2C, TW2S = R["TW1C"], R["TW1S"], R["TW2C"], R["TW2S"]
    assert FS == 20
    nf, q4 = vT, vT + 1
    vA = vT + 8
    Lend = k.newlabel("cs_end")
    k("s_cmp_eq_u32 s3, 0")
    k(f"s_cbranch_scc1 {Lend}")
    k(f"v_cvt_f32_u32 v{nf}, v{vN}")
    k(f"v_lshlrev_b32 v{q4}, 2, v{vQ}")
    k(f"v_cvt_f32_u32 v{q4}, v{q4}")
    k(f"s_cmp_eq_u32 {s_task}, 64")
    k(f"s_cselect_b32 s54, 0x3f800000, 0")
    k(f"v_lshlrev_b32 v{vA}, 4, v0")
    k(f"v_add_u32 v{vA}, {tbl}, v{vA}")
    an = WA; cs = WA + 4; sn_ = WA + 8
    def pub(r0, n):
        for r in range(r0, r0 + n, 2):
            k(f"ds_write_b64 v{vA}, v[{r}:{r+1}] offset:{((r-20)>>2)*1024 + ((r-20)&2)*4}")
    def angles(vdelta, va0):
        for j in range(4):
            if j == 0: k(f"v_mov_b32 v{an}, v{va0}")
            elif j == 3: k(f"v_fmamk_f32 v{an+j}, v{vdelta}, {fhex(3.0)}, v{va0}")
            else: k(f"v_fma_f32 v{an+j}, v{vdelta}, {float(j)}, v{va0}")
    def cset(vdelta, va0, C01, C23, S01, S23):
        angles(vdelta, va0)
        for j in range(4): k(f"v_cos_f32 v{cs+j}, v{an+j}")
        for j in range(4): k(f"v_sin_f32 v{sn_+j}, v{an+j}")
        k(f"v_cvt_pk_bf16_f32 v{C01}, v{cs}, v{cs+1}")
        k(f"v_cvt_pk_bf16_f32 v{C23}, v{cs+2}, v{cs+3}")
        k(f"v_cvt_pk_bf16_f32 v{S01}, v{sn_}, v{sn_+1}")
        k(f"v_cvt_pk_bf16_f32 v{S23}, v{sn_+2}, v{sn_+3}")
    d, a0 = vT + 2, vT + 3
    Ls = {w: k.newlabel(f"cs{w}") for w in range(2, 8)}
    for w in range(2, 8):
        k(f"s_cmp_eq_u32 s3, {w}")
        k(f"s_cbranch_scc1 {Ls[w]}")
    k.c("wave 1: F32 sets")
    k(f"v_mul_f32 v{d}, {fhex(1/32)}, v{nf}")
    k(f"v_mul_f32 v{a0}, v{d}, v{q4}")
    cset(d, a0, FS + 2, FS + 3, FS + 4, FS + 5)
    k(f"v_xor_b32 v{FS}, 0x80008000, v{FS+4}")
    k(f"v_xor_b32 v{FS+1}, 0x80008000, v{FS+5}")
    k(f"v_and_b32 v{vT+4}, 1, v{vN}")
    k(f"v_mul_u32_u24 v{vT+4}, 0x8000, v{vT+4}")
    k(f"v_lshl_or_b32 v{vT+4}, v{vT+4}, 16, v{vT+4}")
    k(f"v_xor_b32 v{vT+5}, 0x80000000, v{vT+4}")
    for r in range(6):
        k(f"v_xor_b32 v{FS+6+r}, v{vT+4}, v{FS+r}")
        k(f"v_xor_b32 v{FS+12+r}, 0x80000000, v{FS+r}")
        k(f"v_xor_b32 v{FS+18+r}, v{vT+5}, v{FS+r}")
    pub(FS, 24)
    k(f"s_branch {Lend}")
    k.label(Ls[2])
    k.c("wave 2: F16, A1")
    k(f"v_mul_f32 v{d}, {fhex(1/16)}, v{nf}")
    k(f"v_mul_f32 v{a0}, v{d}, v{q4}")
    cset(d, a0, F16 + 2, F16 + 3, F16 + 4, F16 + 5)
    k(f"v_xor_b32 v{F16}, 0x80008000, v{F16+4}")
    k(f"v_xor_b32 v{F16+1}, 0x80008000, v{F16+5}")
    pub(F16, 6)
    k(f"v_fma_f32 v{d}, v{nf}, 2.0, s54")
    k(f"v_mul_f32 v{d}, {fhex(1/32)}, v{d}")
    k(f"v_mul_f32 v{a0}, v{d}, v{q4}")
    t0 = WA + 12
    cset(d, a0, t0, t0 + 1, t0 + 2, t0 + 3)
    k(f"v_xor_b32 v{t0+4}, 0x80008000, v{t0+2}")
    k(f"v_xor_b32 v{t0+5}, 0x80008000, v{t0+3}")
    L0, L64, Lj = k.newlabel("a1_0"), k.newlabel("a1_64"), k.newlabel("a1_j")
    C01, C23, S01, S23, N01, N23 = [f"v{t0+i}" for i in range(6)]
    def setA(vals):
        for r, x in enumerate(vals): k(f"v_mov_b32 v{A1+r}, {x}")
    k(f"s_cmp_eq_u32 {s_task}, 0"); k(f"s_cbranch_scc1 {L0}")
    k(f"s_cmp_eq_u32 {s_task}, 64"); k(f"s_cbranch_scc1 {L64}")
    setA([C01, C23, S01, S23, N01, N23, C01, C23]); k(f"s_branch {Lj}")
    k.label(L0); setA([C01, C23, 0, 0, N01, N23, 0, 0]); k(f"s_branch {Lj}")
    k.label(L64); setA([0, 0, C01, C23, 0, 0, N01, N23])
    k.label(Lj)
    pub(A1, 8)
    k(f"s_branch {Lend}")
    k.label(Ls[3])
    k.c("wave 3: B5: angle n(2u2+e)/32")
    k(f"v_mul_f32 v{d}, {fhex(1/16)}, v{nf}")
    k(f"v_mul_f32 v{a0}, s54, v{nf}")
    k(f"v_mul_f32 v{a0}, {fhex(1/32)}, v{a0}")
    k(f"v_fmac_f32 v{a0}, v{d}, v{q4}")
    cset(d, a0, B5, B5 + 2, B5 + 1, B5 + 3)
    k(f"v_mov_b32 v{B5+4}, v{B5+1}")
    k(f"v_xor_b32 v{B5+5}, 0x80008000, v{B5}")
    k(f"v_mov_b32 v{B5+6}, v{B5+3}")
    k(f"v_xor_b32 v{B5+7}, 0x80008000, v{B5+2}")
    pub(B5, 8)
    k(f"s_branch {Lend}")
    for t in range(2):
        k.label(Ls[4 + t])
        k.c(f"wave {4+t}: tw1 t={t}")
        k(f"v_add_f32 v{d}, {fhex(16.0*t)}, v{nf}" if t else f"v_mov_b32 v{d}, v{nf}")
        k(f"v_mul_f32 v{d}, {fhex(1/512)}, v{d}")
        k(f"v_mul_f32 v{a0}, v{d}, v{q4}")
        angles(d, a0)
        for j in range(4): k(f"v_cos_f32 v{TW1C+4*t+j}, v{an+j}")
        for j in range(4): k(f"v_sin_f32 v{TW1S+4*t+j}, v{an+j}")
        pub(TW1C + 4*t, 4); pub(TW1S + 4*t, 4)
        k(f"s_branch {Lend}")
    for t in range(2):
        k.label(Ls[6 + t])
        k.c(f"wave {6+t}: tw2 t={t}")
        k(f"s_and_b32 s55, {s_task}, 63")
        k(f"s_cmp_eq_u32 s55, 0")
        k(f"s_mov_b32 s56, {fhex(2.0**-19)}")
        k(f"s_cselect_b32 s55, {fhex(2.0**-20)}, s56")
        k(f"v_mul_f32 v{d}, {fhex(1/512)}, v{nf}")
        k(f"v_add_f32 v{a0}, {fhex(16.0*t)}, v{q4}" if t else f"v_mov_b32 v{a0}, v{q4}")
        k(f"v_mul_f32 v{a0}, v{a0}, v{d}")
        angles(d, a0)
        for j in range(4): k(f"v_cos_f32 v{cs+j}, v{an+j}")
        for j in range(4): k(f"v_sin_f32 v{sn_+j}, v{an+j}")
        for j in range(4): k(f"v_mul_f32 v{TW2C+4*t+j}, s55, v{cs+j}")
        for j in range(4): k(f"v_mul_f32 v{TW2S+4*t+j}, s55, v{sn_+j}")
        pub(TW2C + 4*t, 4); pub(TW2S + 4*t, 4)
        if t == 0: k(f"s_branch {Lend}")
    k.label(Lend)

def p2_consts_read(k, R, tbl):
    vA = R["T"] + 8
    k(f"v_lshlrev_b32 v{vA}, 4, v0")
    k(f"v_add_u32 v{vA}, {tbl}, v{vA}")
    for q in range(19):
        k(f"ds_read_b128 v[{20+4*q}:{23+4*q}], v{vA} offset:{q*1024}")
    k(f"ds_read_b64 v[96:97], v{vA} offset:{19*1024}")

GWB = 149504 + 9216
WB = 149504

def w_raw_parts(k, vm, s_task, R, l16=12, tmp=13, A=(142, 143)):
    SWR, SWI = R["srdw"]
    W = R["W"]; WX = R["WX"]
    def addr(row):
        if row == 0:
            k(f"v_lshlrev_b32 v{l16}, 4, v0")
            k("v_cmp_gt_u32 vcc, 32, v0")
        k("s_lshl_b32 s50, s3, 1")
        k(f"s_add_u32 s50, s50, {row}")
        k("s_lshl_b32 s50, s50, 7")
        k(f"s_add_u32 s50, s50, {s_task}")
        k("s_sub_u32 s51, 2048, s50")
        k("s_and_b32 s51, s51, 2047")
        k("s_mul_i32 s50, s50, 514")
        k("s_mul_i32 s51, s51, 514")
        k("s_and_b32 s50, s50, -4")
        k("s_and_b32 s51, s51, -4")
        k("s_sub_u32 s52, s51, 512")
        k(f"v_mov_b32 v{A[row]}, s52")
        k(f"v_mov_b32 v{tmp}, s50")
        k(f"v_cndmask_b32 v{A[row]}, v{A[row]}, v{tmp}, vcc")
        k(f"v_add_u32 v{A[row]}, v{A[row]}, v{l16}")
    def wide(row):
        raw = W + 16 + 8*row
        vm.issue(f"buffer_load_dwordx4 v[{raw}:{raw+3}], v{A[row]}, s[{SWR}:{SWR+3}], 0 offen", "Wr")
        vm.issue(f"buffer_load_dwordx4 v[{raw+4}:{raw+7}], v{A[row]}, s[{SWI}:{SWI+3}], 0 offen", "Wr")
    def tail(row):
        k("s_mov_b32 s52, 1")
        k("s_mov_b32 s53, 1")
        k("s_mov_b64 exec, s[52:53]")
        vm.issue(f"buffer_load_dword v{WX+2*row}, v{A[row]}, s[{SWR}:{SWR+3}], 0 offen offset:512", "Wr")
        vm.issue(f"buffer_load_dword v{WX+2*row+1}, v{A[row]}, s[{SWI}:{SWI+3}], 0 offen offset:512", "Wr")
        k("s_mov_b64 exec, -1")
    return (lambda: (addr(0), addr(1))), [lambda: wide(0), lambda: tail(0), lambda: wide(1), lambda: tail(1)]

def w_raw_load(k, vm, s_task, R, vT):
    SWR, SWI = R["srdw"]
    W = R["W"]; WX = R["WX"]
    k(f"v_lshlrev_b32 v{vT}, 4, v0")
    k("v_cmp_gt_u32 vcc, 32, v0")
    for row in range(2):
        k("s_lshl_b32 s50, s3, 1")
        k(f"s_add_u32 s50, s50, {row}")
        k("s_lshl_b32 s50, s50, 7")
        k(f"s_add_u32 s50, s50, {s_task}")
        k("s_sub_u32 s51, 2048, s50")
        k("s_and_b32 s51, s51, 2047")
        k("s_mul_i32 s50, s50, 514")
        k("s_mul_i32 s51, s51, 514")
        k("s_and_b32 s50, s50, -4")
        k("s_and_b32 s51, s51, -4")
        k("s_sub_u32 s52, s51, 512")
        k(f"v_mov_b32 v{vT+1}, s52")
        k(f"v_mov_b32 v{vT+2}, s50")
        k(f"v_cndmask_b32 v{vT+1}, v{vT+1}, v{vT+2}, vcc")
        k(f"v_add_u32 v{vT+1}, v{vT+1}, v{vT}")
        raw = W + 16 + 8*row
        vm.issue(f"buffer_load_dwordx4 v[{raw}:{raw+3}], v{vT+1}, s[{SWR}:{SWR+3}], 0 offen", "Wr")
        vm.issue(f"buffer_load_dwordx4 v[{raw+4}:{raw+7}], v{vT+1}, s[{SWI}:{SWI+3}], 0 offen", "Wr")
        k("s_mov_b32 s52, 1")
        k("s_mov_b32 s53, 1")
        k("s_mov_b64 exec, s[52:53]")
        vm.issue(f"buffer_load_dword v{WX+2*row}, v{vT+1}, s[{SWR}:{SWR+3}], 0 offen offset:512", "Wr")
        vm.issue(f"buffer_load_dword v{WX+2*row+1}, v{vT+1}, s[{SWI}:{SWI+3}], 0 offen offset:512", "Wr")
        k("s_mov_b64 exec, -1")

def w_shuffle(k, R, s_task, AB, vT):
    W = R["W"]; WX = R["WX"]; vN, vQ = R["n"], R["q"]
    k("s_mul_i32 s50, s3, 1152")
    k(f"s_add_u32 s50, s50, {WB}")
    k(f"s_and_b32 s51, {s_task}, 1")
    k("s_lshl_b32 s51, s51, 1")
    k("s_add_u32 s51, s51, s50")
    k("v_cmp_gt_u32 vcc, 32, v0")
    k(f"v_mov_b32 v{vT}, 64")
    k(f"v_cndmask_b32 v{vT}, v{vT}, 0, vcc")
    k(f"v_lshl_add_u32 v{vT}, v0, 4, v{vT}")
    k(f"v_add_u32 v{vT}, s50, v{vT}")
    k(f"v_lshlrev_b32 v{vT+1}, 8, v{vQ}")
    k(f"v_lshl_add_u32 v{vT+1}, v{vN}, 1, v{vT+1}")
    k(f"v_sub_u32 v{vT+2}, 1600, v{vT+1}")
    k(f"v_cndmask_b32 v{vT+1}, v{vT+2}, v{vT+1}, vcc")
    k(f"v_add_u32 v{AB}, s51, v{vT+1}")
    k(f"v_mov_b32 v{vT+2}, -32")
    k(f"v_mov_b32 v{vT+3}, 32")
    k(f"v_cndmask_b32 v{vT+2}, v{vT+2}, v{vT+3}, vcc")
    for m in range(1, 8):
        k(f"v_mad_i32_i24 v{AB+m}, v{vT+2}, {m}, v{AB}")
    k(f"v_mov_b32 v{vT+2}, 512")
    k(f"v_mov_b32 v{vT+3}, 576")
    k(f"v_cndmask_b32 v{vT+2}, v{vT+2}, v{vT+3}, vcc")
    k(f"v_add_u32 v{vT+2}, s51, v{vT+2}")
    k(f"v_and_b32 v{vT+3}, 31, v0")
    k(f"v_cmp_eq_u32 s[62:63], 0, v{vT+3}")
    k(f"v_cndmask_b32 v{AB+8}, v{AB}, v{vT+2}, s[62:63]")
    for row in range(2):
        for part in range(2):
            raw = W + 16 + 8*row + 4*part
            k(f"ds_write_b128 v{vT}, v[{raw}:{raw+3}]")
            k("s_mov_b64 exec, s[62:63]")
            k(f"ds_write_b32 v{vT}, v{WX+2*row+part} offset:512")
            k("s_mov_b64 exec, -1")
            for t in range(2):
                for i in range(4):
                    k(f"ds_read_u16 v{W+16*row+8*t+4*part+i}, v{AB+t+2*i}")
            k(f"ds_read_u16 v{WX+2*row+part}, v{AB+8}")
    k(f"v_mov_b32 v{vT+1}, 0x80000000")
    k(f"v_cndmask_b32 v{vT+1}, v{vT+1}, 0, vcc")
    k(f"v_xor_b32 v{vT+2}, 0x80000000, v{vT+1}")
    k(f"v_cndmask_b32 v{vT+2}, v{vT+1}, v{vT+2}, s[62:63]")
    for row in range(2):
        k(f"s_waitcnt lgkmcnt({15 if row == 0 else 0})")
        for t in range(2):
            for i in range(4):
                r = W + 16*row + 8*t + i
                k(f"v_lshlrev_b32 v{r}, 16, v{r}")
                k(f"v_lshl_add_u32 v{r+4}, v{r+4}, 16, v{vT+1}")
        k(f"v_lshlrev_b32 v{WX+2*row}, 16, v{WX+2*row}")
        k(f"v_lshl_add_u32 v{WX+2*row+1}, v{WX+2*row+1}, 16, v{vT+2}")
        r = W + 16*row
        k(f"v_add_f32 v{r}, v{r}, v{WX+2*row}")
        k(f"v_add_f32 v{r+4}, v{r+4}, v{WX+2*row+1}")
        k(f"v_mul_f32 v{r}, 0.5, v{r}")
        k(f"v_mul_f32 v{r+4}, 0.5, v{r+4}")

WSX = 0
def w_shuffle2(k, R, s_task, TP, vT):
    W = R["W"]; WX = R["WX"]; vN, vQ = R["n"], R["q"]
    k("s_mul_i32 s50, s3, 1152")
    k(f"s_add_u32 s50, s50, {WB + 8}")
    k(f"s_and_b32 s51, {s_task}, 1")
    k("s_lshl_b32 s51, s51, 1")
    k("s_sub_u32 s51, s50, s51")
    k("v_cmp_gt_u32 vcc, 32, v0")
    k(f"v_mov_b32 v{vT}, 62")
    k(f"v_cndmask_b32 v{vT}, v{vT}, 0, vcc")
    k(f"v_lshl_add_u32 v{vT}, v0, 4, v{vT}")
    k(f"v_add_u32 v{vT}, s51, v{vT}")
    if WSX: k(f"v_and_b32 v{vT}, -16, v{vT}")
    k(f"v_bfe_u32 v{vT+1}, v0, 2, 2")
    k(f"v_lshlrev_b32 v{vT+1}, 6, v{vT+1}")
    k(f"v_lshl_add_u32 v{vT+1}, v{vQ}, 8, v{vT+1}")
    k(f"v_sub_u32 v{vT+2}, {576 + 992}, v{vT+1}")
    k(f"v_cndmask_b32 v{vT+1}, v{vT+2}, v{vT+1}, vcc")
    k(f"v_and_b32 v{vT+2}, 3, v0")
    k(f"v_lshl_add_u32 v{vT+1}, v{vT+2}, 3, v{vT+1}")
    k(f"v_add_u32 v{vT+1}, s50, v{vT+1}")
    k(f"v_mov_b32 v{vT+2}, -32")
    k(f"v_mov_b32 v{vT+3}, 32")
    k(f"v_cndmask_b32 v{vT+2}, v{vT+2}, v{vT+3}, vcc")
    k(f"v_add_u32 v{vT+2}, v{vT+1}, v{vT+2}")
    k(f"v_mov_b32 v{vT+3}, 512")
    k(f"v_mov_b32 v{vT+4}, {576 - 2}")
    k(f"v_cndmask_b32 v{vT+3}, v{vT+3}, v{vT+4}, vcc")
    k(f"v_add_u32 v{vT+3}, s50, v{vT+3}")
    k("s_mov_b32 s52, 1")
    k("s_mov_b32 s53, 1")
    for row in range(2):
        for part in range(2):
            raw = W + 16 + 8*row + 4*part
            tp = TP + 8*row + 4*part
            k(f"ds_write_b128 v{vT}, v[{raw}:{raw+3}]")
            k("s_mov_b64 exec, s[52:53]")
            k(f"ds_write_b32 v{vT}, v{WX+2*row+part} offset:512")
            k(f"ds_read_u16 v{WX+2*row+part}, v{vT+3}")
            k("s_mov_b64 exec, -1")
            k(f"ds_read_b64_tr_b16 v[{tp}:{tp+1}], v{vT+1}")
            k(f"ds_read_b64_tr_b16 v[{tp+2}:{tp+3}], v{vT+2}")
    k(f"v_mov_b32 v{vT+4}, 0x80008000")
    k(f"v_cndmask_b32 v{vT+4}, v{vT+4}, 0, vcc")
    k(f"v_mov_b32 v{vT+5}, 0xffff0000")
    for row in range(2):
        k(f"s_waitcnt lgkmcnt({10 if row == 0 else 0})")
        for x in range(8):
            r = TP + 8*row + x
            k(f"v_mov_b32_dpp v{r}, v{r} row_mirror row_mask:0xc bank_mask:0xf")
        for x in range(4):
            r = TP + 8*row + 4 + x
            k(f"v_xor_b32 v{r}, v{r}, v{vT+4}")
        for part in range(2):
            for t in range(2):
                for h in range(2):
                    src = TP + 8*row + 4*part + 2*t + h
                    dst = W + 16*row + 8*t + 4*part + 2*h
                    k(f"v_lshlrev_b32 v{dst}, 16, v{src}")
                    k(f"v_and_b32 v{dst+1}, v{vT+5}, v{src}")
    k(f"v_mov_b32 v{vT+4}, 0x80000000")
    k(f"v_cndmask_b32 v{vT+4}, 0, v{vT+4}, vcc")
    k("s_mov_b64 exec, s[52:53]")
    for row in range(2):
        k(f"v_lshlrev_b32 v{WX+2*row}, 16, v{WX+2*row}")
        k(f"v_lshl_add_u32 v{WX+2*row+1}, v{WX+2*row+1}, 16, v{vT+4}")
        r = W + 16*row
        k(f"v_add_f32 v{r}, v{r}, v{WX+2*row}")
        k(f"v_add_f32 v{r+4}, v{r+4}, v{WX+2*row+1}")
        k(f"v_mul_f32 v{r}, 0.5, v{r}")
        k(f"v_mul_f32 v{r+4}, 0.5, v{r+4}")
    k("s_mov_b64 exec, -1")

def w_raw3(k, vm, s_task, R, vT):
    SWR, SWI = R["srdw"]
    W = R["W"]; WX = R["WX"]
    k(f"v_lshlrev_b32 v{vT}, 4, v0")
    k("v_cmp_gt_u32 vcc, 32, v0")
    k(f"s_and_b32 s53, {s_task}, 1")
    k("s_lshl_b32 s53, s53, 1")
    for row in range(2):
        k("s_lshl_b32 s50, s3, 1")
        k(f"s_add_u32 s50, s50, {row}")
        k("s_lshl_b32 s50, s50, 7")
        k(f"s_add_u32 s50, s50, {s_task}")
        k("s_sub_u32 s51, 2048, s50")
        k("s_and_b32 s51, s51, 2047")
        k("s_mul_i32 s50, s50, 514")
        k("s_mul_i32 s51, s51, 514")
        k("s_sub_u32 s50, s50, s53")
        k("s_add_u32 s51, s51, s53")
        k("s_sub_u32 s52, s51, 512")
        k(f"v_mov_b32 v{vT+1}, s52")
        k(f"v_mov_b32 v{vT+2}, s50")
        k(f"v_cndmask_b32 v{vT+1}, v{vT+1}, v{vT+2}, vcc")
        k(f"v_add_u32 v{vT+1}, v{vT+1}, v{vT}")
        raw = W + 16 + 8*row
        vm.issue(f"buffer_load_dwordx4 v[{raw}:{raw+3}], v{vT+1}, s[{SWR}:{SWR+3}], 0 offen", "Wr")
        vm.issue(f"buffer_load_dwordx4 v[{raw+4}:{raw+7}], v{vT+1}, s[{SWI}:{SWI+3}], 0 offen", "Wr")
        k("s_add_u32 s50, s50, 512")
        k(f"v_mov_b32 v{vT+2}, s50")
        k("s_add_u32 s52, s51, 512")
        k(f"v_writelane_b32 v{vT+2}, s52, 63")
        k("s_sub_u32 s51, s51, s53")
        k("s_sub_u32 s51, s51, s53")
        k(f"v_writelane_b32 v{vT+2}, s51, 0")
        k("s_mov_b32 exec_lo, 0x80000001")
        k("s_mov_b32 exec_hi, 0x80000001")
        vm.issue(f"buffer_load_dword v{WX+2*row}, v{vT+2}, s[{SWR}:{SWR+3}], 0 offen", "Wr")
        vm.issue(f"buffer_load_dword v{WX+2*row+1}, v{vT+2}, s[{SWI}:{SWI+3}], 0 offen", "Wr")
        k("s_mov_b64 exec, -1")

def w_raw3_parts(k, vm, s_task, R, l16=12, tmp=13, A=(142, 143), B=(141, 15)):
    SWR, SWI = R["srdw"]
    W = R["W"]; WX = R["WX"]
    def addr():
        k(f"v_lshlrev_b32 v{l16}, 4, v0")
        k("v_cmp_gt_u32 vcc, 32, v0")
        k(f"s_and_b32 s53, {s_task}, 1")
        k("s_lshl_b32 s53, s53, 1")
        for row in range(2):
            k("s_lshl_b32 s50, s3, 1")
            k(f"s_add_u32 s50, s50, {row}")
            k("s_lshl_b32 s50, s50, 7")
            k(f"s_add_u32 s50, s50, {s_task}")
            k("s_sub_u32 s51, 2048, s50")
            k("s_and_b32 s51, s51, 2047")
            k("s_mul_i32 s50, s50, 514")
            k("s_mul_i32 s51, s51, 514")
            k("s_sub_u32 s50, s50, s53")
            k("s_add_u32 s51, s51, s53")
            k("s_sub_u32 s52, s51, 512")
            k(f"v_mov_b32 v{A[row]}, s52")
            k(f"v_mov_b32 v{tmp}, s50")
            k(f"v_cndmask_b32 v{A[row]}, v{A[row]}, v{tmp}, vcc")
            k(f"v_add_u32 v{A[row]}, v{A[row]}, v{l16}")
            k("s_add_u32 s50, s50, 512")
            k(f"v_mov_b32 v{B[row]}, s50")
            k("s_add_u32 s52, s51, 512")
            k(f"v_writelane_b32 v{B[row]}, s52, 63")
            k("s_sub_u32 s51, s51, s53")
            k("s_sub_u32 s51, s51, s53")
            k(f"v_writelane_b32 v{B[row]}, s51, 0")
    def wide(row):
        raw = W + 16 + 8*row
        vm.issue(f"buffer_load_dwordx4 v[{raw}:{raw+3}], v{A[row]}, s[{SWR}:{SWR+3}], 0 offen", "Wr")
        vm.issue(f"buffer_load_dwordx4 v[{raw+4}:{raw+7}], v{A[row]}, s[{SWI}:{SWI+3}], 0 offen", "Wr")
    def tail(row):
        k("s_mov_b32 exec_lo, 0x80000001")
        k("s_mov_b32 exec_hi, 0x80000001")
        vm.issue(f"buffer_load_dword v{WX+2*row}, v{B[row]}, s[{SWR}:{SWR+3}], 0 offen", "Wr")
        vm.issue(f"buffer_load_dword v{WX+2*row+1}, v{B[row]}, s[{SWI}:{SWI+3}], 0 offen", "Wr")
        k("s_mov_b64 exec, -1")
    return addr, [lambda: wide(0), lambda: tail(0), lambda: wide(1), lambda: tail(1)]

def w_shuffle3(k, R, s_task, TP, vT):
    W = R["W"]; WX = R["WX"]; vN, vQ = R["n"], R["q"]
    k("s_mul_i32 s50, s3, 1152")
    k(f"s_add_u32 s50, s50, {WB}")
    k(f"s_and_b32 s51, {s_task}, 1")
    k("v_cmp_gt_u32 vcc, 32, v0")
    k(f"v_mov_b32 v{vT}, 64")
    k(f"v_cndmask_b32 v{vT}, v{vT}, 0, vcc")
    k(f"v_lshl_add_u32 v{vT}, v0, 4, v{vT}")
    k(f"v_add_u32 v{vT}, s50, v{vT}")
    k(f"v_bfe_u32 v{vT+1}, v0, 2, 2")
    k(f"v_lshlrev_b32 v{vT+1}, 6, v{vT+1}")
    k(f"v_lshl_add_u32 v{vT+1}, v{vQ}, 8, v{vT+1}")
    k(f"v_sub_u32 v{vT+2}, {576 + 992}, v{vT+1}")
    k(f"v_cndmask_b32 v{vT+1}, v{vT+2}, v{vT+1}, vcc")
    k(f"v_and_b32 v{vT+2}, 3, v0")
    k(f"v_lshl_add_u32 v{vT+1}, v{vT+2}, 3, v{vT+1}")
    k(f"v_add_u32 v{vT+1}, s50, v{vT+1}")
    k(f"v_mov_b32 v{vT+2}, -32")
    k(f"v_mov_b32 v{vT+3}, 32")
    k(f"v_cndmask_b32 v{vT+2}, v{vT+2}, v{vT+3}, vcc")
    k(f"v_add_u32 v{vT+2}, v{vT+1}, v{vT+2}")
    k("s_lshl_b32 s52, s51, 4")
    k("s_xor_b32 s53, s52, 16")
    k(f"v_mov_b32 v{vT+3}, s53")
    k(f"v_mov_b32 v{vT+4}, s52")
    k(f"v_cndmask_b32 v{vT+3}, v{vT+3}, v{vT+4}, vcc")
    k(f"v_and_b32 v{vT+4}, 31, v0")
    k(f"v_cmp_eq_u32 s[62:63], 31, v{vT+4}")
    for row in range(2):
        for part in range(2):
            raw = W + 16 + 8*row + 4*part
            tp = TP + 8*row + 4*part
            k(f"v_mov_b32_dpp v{vT+4}, v{raw} wave_shl:1 row_mask:0xf bank_mask:0xf")
            k(f"v_cndmask_b32 v{vT+4}, v{vT+4}, v{WX+2*row+part}, s[62:63]")
            for j in range(3):
                k(f"v_alignbit_b32 v{raw+j}, v{raw+j+1}, v{raw+j}, v{vT+3}")
            k(f"v_alignbit_b32 v{raw+3}, v{vT+4}, v{raw+3}, v{vT+3}")
            k(f"ds_write_b128 v{vT}, v[{raw}:{raw+3}]")
            k(f"ds_read_b64_tr_b16 v[{tp}:{tp+1}], v{vT+1}")
            k(f"ds_read_b64_tr_b16 v[{tp+2}:{tp+3}], v{vT+2}")
    k(f"v_mov_b32 v{vT+4}, 0x80008000")
    k(f"v_cndmask_b32 v{vT+4}, v{vT+4}, 0, vcc")
    k(f"v_mov_b32 v{vT+5}, 0xffff0000")
    k(f"v_mov_b32 v{vT+6}, 0x80000000")
    k(f"v_cndmask_b32 v{vT+6}, 0, v{vT+6}, vcc")
    for x in range(4):
        k(f"v_lshlrev_b32 v{WX+x}, s53, v{WX+x}")
        k(f"v_and_b32 v{WX+x}, v{vT+5}, v{WX+x}")
    for row in range(2):
        k(f"v_xor_b32 v{WX+2*row+1}, v{WX+2*row+1}, v{vT+6}")
    for row in range(2):
        k(f"s_waitcnt lgkmcnt({6 if row == 0 else 0})")
        for x in range(8):
            r = TP + 8*row + x
            k(f"v_mov_b32_dpp v{r}, v{r} row_mirror row_mask:0xc bank_mask:0xf")
        for x in range(4):
            r = TP + 8*row + 4 + x
            k(f"v_xor_b32 v{r}, v{r}, v{vT+4}")
        for part in range(2):
            for t in range(2):
                for h in range(2):
                    src = TP + 8*row + 4*part + 2*t + h
                    dst = W + 16*row + 8*t + 4*part + 2*h
                    k(f"v_lshlrev_b32 v{dst}, 16, v{src}")
                    k(f"v_and_b32 v{dst+1}, v{vT+5}, v{src}")
    k("s_mov_b32 exec_lo, 1")
    k("s_mov_b32 exec_hi, 1")
    for row in range(2):
        r = W + 16*row
        k(f"v_add_f32 v{r}, v{r}, v{WX+2*row}")
        k(f"v_add_f32 v{r+4}, v{r+4}, v{WX+2*row+1}")
        k(f"v_mul_f32 v{r}, 0.5, v{r}")
        k(f"v_mul_f32 v{r+4}, 0.5, v{r+4}")
    k("s_mov_b64 exec, -1")

def p1c(k, vm, s_s2, s_db, lb, after_const=None, after_x=None, after_mfma=None, in_mfma=None, sc1=True, cheb=True, gpearly=False, gplate=False, gwreg=False):
    SX, SG = SRD_A, SRD_B
    fl = " sc1" if sc1 else ""
    vT = 2
    vGW = 20
    vCB = 36
    vQ = 36
    vR = 68
    vAa = 84
    vXo = 86
    vPk, vRd, vSt, vGt, vS1 = 136, 137, 138, 139, 140
    ACC = 144
    vAng = 144
    vA = 176
    k.c("x DMA address")
    k(f"v_lshrrev_b32 v{vT}, 4, v0")
    k(f"v_lshlrev_b32 v{vT+1}, 2, v{vT}")
    k(f"v_and_b32 v{vT+2}, 15, v0")
    k(f"v_xor_b32 v{vT+1}, v{vT+1}, v{vT+2}")
    k(f"v_lshlrev_b32 v{vT+1}, 4, v{vT+1}")
    k(f"v_lshl_add_u32 v{vXo}, v{vT}, 14, v{vT+1}")
    k(f"s_lshl_b32 s50, {s_s2}, 10")
    k(f"s_lshl_b32 s51, {s_db}, 8")
    k(f"s_add_u32 s50, s50, s51")
    k(f"s_lshl_b32 s51, s3, 18")
    k(f"s_add_u32 s50, s50, s51")
    k(f"s_lshl_b32 s52, s3, 12")
    if lb: k(f"s_add_u32 s52, s52, {lb}")
    k.c("B constants, part 1")
    k("s_and_b32 s54, s3, 3")
    k("s_lshr_b32 s55, s3, 2")
    k(f"v_bfe_u32 v{vT}, v0, 1, 4")
    k("s_lshl_b32 s56, s54, 4")
    k(f"v_add_u32 v{vT}, s56, v{vT}")
    k(f"v_cvt_f32_u32 v{vT+1}, v{vT}")
    k(f"v_mul_f32 v{vT+2}, {fhex(1/128)}, v{vT+1}")
    k(f"v_cvt_f32_u32 v{vT+3}, {s_s2}")
    k(f"v_mul_f32 v{vT+3}, {fhex(1/2048)}, v{vT+3}")
    k(f"v_mul_f32 v{vT+3}, v{vT+3}, v{vT+1}")
    k(f"v_and_b32 v{vT+4}, 1, v0")
    k(f"v_cvt_f32_u32 v{vT+5}, v{vT+4}")
    k(f"v_fmac_f32 v{vT+3}, 0.25, v{vT+5}")
    k(f"v_lshl_or_b32 v{vT+6}, v{vT}, 1, v{vT+4}")
    k(f"v_cmp_eq_u32 vcc, 1, v{vT+6}")
    k(f"v_mov_b32 v{vT+7}, 0.5")
    k(f"v_cndmask_b32 v{vT+2}, v{vT+2}, v{vT+7}, vcc")
    k(f"v_mov_b32 v{vT+7}, 0")
    k(f"v_cndmask_b32 v{vT+3}, v{vT+3}, v{vT+7}, vcc")
    k(f"v_lshrrev_b32 v{vT+4}, 5, v0")
    k(f"v_lshlrev_b32 v{vT+4}, 3, v{vT+4}")
    k(f"v_cvt_f32_u32 v{vT+4}, v{vT+4}")
    k(f"v_fmac_f32 v{vT+3}, v{vT+4}, v{vT+2}")
    vD, vA0, vK = vT + 2, vT + 3, vT + 8
    for t in range(2):
        an = vAng + 8 * t
        for j in range(8):
            kk = 16 * t + j
            if kk == 0: k(f"v_mov_b32 v{an+j}, v{vA0}")
            else: k(f"{FM} v{an+j}, v{vD}, {fhex(float(kk))}, v{vA0}")
        for j in range(8): k(f"v_cos_f32 v{an+j}, v{an+j}")
    k(f"v_mul_f32 v{vK}, {fhex(16.0)}, v{vD}")
    k(f"v_cos_f32 v{vK}, v{vK}")
    k(f"v_add_f32 v{vK}, v{vK}, v{vK}")
    pro_wait(k)
    sn(k, "f_ka")
    k.srd(SX, S_PX, S_PX + 1, 2048 * 512 * 2)
    for i in range(4):
        k(f"s_add_u32 m0, s52, {i*1024}")
        k(f"s_add_u32 s53, s50, {i*4*16384}")
        if i == 0 and not gwreg:
            k.srd(SG, S_PGW, S_PGW + 1, 1024)
            k(f"s_lshl_b32 s51, {s_db}, 8")
            k(f"v_lshlrev_b32 v{vT+9}, 4, v0")
            k("s_mov_b64 exec, 0xffff")
            k(f"s_mov_b32 m0, {GWB}")
            vm.issue(f"buffer_load_dwordx4 v{vT+9}, s[{SG}:{SG+3}], s51 offen lds", "x")
            k("s_mov_b64 exec, -1")
            k(f"s_add_u32 m0, s52, {i*1024}")
        vm.issue(f"buffer_load_dwordx4 v{vXo}, s[{SX}:{SX+3}], s53 offen lds", "x")
    if gwreg:
        k.c("gate weights straight into registers (lane&3 selects 32 of the 128 columns)")
        k.srd(SG, S_PGW, S_PGW + 1, 1024)
        k(f"s_lshl_b32 s51, {s_db}, 8")
        k(f"v_and_b32 v{vT+9}, 3, v0")
        k(f"v_lshlrev_b32 v{vT+9}, 6, v{vT+9}")
        for e in range(4):
            vm.issue(f"buffer_load_dwordx4 v[{vGW+4*e}:{vGW+4*e+3}], v{vT+9}, s[{SG}:{SG+3}], s51 offen offset:{16*e}", "gw")
    sn(k, "f_iss")
    k.c("B constants, part 2: c[t] = K c[t-1] - c[t-2]")
    for t in range(8):
        an = vAng + 8 * (t & 1); ap = vAng + 8 * ((t + 1) & 1)
        if t >= 2:
            for j in range(8): k(f"v_fma_f32 v{an+j}, v{vK}, v{ap+j}, -v{an+j}")
        for j in range(4): k(f"v_cvt_pk_bf16_f32 v{vCB+4*t+j}, v{an+2*j}, v{an+2*j+1}")
    sn(k, "f_c2")
    if after_const: after_const()
    sn(k, "f_wr")
    k.c("A frag addresses")
    k(f"v_bfe_u32 v{vT}, v0, 2, 2")
    k(f"v_lshrrev_b32 v{vT+1}, 5, v0")
    k(f"v_lshl_add_u32 v{vT+1}, v{vT+1}, 3, v{vT}")
    k(f"v_lshlrev_b32 v{vT+1}, 8, v{vT+1}")
    k(f"v_bfe_u32 v{vT+4}, v0, 4, 1")
    k(f"v_bfe_u32 v{vT+5}, v0, 1, 1")
    k(f"v_lshl_add_u32 v{vT+4}, v{vT+4}, 1, v{vT+5}")
    k(f"v_and_b32 v{vT+5}, 1, v0")
    k(f"v_lshl_add_u32 v{vT+1}, v{vT+5}, 3, v{vT+1}")
    if lb: k(f"v_add_u32 v{vT+1}, {lb}, v{vT+1}")
    for e in range(2):
        k(f"s_lshl_b32 s58, s55, 1")
        k(f"s_add_u32 s58, s58, {e}")
        k(f"v_xor_b32 v{vT+6}, s58, v{vT}")
        k(f"v_lshl_add_u32 v{vT+6}, v{vT+6}, 2, v{vT+4}")
        k(f"v_lshl_add_u32 v{vAa+e}, v{vT+6}, 4, v{vT+1}")
    k.c("tail addresses")
    k(f"v_and_b32 v{vT}, 31, v0")
    k(f"s_lshl_b32 s58, s54, 5")
    k(f"v_add_u32 v{vT}, s58, v{vT}")
    k(f"v_mul_u32_u24 v{vT}, 272, v{vT}")
    k(f"v_lshrrev_b32 v{vT+1}, 5, v0")
    k(f"v_lshl_add_u32 v{vT}, v{vT+1}, 4, v{vT}")
    k(f"s_lshl_b32 s58, s55, 7")
    k(f"s_add_u32 s58, s58, {32768+lb}")
    k(f"v_add_u32 v{vPk}, s58, v{vT}")
    k(f"v_lshrrev_b32 v{vT}, 4, v0")
    k(f"s_lshl_b32 s58, s3, 4")
    k(f"v_add_u32 v{vT+1}, s58, v{vT}")
    k(f"v_mul_u32_u24 v{vT+1}, 272, v{vT+1}")
    k(f"v_and_b32 v{vT+2}, 15, v0")
    k(f"v_lshl_add_u32 v{vT+1}, v{vT+2}, 4, v{vT+1}")
    k(f"v_add_u32 v{vRd}, {32768+lb}, v{vT+1}")
    k(f"v_lshrrev_b32 v{vT+3}, 1, v{vT}")
    k(f"v_lshlrev_b32 v{vT+3}, 15, v{vT+3}")
    k(f"v_and_b32 v{vT+4}, 1, v{vT}")
    k(f"v_lshl_add_u32 v{vT+3}, v{vT+4}, 10, v{vT+3}")
    k(f"v_lshl_add_u32 v{vSt}, v{vT+2}, 4, v{vT+3}")
    k(f"v_lshrrev_b32 v{vT+5}, 2, v0")
    k(f"s_lshl_b32 s59, s3, 4")
    k(f"v_add_u32 v{vT+5}, s59, v{vT+5}")
    k(f"v_and_b32 v{vT+6}, 3, v0")
    k(f"v_and_b32 v{vT+7}, 3, v{vT+5}")
    k(f"v_xor_b32 v{vT+6}, v{vT+6}, v{vT+7}")
    k(f"v_lshlrev_b32 v{vT+6}, 6, v{vT+6}")
    k(f"v_lshl_add_u32 v{vGt}, v{vT+5}, 8, v{vT+6}")
    if lb: k(f"v_add_u32 v{vGt}, {lb}, v{vGt}")
    k(f"v_lshlrev_b32 v{vS1}, 2, v{vT+5}")
    k(f"s_lshl_b32 s58, s3, 18")
    k(f"s_lshl_b32 s59, {s_s2}, 11")
    k(f"s_add_u32 s58, s58, s59")
    k(f"s_lshl_b32 s59, {s_db}, 8")
    k(f"s_add_u32 s58, s58, s59")
    k(f"s_add_u32 s58, s58, {R_OFF}")
    k(f"s_lshl_b32 s57, {s_db}, 4")
    k(f"s_add_u32 s57, s57, {s_s2}")
    k(f"s_lshl_b32 s57, s57, 9")
    k(f"s_add_u32 s57, s57, {GP_OFF}")
    sn(k, "f_const")
    k(f"v_and_b32 v{vT}, 3, v0")
    k(f"v_lshlrev_b32 v{vT}, 6, v{vT}")
    k(f"v_add_u32 v{vT}, {GWB}, v{vT}")
    vm.wait("x")
    k("s_barrier")
    sn(k, "f_x")
    if after_x: after_x()
    sn(k, "f_wr2")
    def rd(t):
        for e in range(2):
            for h in range(2):
                r = vA + e*32 + t*4 + h*2
                k(f"ds_read_b64_tr_b16 v[{r}:{r+1}], v{vAa+e} offset:{t*4096 + h*1024}")
    def mf(t):
        for e in range(2):
            c = "0" if t == 0 else f"v[{ACC+16*e}:{ACC+16*e+15}]"
            k(f"v_mfma_f32_32x32x16_bf16 v[{ACC+16*e}:{ACC+16*e+15}], v[{vA+e*32+t*4}:{vA+e*32+t*4+3}], v[{vCB+4*t}:{vCB+4*t+3}], {c}")
    rd(0); rd(1); rd(2)
    for t in range(8):
        if t + 3 < 8:
            k("s_waitcnt lgkmcnt(8)"); mf(t); rd(t + 3)
        else:
            k(f"s_waitcnt lgkmcnt({4*(7-t)})"); mf(t)
        if in_mfma and t in in_mfma: in_mfma[t]()
    k.c("gate partial (x tile still in LDS); overlaps the last MFMAs")
    def gate_reads():
        for e in range(4):
            k(f"ds_read_b128 v[{vA+4*e}:{vA+4*e+3}], v{vGt} offset:{16*e}")
            if not gwreg: k(f"ds_read_b128 v[{vGW+4*e}:{vGW+4*e+3}], v{vT} offset:{16*e}")
    if not gplate: gate_reads()
    if gwreg: vm.wait("gw")
    if after_mfma: after_mfma()
    sn(k, "f_mf")
    k.c("pack, transpose through LDS; gate partial interleaved")
    pk = []
    for e in range(2):
        for g in range(4):
            for h in range(2):
                pk.append(f"v_cvt_pk_bf16_f32 v{vQ+e*8+g*2+h}, v{ACC+16*e+4*g+2*h}, v{ACC+16*e+4*g+2*h+1}")
        for pr in range(2):
            q = vQ + e*8 + pr*4
            pk.append(f"v_permlane32_swap_b32 v{q}, v{q+2}")
            pk.append(f"v_permlane32_swap_b32 v{q+1}, v{q+3}")
            pk.append(f"ds_write_b128 v{vPk}, v[{q}:{q+3}] offset:{e*64 + pr*32}")
    if gpearly:
        n1 = len(pk) // 2
        for x in pk[:n1]: k(x)
        k("s_waitcnt lgkmcnt(2)")
        dots = [f"v_mov_b32 v{vT+7}, 0", f"v_mov_b32 v{vT+6}, 0"]
        dots += [f"v_dot2_f32_bf16 v{vT+6+(e&1)}, v{vA+e}, v{vGW+e}, v{vT+6+(e&1)}" for e in range(16)]
        for x in interleave(dots, pk[n1:]): k(x)
        k(f"v_add_f32 v{vT+7}, v{vT+7}, v{vT+6}")
        k(f"v_add_f32_dpp v{vT+7}, v{vT+7}, v{vT+7} quad_perm:[1,0,3,2] row_mask:0xf bank_mask:0xf")
        k(f"v_add_f32_dpp v{vT+7}, v{vT+7}, v{vT+7} quad_perm:[2,3,0,1] row_mask:0xf bank_mask:0xf")
        k(f"s_mov_b32 exec_lo, 0x11111111")
        k(f"s_mov_b32 exec_hi, 0x11111111")
        vm.issue(f"buffer_store_dword v{vT+7}, v{vS1}, s[{SRD_WS}:{SRD_WS+3}], s57 offen{fl}", "gp")
        k("s_mov_b64 exec, -1")
    else:
        for x in pk: k(x)
    sn(k, "f_pk")
    k("s_waitcnt lgkmcnt(0)")
    sn(k, "f_pkw")
    k("s_barrier")
    sn(k, "f_pkb")
    for i in range(4):
        k(f"ds_read_b128 v[{vR+4*i}:{vR+4*i+3}], v{vRd} offset:{i*4*272}")
    for i in range(4):
        k(f"s_waitcnt lgkmcnt({3-i})")
        k(f"s_add_u32 s59, s58, {i*2*32768}")
        vm.issue(f"buffer_store_dwordx4 v[{vR+4*i}:{vR+4*i+3}], v{vSt}, s[{SRD_WS}:{SRD_WS+3}], s59 offen{fl}", "Rst")
    sn(k, "f_rst")
    if gpearly: return
    if gplate:
        k(f"v_and_b32 v{vT}, 3, v0")
        k(f"v_lshlrev_b32 v{vT}, 6, v{vT}")
        k(f"v_add_u32 v{vT}, {GWB}, v{vT}")
        gate_reads()
        k("s_waitcnt lgkmcnt(0)")
    k(f"v_mov_b32 v{vT+7}, 0")
    for e in range(16):
        k(f"v_dot2_f32_bf16 v{vT+7}, v{vA+e}, v{vGW+e}, v{vT+7}")
    k(f"v_add_f32_dpp v{vT+7}, v{vT+7}, v{vT+7} quad_perm:[1,0,3,2] row_mask:0xf bank_mask:0xf")
    k(f"v_add_f32_dpp v{vT+7}, v{vT+7}, v{vT+7} quad_perm:[2,3,0,1] row_mask:0xf bank_mask:0xf")
    k(f"v_and_b32 v{vT+6}, 3, v0")
    k(f"v_cmp_eq_u32 vcc, 0, v{vT+6}")
    k("s_and_saveexec_b64 s[60:61], vcc")
    vm.issue(f"buffer_store_dword v{vT+7}, v{vS1}, s[{SRD_WS}:{SRD_WS+3}], s57 offen{fl}", "gp")
    k("s_mov_b64 exec, s[60:61]")
```

```python
import roles, roles2, sys
from roles2 import *
from roles3 import *
import roles3
from fused import (NAME, RF_OFF, TF_OFF, HF_OFF, SRD_DBG, NL, NH, VS, SPIN, FB, wave0, nonce_publish, nonce_issue, nonce_check,
                   flag_store, poll, poll2, poll3, dbg_stamps)

def wave0not(k):
    L = k.newlabel("w0only")
    k("s_cmp_eq_u32 s3, 0")
    k(f"s_cbranch_scc1 {L}")
    return L

def build(fn, stmap=None, dbg=False, rot=4, g1=None, opts=(), dbrot=0, esched=((0,1,2),(3,4),(),()), w56=False, nshadow=3, pos=(3, 6, 9), fiss_at='A', fchk_at='W', tpre=9, tail4=0, rot_j=0, p1x=0, dbmap=(), ppr=None, ppt=None, t3m=False, slp=(0,0,0), pm=(False, False), tperm=False, hthr=0, rw=None, rcopy=8, tcopy=32):
    RFO = RF_OFF if rcopy == 8 else 0xC80000
    TFO = TF_OFF if tcopy == 32 else 0xC40000
    nearly = sum(len(e) for e in esched)
    st = stmap is not None
    roles2.STMAP.clear()
    if st: roles2.STMAP.update(stmap)
    k = K()
    k("s_cmp_ge_u32 s2, 256")
    k("s_cbranch_scc1 L_end")
    if rot_j:
        k("s_lshr_b32 s100, s2, 3")
        k(f"s_add_u32 s100, s100, {rot_j}")
        k("s_and_b32 s100, s100, 31")
        k("s_lshl_b32 s100, s100, 3")
        k("s_and_b32 s2, s2, 7")
        k("s_or_b32 s2, s2, s100")
    if st: stamps_clear(k); stamp(k, 0)
    pro_issue(k)
    k("s_and_b32 s72, s2, 7")
    k("s_lshr_b32 s73, s2, 3")
    k(f"s_add_u32 s76, s73, {dbrot}")
    k("s_and_b32 s76, s76, 7")
    for jj, dd in dbmap:
        k(f"s_cmp_eq_u32 s73, {jj}")
        k(f"s_cselect_b32 s76, {dd}, s76")
    k("s_lshr_b32 s74, s73, 3")
    k("s_lshl_b32 s75, s72, 2")
    k("s_add_u32 s75, s75, s74")
    k("s_lshr_b32 s74, s75, 1")
    k("s_and_b32 s75, s75, 1")
    R = fin_regs()
    fin_setup_pre(k, "s76", R, 232)
    k("s_cmp_ge_u32 s73, 22")
    k("s_cbranch_scc1 L_notg1")
    k("s_and_b32 s70, s73, 1")
    k("s_lshl_b32 s71, s72, 1")
    k("s_add_u32 s70, s70, s71")
    k("s_lshr_b32 s71, s73, 1")
    vm = VM(k)
    def post():
        fin_srd(k)
        k.srd(SRD_DBG, S_PDBG, S_PDBG + 1, 256)
        nonce_publish(k)
    left = gemm1b(k, "s70", "s71", R, vm, rot=rot, post_issue=post, pre_epi=lambda: nonce_issue(k), defer=("g1defer" in opts), **(g1 or {}))
    sn(k, "st1")
    nlate = 0
    if "g1defer" in opts and "g1post" not in opts:
        for pr in left:
            for j in pr:
                for ii in range(2): w2_piece(k, vm, R, j, ii); nlate += 1
    final_addr(k, "s74", "s75", "s76", R)
    final_small_loads(k, vm, "s74", R)
    k(f"s_waitcnt vmcnt({nlate + 1 if 'g1defer' in opts else 0})")
    k("s_barrier")
    L = wave0(k)
    nonce_check(k)
    def a():
        k("s_lshl_b32 s48, s70, 9")
        k("s_lshl_b32 s49, s71, 3")
        k("s_add_u32 s48, s48, s49")
        k(f"s_add_u32 s48, s48, {HF_OFF}")
        k(f"v_lshl_add_u32 v{VS}, v0, 8, s48")
    flag_store(k, 2, a)
    k.label(L)
    sn(k, "st2")
    if "g1post" in opts:
        for pr in left:
            for j in pr:
                for ii in range(2): w2_piece(k, vm, R, j, ii)
    for j in (4, 5):
        for ii in range(2): w2_piece(k, vm, R, j, ii)
    k("s_branch L_final")
    k.label("L_notg1")
    k("s_cmp_ge_u32 s73, 30")
    k("s_cbranch_scc1 L_nop1")
    k("s_sub_u32 s77, s73, 22")
    k("s_and_b32 s70, s77, 1")
    k("s_lshl_b32 s71, s72, 1")
    k("s_add_u32 s70, s70, s71")
    k("s_lshr_b32 s71, s77, 1")
    if p1x: k(f"s_xor_b32 s71, s71, {p1x}")
    k("s_lshl_b32 s77, s77, 3")
    k("s_add_u32 s77, s77, s72")
    roles.P2_PITCH = 1032; roles.P2_E1 = FB; roles.P2_SLAB = FB + 32768; roles.P2_E2 = FB + 32768
    R2 = p2_regs3(); R2["srdw"] = (SRD_C, SRD_D)
    vm = VM(k)
    p2_nq(k, R2)
    def wshuf():
        if "ws3" in opts: w_shuffle3(k, R2, "s77", 148, 2)
        elif "ws2" in opts: w_shuffle2(k, R2, "s77", 148, 2)
        else: w_shuffle(k, R2, "s77", 87, 2)
    def wraw(vm):
        if "ws3" in opts: w_raw3(k, vm, "s77", R2, 4)
        else: w_raw_load(k, vm, "s77", R2, 4)
    def ai():
        p2_wsrd(k, R2)
        p2_wload_row(k, vm, "s77", R2, 0, 88, 4)
        k.srd(SRD_DBG, S_PDBG, S_PDBG + 1, 256)
    def am():
        if "rflag" not in opts and "wlate" not in opts: p2_wload_row(k, vm, "s77", R2, 1, 88, 4)
        k(f"v_mov_b32 v{VS}, 0")
        k(f"buffer_load_dwordx2 v[{VS+2}:{VS+3}], v{VS}, s[{SRD_DBG}:{SRD_DBG+3}], 0 offen")
    if "p1c" in opts:
        def ac():
            p2_wsrd(k, R2)
            k.srd(SRD_DBG, S_PDBG, S_PDBG + 1, 256)
            if "wrc" in opts: wraw(vm)
            if "wtouch" in opts:
                k("v_mov_b32 v12, 0")
                k("s_mov_b64 exec, 1")
                vm.issue(f"buffer_load_ushort v13, v12, s[{SRD_C}:{SRD_C+3}], 0 offen", "tch")
                vm.issue(f"buffer_load_ushort v14, v12, s[{SRD_D}:{SRD_D+3}], 0 offen", "tch")
                if "wtouch2" in opts:
                    for n_, off in enumerate((R_OFF, GP_OFF, RF_OFF, T3_OFF)):
                        k(f"s_mov_b32 s53, {off}")
                        vm.issue(f"buffer_load_dword v15, v12, s[{SRD_WS}:{SRD_WS+3}], s53 offen", "tch")
                k("s_mov_b64 exec, -1")
        def ax():
            if "wrc" not in opts and "wrm" not in opts and "v3" not in opts: wraw(vm)
        inm = None
        if "wrm" in opts:
            wa, wp = (w_raw3_parts if "ws3" in opts else w_raw_parts)(k, vm, "s77", R2)
            ac0 = ac
            def ac():
                ac0(); wa()
            inm = {0: wp[0], 2: wp[1], 4: wp[2], 6: wp[3]}
        p1c(k, vm, "s70", "s71", FB, after_const=ac, after_x=ax, after_mfma=am, in_mfma=inm, gpearly=("v3" in opts), gwreg=("gwreg" in opts))
    else:
        p1b(k, vm, "s70", "s71", FB, after_issue=ai, after_mfma=am)
    sn(k, "st1")
    if "v3" in opts:
        if "v1" not in opts:
            if "wrm" not in opts: wraw(vm)
            fin_srd(k)
        sn(k, "f_wiss")
        vm.wait("Rst")
        sn(k, "f_wait")
    elif "p1c" in opts:
        fin_srd(k)
        if "wsl" not in opts:
            vm.wait("Wr")
            wshuf()
        sn(k, "f_wiss")
        vm.wait("gp")
        sn(k, "f_wait")
    elif "wlate" in opts:
        p2_consts(k, "s77", R2)
        p2_addr3(k, "s77", R2)
        sn(k, "f_p2c")
        vm.wait("gp")
        sn(k, "f_wait")
    elif "rflag" in opts:
        p2_wload_row(k, vm, "s77", R2, 1, 88, 4)
        fin_srd(k)
        if "c_pre" in opts: p2_addr3(k, "s77", R2)
        sn(k, "f_wiss")
        vm.wait("gp")
        sn(k, "f_wait")
    else:
        fin_srd(k)
        p2_consts(k, "s77", R2)
        p2_addr3(k, "s77", R2)
        sn(k, "f_p2c")
        k("s_waitcnt vmcnt(0)")
        sn(k, "f_wait")
    k("s_barrier")
    sn(k, "f_bar")
    nonce_check(k)
    L = k.newlabel("w0skip"); L2_ = k.newlabel("w0j")
    k("s_cmp_lg_u32 s3, 0")
    k(f"s_cbranch_scc1 {L}")
    def a():
        k("s_lshl_b32 s48, s70, 2")
        k("s_add_u32 s48, s48, s71")
        k("s_lshl_b32 s48, s48, 3")
        k(f"s_add_u32 s48, s48, {RF_OFF}")
        k(f"v_lshl_add_u32 v{VS}, v0, 10, s48")
        k("s_lshl_b32 s48, s70, 9")
        k("s_lshl_b32 s49, s71, 3")
        k("s_add_u32 s48, s48, s49")
        k(f"s_add_u32 s48, s48, {HF_OFF + 88 - 8*256}")
        k(f"v_lshl_add_u32 v{VS+1}, v0, 8, s48")
        k("v_cmp_gt_u32 vcc, 8, v0")
        k(f"v_cndmask_b32 v{VS}, v{VS+1}, v{VS}, vcc")
    def a64():
        k("s_lshl_b32 s48, s70, 2")
        k("s_add_u32 s48, s48, s71")
        k("s_lshl_b32 s48, s48, 3")
        k(f"s_add_u32 s48, s48, {RFO}")
        k(f"v_lshl_add_u32 v{VS}, v0, 10, s48")
    def ahf():
        k("s_lshl_b32 s48, s70, 9")
        k("s_lshl_b32 s49, s71, 3")
        k("s_add_u32 s48, s48, s49")
        k(f"s_add_u32 s48, s48, {HF_OFF + 88}")
        k(f"v_lshl_add_u32 v{VS}, v0, 8, s48")
    if rcopy == 8: flag_store(k, 10, a)
    else:
        flag_store(k, rcopy, a64)
        flag_store(k, 2, ahf)
    if "v1" in opts:
        wraw(VM(k))
        fin_srd(k)
    if "wlate" in opts:
        p2_wload_row(k, VM(k), "s77", R2, 1, 148, 4)
        fin_srd(k)
    k(f"s_branch {L2_}")
    k.label(L)
    if "v1" in opts:
        wraw(VM(k))
        fin_srd(k)
    if "wlate" in opts:
        p2_wload_row(k, VM(k), "s77", R2, 1, 148, 4)
        fin_srd(k)
    if "w2early" in opts:
        for j in range(5):
            for ii in range(2): w2_piece(k, VM(k), R, j, ii)
    k.label(L2_)
    sn(k, "st2")
    if "rflag" in opts and "cshare" not in opts:
        p2_consts(k, "s77", R2)
        if "c_pre" not in opts: p2_addr3(k, "s77", R2)
        sn(k, "f_p2c")
        L = k.newlabel("ww"); L2_ = k.newlabel("wwj")
        k("s_cmp_lg_u32 s3, 0")
        k(f"s_cbranch_scc1 {L}")
        k("s_waitcnt vmcnt(1)")
        k(f"s_branch {L2_}")
        k.label(L)
        k(f"s_waitcnt vmcnt({10 if 'w2early' in opts else 0})")
        k.label(L2_)
    k("s_branch L_p2")
    k.label("L_nop1")
    k("s_sub_u32 s50, s2, 240")
    k("s_mul_i32 s50, s50, 688")
    k("s_lshl_b32 s51, s3, 6")
    k("s_add_u32 s50, s50, s51")
    k("v_add_u32 v2, s50, v0")
    k("v_lshlrev_b32 v2, 7, v2")
    pro_wait(k)
    if "touch" in opts:
        fin_srd(k)
        k(f"buffer_load_dword v241, v2, s[{SRD_C}:{SRD_C+3}], 0 offen")
        L = k.newlabel("t2")
        k("s_cmp_ge_u32 s3, 3")
        k(f"s_cbranch_scc1 {L}")
        k("v_add_u32 v2, 0x10000, v2")
        k(f"buffer_load_dword v242, v2, s[{SRD_C}:{SRD_C+3}], 0 offen")
        k.label(L)
    k.srd(SRD_DBG, S_PDBG, S_PDBG + 1, 256)
    k("s_cmp_lg_u32 s2, 240")
    k("s_cbranch_scc1 L_idle")
    k("s_mov_b32 s77, 64")
    vm = VM(k)
    p2_nq(k, R2)
    p2_wsrd(k, R2)
    if "p1c" in opts:
        wraw(vm)
        fin_srd(k)
        nonce_check(k, issued=False)
        k("s_waitcnt vmcnt(0)")
        if "wsl" not in opts and "v3" not in opts: wshuf()
    else:
        p2_wload_row(k, vm, "s77", R2, 0, 148, 4)
        if "cshare" not in opts: p2_consts(k, "s77", R2)
        p2_wload_row(k, vm, "s77", R2, 1, 148, 4)
        if "cshare" not in opts: p2_addr3(k, "s77", R2)
        fin_srd(k)
        nonce_check(k, issued=False)
        k("s_waitcnt vmcnt(0)")
    if "w2early" in opts:
        L = wave0not(k)
        for j in range(5):
            for ii in range(2): w2_piece(k, VM(k), R, j, ii)
        k.label(L)
    k.label("L_p2")
    vm = VM(k)
    if "cshare" in opts:
        if "wsl" in opts: wshuf()
        p2_addr3(k, "s77", R2)
        p2_consts_share(k, "s77", R2, FB)
        if "v3" in opts and "v1" not in opts:
            L = wave0not(k)
            k("s_waitcnt vmcnt(10)")
            wshuf()
            k.label(L)
        k("s_waitcnt lgkmcnt(0)")
        sn(k, "f_p2c")
    elif "wlate" not in opts: p2_wfix(k, R2)
    def so():
        if rcopy == 8: k("s_lshl_b32 s49, s72, 10")
        else:
            k(f"s_and_b32 s49, s77, {rcopy-1}")
            k("s_lshl_b32 s49, s49, 10")
        k(f"s_add_u32 s49, s49, {RFO}")
    if rw is not None:
        assert "cshare" in opts and "v3" in opts and "p1c" in opts
        k("s_barrier")
        p2_consts_read(k, R2, FB)
        L = wave0(k)
        wshuf()
        k.label(L)
        k("s_waitcnt lgkmcnt(0)")
        def sow():
            so()
            k("s_lshl_b32 s50, s3, 6")
            k("s_add_u32 s49, s49, s50")
        poll(k, 8, sow, slp=rw, allw=True)
        sn(k, "st3")
        p2_slab_dma(k, "s77", R2)
    else:
        if "wsh0" in opts:
            L = wave0(k)
            wshuf()
            k.label(L)
            if "wsh1" in opts:
                k("s_waitcnt lgkmcnt(0)")
                k("s_barrier")
                p2_consts_read(k, R2, FB)
                k("s_waitcnt lgkmcnt(0)")
        if "apre" in opts: p2_slab_dma(k, "s77", R2, part="pre")
        if ppr: poll2(k, 64, so, (244, 246, 252)[:ppr[0]], stag=ppr[1])
        elif pm[0]: poll3(k, so, slp[0])
        else: poll(k, 64, so, slp=slp[0])
        sn(k, "st3")
        p2_slab_dma(k, "s77", R2, part=("issue" if "apre" in opts else None))
        if "cshare" in opts:
            if "wsh1" not in opts: p2_consts_read(k, R2, FB)
            if "v1" in opts:
                k("s_waitcnt vmcnt(14)")
                wshuf()
            elif "v3" in opts and "wsh0" not in opts:
                L = wave0(k)
                wshuf()
                k.label(L)
        if "cshare" in opts:
            if "p1c" not in opts:
                k("s_waitcnt vmcnt(4)")
                p2_wfix(k, R2)
            k("s_waitcnt lgkmcnt(0)")
    if "wlate" in opts:
        k("s_waitcnt vmcnt(4)")
        p2_wfix(k, R2)
    if "w2early" in opts:
        k("s_waitcnt vmcnt(0)")
    else:
        for j in range(5):
            for ii in range(2): w2_piece(k, vm, R, j, ii)
        k("s_waitcnt vmcnt(10)")
    k("s_barrier")
    sn(k, "p_slab")
    V = {}
    RF = dict(R)
    if nearly > 5: RF['hmap'] = {5: 212, 6: 220}
    def fiss():
        k("s_lshl_b32 s61, s74, 1")
        k("s_add_u32 s61, s61, s75")
        k("s_lshl_b32 s61, s61, 8")
        k(f"s_add_u32 s61, s61, {HF_OFF}")
        flags_issue(k, 15, "s61")
    def fchk():
        sn(k, "p_hw")
        flags_check(k, "s61", "s60")
        sn(k, "p_hfl")
        V["vm"] = VM(k)
        k(f"v_lshlrev_b32 v{R['h']}, 4, v0")
        h_base(k, "s74", "s75")
    def hook(name, idx):
        def f():
            if name == "A" and "w2early" in opts:
                L = wave0(k)
                for j in range(5):
                    for ii in range(2): w2_piece(k, VM(k), R, j, ii)
                k.label(L)
            if fchk_at == name: fchk()
            if fiss_at == name: fiss()
            if idx is not None:
                assert not esched[idx] or "vm" in V
                for j in esched[idx]: h_load(k, V["vm"], RF, j)
            if name == "B": final_addr(k, "s74", "s75", "s76", R)
        return f
    hA, hW, hW2, hW3, hB = hook("A", None), hook("W", 0), hook("W2", 1), hook("W3", 2), hook("B", 3)
    def hC():
        final_gp_loads(k, V["vm"], "s74", R, sc1=False)
        if len(esched) > 4:
            for j in esched[4]: h_load(k, V["vm"], RF, j)
        if w56:
            for j in (5, 6):
                for ii in range(2): w2_piece(k, V["vm"], R, j, ii)
    p2_main3(k, "s77", R2, lambda: V["vm"], dict(A=hA, W=hW, W2=hW2, W3=hW3, B=hB, C=hC, V=lambda: k("s_barrier")))
    sn(k, "st4")
    vm = V["vm"]
    def w2l(j):
        for ii in range(2): w2_piece(k, vm, R, j, ii)
    def w10():
        k("s_cmp_eq_u32 s65, 3")
        k(f"s_mov_b32 s71, {10*32768}")
        k(f"s_cselect_b32 s71, {9*32768}, s71")
        for ii in range(2):
            k(f"s_add_u32 m0, s68, {ii*1024}")
            k(f"s_add_u32 s67, s66, s71")
            if ii: k("s_add_u32 s67, s67, 8192")
            vm.issue(f"buffer_load_dwordx4 v{R['dma']}, s[{SRD_C}:{SRD_C+3}], s67 offen lds", "w2_10")
    items = []
    if not w56: items += [lambda: (w2l(5), w2l(6))]
    for j in range(nearly, 7): items.append(lambda j=j: h_load(k, vm, RF, j))
    for j in (7, 8, 9): items.append(lambda j=j: (w2l(j), h_load(k, vm, RF, j)))
    n_late = len(items) - min(len(items), nshadow)
    pre = items[:len(items) - n_late]; post = items[len(items) - n_late:]
    def tflag():
        vm.wait("t3st")
        if "w2_6" in vm.q: vm.wait("w2_6")
        k("s_barrier")
        L = wave0(k)
        def a():
            if tperm:
                k("s_and_b32 s48, s77, 7")
                k("s_lshl_b32 s48, s48, 3")
                k("s_bfe_u32 s49, s77, 0x30003")
                k("s_or_b32 s48, s48, s49")
                k("s_and_b32 s49, s77, 64")
                k("s_or_b32 s48, s48, s49")
                k("s_lshl_b32 s48, s48, 3")
            else:
                k("s_lshl_b32 s48, s77, 3")
            k(f"s_add_u32 s48, s48, {TFO}")
            k(f"v_lshl_add_u32 v{VS}, v0, 10, s48")
        flag_store(k, tcopy, a)
        k.label(L)
        sn(k, "f_tfl")
    if tail4:
        assert not pre or nshadow == 0
        vm.wait("gp")
        final_gate(k, R)
        sn(k, "f_gate")
        gemm2_run(k, vm, RF, gseq(RF, range(0, 5)), True)
        sn(k, "f_g04")
        vm.wait("t3st")
        k("s_barrier")
        def late(v):
            nonlocal vm
            vm0 = vm; vm = v
            for f in items: f()
            h_load(k, vm, RF, 10); w10(); final_small_loads(k, vm, "s74", R)
            vm = vm0
        import copy
        Lo, Lj = k.newlabel("t4o"), k.newlabel("t4j")
        k("s_cmp_lg_u32 s3, 0")
        k(f"s_cbranch_scc1 {Lo}")
        v0 = VM(k); v0.q = list(vm.q); v0.seen = set(vm.seen)
        late(v0)
        def a():
            k("s_lshl_b32 s48, s77, 3")
            k(f"s_add_u32 s48, s48, {TF_OFF}")
            k(f"v_lshl_add_u32 v{VS}, v0, 10, s48")
        flag_store(k, 32, a)
        v0.q.append("fl")
        sn(k, "f_tfl")
        gemm2_run(k, v0, RF, gseq(RF, (5, 6)), False)
        k(f"s_branch {Lj}")
        k.label(Lo)
        v1 = VM(k); v1.q = list(vm.q); v1.seen = set(vm.seen)
        if tail4 == 1:
            gemm2_run(k, v1, RF, gseq(RF, (5,)), False)
            late(v1)
        else:
            late(v1)
            gemm2_run(k, v1, RF, gseq(RF, (5,)), False)
        k(f"v_mov_b32 v{VS}, 0")
        k("s_mov_b64 exec, 1")
        v1.issue(f"buffer_load_dword v{VS+2}, v{VS}, s[{SRD_WS}:{SRD_WS+3}], 0 offen", "fl")
        k("s_mov_b64 exec, -1")
        gemm2_run(k, v1, RF, gseq(RF, (6,)), False)
        k.label(Lj)
        assert v0.q == v1.q, (v0.q, v1.q)
        vm.q = list(v1.q); vm.seen = set(v1.seen) | set(v0.seen)
        sn(k, "f_g56")
        for grp in ((7,), (8, 9)) if tail4 < 3 else ((7, 8, 9),):
            vm.wait(f"w2_{grp[-1]}")
            k("s_barrier")
            gemm2_run(k, vm, RF, gseq(RF, grp), False)
        sn(k, "st5")
        k("s_branch L_t3")
    if tpre == -2: tflag()
    vm.wait("gp")
    final_gate(k, R)
    sn(k, "f_gate")
    if tpre == -1: tflag()
    aft = {}
    for n_, f in enumerate(pre): aft[pos[n_]] = f
    if 0 <= tpre < 9:
        f0 = aft.get(tpre)
        def both():
            tflag()
            if f0: f0()
        aft[tpre] = both
    gemm2_run(k, vm, RF, gseq(RF, range(0, 5)), True, after=aft)
    sn(k, "f_g04")
    if tpre >= 9: tflag()
    for f in post: f()
    h_load(k, vm, RF, 10); w10(); final_small_loads(k, vm, "s74", R)
    gemm2_run(k, vm, RF, gseq(RF, (5, 6)), False)
    sn(k, "f_g56")
    if nshadow >= len(items):
        vm.wait("w2_9")
        k("s_barrier")
        gemm2_run(k, vm, RF, gseq(RF, (7, 8, 9)), False)
    else:
        for j in (7, 8, 9):
            vm.wait(f"w2_{j}")
            k("s_barrier")
            gemm2_run(k, vm, RF, gseq(RF, (j,)), False)
    sn(k, "st5")
    k("s_branch L_t3")
    k.label("L_idle")
    fin_srd(k)
    L = wave0(k)
    nonce_check(k, issued=False)
    k.label(L)
    vm = VM(k)
    for j in range(10):
        for ii in range(2): w2_piece(k, vm, R, j, ii)
    final_addr(k, "s74", "s75", "s76", R)
    final_small_loads(k, vm, "s74", R)
    k.label("L_final")
    vm = VM(k)
    for j in range(10): vm.q.append(f"w2_{j}"); vm.seen.add(f"w2_{j}")
    def so():
        k("s_lshl_b32 s49, s74, 1")
        k("s_add_u32 s49, s49, s75")
        k("s_lshl_b32 s49, s49, 8")
        k(f"s_add_u32 s49, s49, {HF_OFF}")
    poll(k, 15, so, slp=slp[1])
    sn(k, "st5")
    final_gp_loads(k, vm, "s74", R)
    def after_h():
        vm.wait("gp")
        final_gate(k, R)
    def hook_t3():
        k.label("L_t3")
        if "apre" in opts: roles.t3_addr(k, "s74", "s76")
        def so():
            if tcopy == 32: k("s_and_b32 s49, s2, 31")
            else: k(f"s_and_b32 s49, s2, {tcopy-1}")
            k("s_lshl_b32 s49, s49, 10")
            k(f"s_add_u32 s49, s49, {TFO}")
        if ppt or t3m:
            vm.wait("w2_10")
            assert not vm.q, vm.q
            k("s_waitcnt vmcnt(0)")
        if ppt: poll2(k, 64, so, (104, 108, 112, 116)[:ppt[0]], wide=True, stag=ppt[1])
        elif pm[1]: poll3(k, so, slp[2], second=512)
        else: poll(k, 64, so, second=512, slp=slp[2])
        sn(k, "st6")
    final_main(k, "s74", "s75", "s76", R, vm, st=False, hook_t3=hook_t3, after_h=after_h, t3merge=bool(ppt or t3m), hthr=hthr, t3pre=("apre" in opts))
    if st:
        k("s_waitcnt vmcnt(0)")
        sn(k, "st7")
        if dbg: dbg_stamps(k)
        else: stamps_store(k)
    k.label("L_end")
    k("s_endpgm")
    txt, info = make_file([(NAME, k.l)], [(None, 256, 512, 163840)])
    open(fn, "w").write(txt); print(info)

STD = {f"st{i}": i for i in range(1, 8)}
if __name__ == "__main__":
    O = ("touch", "w2early", "rflag", "g1defer", "cshare", "p1c", "ws3", "v3", "wrm", "g1post")
    roles.STWAVE = 0
    O_ = [O]
    A = {"f_x":1, "st1":2, "st2":3, "p_slab":4, "st5":5, "st6":6, "st7":7}
    e7 = ((0,1,2),(3,4),(5,6),())
    b2 = dict(w56=True, g1=dict(D=2, inloop=1), tpre=9, nshadow=3, pos=(3,6,9))
    DM = ((27,6),(30,3))
    H = (58, 16)
    def B(fn, h, t, r=0, **kw): build(fn, A, opts=O_[0], esched=e7, dbmap=DM, slp=(r, h, t), **{**b2, **kw})
    H = (58,16); T = ((32,16),(56,10))
    O0 = O_[0] + ("wsh0",)
    O_[0] = O0
    B("g_a.s", H, T)
    B("g_c.s", H, T)
    O_[0] = O0 + ("apre",)
    B("g_b.s", H, T)
    B("g_d.s", H, T, t3m=True)
```

```python
from asmlib import *

H_OFF = 0x0; H_CLS = 4 * 43 * 2048
R_OFF = 0x600000
T3_OFF = 0x800000
GP_OFF = 0xA00000
ST_OFF = 0xB00000
WS_SIZE = 0x1000000
NST = 8
STWAVE = 0

S_WG = 2
S_WAVE = 3
S_PX, S_PWR, S_PWI = 4, 6, 8
S_PW1, S_PB1, S_PW2, S_PB2 = 12, 14, 16, 18
S_PGW, S_POUT, S_PDBG, S_PWS = 20, 22, 24, 26
SRD_WS = 28
SRD_A = 32
SRD_B = 36
SRD_C = 40
SRD_D = 44
S_T = 48
S_STAMP = 80

def prologue(k):
    k("s_load_dwordx4 s[4:7], s[0:1], 0")
    k("s_load_dwordx2 s[8:9], s[0:1], 16")
    k("s_load_dwordx8 s[12:19], s[0:1], 32")
    k("s_load_dwordx8 s[20:27], s[0:1], 64")
    k("v_lshrrev_b32 v1, 6, v0")
    k("v_and_b32 v0, 63, v0")
    k("v_readfirstlane_b32 s3, v1")
    k("s_waitcnt lgkmcnt(0)")
    k.srd(SRD_WS, S_PWS, S_PWS + 1, WS_SIZE)

def stamp(k, i, on=True):
    if on: k(f"s_memrealtime s[{S_STAMP+2*i}:{S_STAMP+2*i+1}]")

def stamps_clear(k):
    for i in range(NST):
        k(f"s_mov_b64 s[{S_STAMP+2*i}:{S_STAMP+2*i+1}], 0")

def stamps_store(k):
    L = k.newlabel("nost")
    k(f"s_cmp_lg_u32 s3, {STWAVE}")
    k(f"s_cbranch_scc1 {L}")
    k("s_waitcnt lgkmcnt(0)")
    k(f"s_mul_i32 s48, s2, {NST*8}")
    k(f"s_add_u32 s48, s48, {ST_OFF}")
    for i in range(0, NST, 2):
        for j in range(4):
            k(f"v_mov_b32 v{4+j}, s{S_STAMP+2*i+j}")
        k(f"v_mov_b32 v8, {i*8}")
        k("v_cmp_eq_u32 vcc, 0, v0")
        k("s_and_saveexec_b64 s[50:51], vcc")
        k(f"buffer_store_dwordx4 v[4:7], v8, s[{SRD_WS}:{SRD_WS+3}], s48 offen")
        k("s_mov_b64 exec, s[50:51]")
    k("s_waitcnt vmcnt(0)")
    k.label(L)

GELU_C0 = -2.0 * 0.7978845608028654 * 1.4426950408889634
GELU_C1 = GELU_C0 * 0.044715
import struct
def f2u(f): return struct.unpack("<I", struct.pack("<f", f))[0]

def gemm1(k, s_cls, s_fb, st=False, sc1=False, nocomp=False, nodma=False, noepi=False, order=False, touch=0, tail_wait=True, pre_epi=None):
    SX, SW, SB = SRD_A, SRD_B, SRD_C
    k.srd(SX, S_PX, S_PX + 1, 2048 * 512 * 2)
    k.srd(SW, S_PW1, S_PW1 + 1, 512 * 1376 * 2)
    k.srd(SB, S_PB1, S_PB1 + 1, 1376 * 2)
    vXo = [2, 3]; vWo = [4, 5]
    vBa = 6
    vAa = 18
    vT = 24
    vB = 32
    vA = 48
    ACC = 80
    vBias = 112
    vE = 128
    sM0 = S_T
    k.c("x dma offsets")
    k(f"s_lshl_b32 s50, s3, 1")
    for i in range(2):
        k(f"v_lshrrev_b32 v{vT}, 3, v0")
        k(f"s_add_u32 s51, s50, {i}")
        k(f"s_lshl_b32 s51, s51, 3")
        k(f"v_add_u32 v{vT}, s51, v{vT}")
        k(f"v_lshlrev_b32 v{vT}, 14, v{vT}")
        k(f"v_lshrrev_b32 v{vT+1}, 4, v0")
        k(f"v_add_u32 v{vT+1}, {4*i}, v{vT+1}")
        k(f"v_and_b32 v{vT+2}, 7, v0")
        k(f"v_xor_b32 v{vT+1}, v{vT+1}, v{vT+2}")
        k(f"v_lshl_add_u32 v{vT}, v{vT+1}, 4, v{vT}")
        k(f"s_lshl_b32 s51, {s_cls}, 10")
        k(f"v_add_u32 v{vXo[i]}, s51, v{vT}")
    k.c("w1 dma offsets")
    for i in range(2):
        k(f"s_add_u32 s51, s50, {i}")
        k(f"s_lshl_b32 s51, s51, 2")
        k(f"v_lshrrev_b32 v{vT}, 4, v0")
        k(f"v_lshlrev_b32 v{vT+1}, 2, v{vT}")
        k(f"v_and_b32 v{vT+2}, 15, v0")
        k(f"v_xor_b32 v{vT+1}, v{vT+1}, v{vT+2}")
        k(f"v_lshlrev_b32 v{vT+1}, 4, v{vT+1}")
        k(f"s_lshl_b32 s52, {s_fb}, 8")
        k(f"v_add_u32 v{vT+1}, s52, v{vT+1}")
        k(f"v_min_u32 v{vT+1}, {2752-16}, v{vT+1}")
        k(f"v_add_u32 v{vT}, s51, v{vT}")
        k(f"v_mul_u32_u24 v{vT}, 2752, v{vT}")
        k(f"v_add_u32 v{vWo[i]}, v{vT}, v{vT+1}")
    k(f"s_lshl_b32 s48, s3, 11")
    k(f"s_add_u32 s49, s48, 16384")
    def dma(c):
        slot = c % 5
        for i in range(2):
            k(f"s_add_u32 m0, s48, {slot*32768 + i*1024}")
            k(f"s_mov_b32 s53, {c*128}")
            k(f"buffer_load_dwordx4 v{vXo[i]}, s[{SX}:{SX+3}], s53 offen lds")
        for i in range(2):
            k(f"s_add_u32 m0, s49, {slot*32768 + i*1024}")
            k(f"s_mov_b32 s53, {c*64*2752}")
            k(f"buffer_load_dwordx4 v{vWo[i]}, s[{SW}:{SW+3}], s53 offen lds")
    if touch:
        nx = (16384 + touch - 1) // touch; nw = (11008 + touch - 1) // touch
        k(f"s_mul_i32 s58, s2, {nx}")
        k(f"s_lshl_b32 s59, s3, 6")
        k(f"v_add_u32 v{vT+4}, s59, v0")
        k(f"v_cmp_gt_u32 vcc, {nx}, v{vT+4}")
        k(f"v_add_u32 v{vT+5}, s58, v{vT+4}")
        k(f"v_lshlrev_b32 v{vT+5}, 7, v{vT+5}")
        k("s_and_saveexec_b64 s[60:61], vcc")
        k(f"buffer_load_dword v{vE}, v{vT+5}, s[{SX}:{SX+3}], 0 offen")
        k("s_mov_b64 exec, s[60:61]")
        k(f"s_mul_i32 s58, s2, {nw}")
        k(f"v_subrev_u32 v{vT+4}, 256, v{vT+4}")
        k(f"v_cmp_gt_u32 vcc, {nw}, v{vT+4}")
        k(f"v_add_u32 v{vT+5}, s58, v{vT+4}")
        k(f"v_lshlrev_b32 v{vT+5}, 7, v{vT+5}")
        k("s_and_saveexec_b64 s[60:61], vcc")
        k(f"buffer_load_dword v{vE+1}, v{vT+5}, s[{SW}:{SW+3}], 0 offen")
        k("s_mov_b64 exec, s[60:61]")
    k.c("bias loads (first so that vmcnt accounting is simple)")
    k(f"s_lshr_b32 s54, s3, 2")
    k(f"s_lshl_b32 s55, s54, 7")
    k(f"s_lshl_b32 s52, {s_fb}, 8")
    k(f"s_add_u32 s55, s55, s52")
    k(f"v_lshrrev_b32 v{vT}, 5, v0")
    k(f"v_lshl_add_u32 v{vT}, v{vT}, 3, s55")
    for e in range(2):
        for g in range(4):
            k(f"buffer_load_dwordx2 v[{vBias+e*8+g*2}:{vBias+e*8+g*2+1}], v{vT}, s[{SB}:{SB+3}], 0 offen offset:{e*64+g*16}")
    for c in range(5):
        dma(c)
        if order and c < 4: k("s_barrier")
    stamp(k, 1, st)
    k.c("LDS read addresses")
    k(f"s_and_b32 s56, s3, 3")
    k(f"s_lshl_b32 s57, s56, 12")
    k(f"v_and_b32 v{vT}, 31, v0")
    k(f"v_lshrrev_b32 v{vT+1}, 1, v{vT}")
    k(f"v_and_b32 v{vT+1}, 7, v{vT+1}")
    k(f"v_lshrrev_b32 v{vT+2}, 5, v0")
    k(f"v_xor_b32 v{vT+1}, v{vT+1}, v{vT+2}")
    k(f"v_lshlrev_b32 v{vT}, 7, v{vT}")
    k(f"v_add_u32 v{vT}, s57, v{vT}")
    for ks in range(4):
        k(f"v_xor_b32 v{vT+2}, {2*ks}, v{vT+1}")
        k(f"v_lshl_add_u32 v{vBa+ks}, v{vT+2}, 4, v{vT}")
        k(f"v_add_u32 v{vBa+4+ks}, 0x10000, v{vBa+ks}")
        k(f"v_add_u32 v{vBa+8+ks}, 0x20000, v{vBa+ks}")
    k(f"v_bfe_u32 v{vT}, v0, 2, 2")
    k(f"v_lshrrev_b32 v{vT+1}, 5, v0")
    k(f"v_lshl_add_u32 v{vT+1}, v{vT+1}, 3, v{vT}")
    k(f"v_lshlrev_b32 v{vT+1}, 8, v{vT+1}")
    k(f"v_bfe_u32 v{vT+2}, v0, 4, 1")
    k(f"v_bfe_u32 v{vT+3}, v0, 1, 1")
    k(f"v_lshl_add_u32 v{vT+2}, v{vT+2}, 1, v{vT+3}")
    k(f"v_and_b32 v{vT+3}, 1, v0")
    k(f"v_lshlrev_b32 v{vT+3}, 3, v{vT+3}")
    k(f"v_add3_u32 v{vT+1}, v{vT+1}, v{vT+3}, 0")
    k(f"v_add_u32 v{vT+1}, 16384, v{vT+1}")
    for e in range(2):
        k(f"s_lshl_b32 s58, s54, 1")
        k(f"s_add_u32 s58, s58, {e}")
        k(f"v_xor_b32 v{vT+4}, s58, v{vT}")
        k(f"v_lshl_add_u32 v{vT+4}, v{vT+4}, 2, v{vT+2}")
        k(f"v_lshl_add_u32 v{vAa+e}, v{vT+4}, 4, v{vT+1}")
        k(f"v_add_u32 v{vAa+2+e}, 0x10000, v{vAa+e}")
        k(f"v_add_u32 v{vAa+4+e}, 0x20000, v{vAa+e}")
    k.c("acc init from bias")
    k("s_waitcnt vmcnt(20)")
    for e in range(2):
        for g in range(4):
            for h in range(2):
                src = vBias + e*8 + g*2 + h
                d = ACC + e*16 + g*4 + h*2
                k(f"v_lshlrev_b32 v{d}, 16, v{src}")
                k(f"v_and_b32 v{d+1}, 0xffff0000, v{src}")
    waits = {0: 16, 1: 12, 2: 12, 3: 12, 4: 12, 5: 8, 6: 4, 7: 0}
    for c in range(8):
        slot = c % 5
        grp = slot // 2; so = (slot % 2) * 32768
        k.c(f"chunk {c}")
        k(f"s_waitcnt vmcnt({waits[c] if not nodma else (waits[c] if c < 1 else 0)})")
        k("s_barrier")
        if c == 0: stamp(k, 2, st)
        if 1 <= c <= 3 and not nodma: dma(c + 4)
        def reads(ks):
            k(f"ds_read_b128 v[{vB+4*ks}:{vB+4*ks+3}], v{vBa+4*grp+ks} offset:{so}")
            for e in range(2):
                for h in range(2):
                    r = vA + e*16 + ks*4 + h*2
                    k(f"ds_read_b64_tr_b16 v[{r}:{r+1}], v{vAa+2*grp+e} offset:{so + ks*4096 + h*1024}")
        def mf(ks):
            for e in range(2):
                k(f"v_mfma_f32_32x32x16_bf16 v[{ACC+16*e}:{ACC+16*e+15}], v[{vA+e*16+ks*4}:{vA+e*16+ks*4+3}], v[{vB+4*ks}:{vB+4*ks+3}], v[{ACC+16*e}:{ACC+16*e+15}]")
        if nocomp: continue
        reads(0); reads(1); reads(2)
        k("s_waitcnt lgkmcnt(10)"); mf(0)
        reads(3)
        k("s_waitcnt lgkmcnt(10)"); mf(1)
        k("s_waitcnt lgkmcnt(5)"); mf(2)
        k("s_waitcnt lgkmcnt(0)"); mf(3)
    stamp(k, 3, st)
    if pre_epi: pre_epi()
    k.c("epilogue: gelu + store")
    k(f"s_mov_b32 s60, {f2u(GELU_C0):#x}")
    k(f"s_mov_b32 s61, s60")
    k(f"s_mov_b32 s62, {f2u(GELU_C1):#x}")
    k(f"s_mov_b32 s63, s62")
    k(f"v_mov_b32 v{vT+6}, s60")
    k(f"v_mov_b32 v{vT+7}, s60")
    k(f"s_mul_i32 s64, {s_cls}, {H_CLS}")
    k(f"s_mul_i32 s65, s56, {43*2048}")
    k(f"s_add_u32 s64, s64, s65")
    k(f"s_lshl_b32 s65, {s_fb}, 2")
    k(f"s_lshl_b32 s66, s54, 1")
    k(f"s_add_u32 s65, s65, s66")
    k(f"s_lshl_b32 s66, s65, 11")
    k(f"s_add_u32 s64, s64, s66")
    k(f"s_add_u32 s64, s64, {H_OFF}")
    k(f"v_lshlrev_b32 v{vT}, 4, v0")
    fl = " sc1" if sc1 else ""
    for e in range(2):
        Lskip = k.newlabel("g1skip")
        if e == 1:
            k("s_cmp_ge_u32 s65, 42")
            k(f"s_cbranch_scc1 {Lskip}")
        else:
            k("s_cmp_ge_u32 s65, 43")
            k(f"s_cbranch_scc1 {Lskip}")
        for stp in range(2):
            a = ACC + 16*e + 8*stp
            E = vE + (e*2+stp)*16
            P = vE + 64 + (e*2+stp)*4
            for p in range(4):
                u = a + 2*p; t = E + 2*p
                k(f"v_pk_mul_f32 v[{t}:{t+1}], v[{u}:{u+1}], v[{u}:{u+1}]")
            for p in range(4):
                t = E + 2*p
                k(f"v_pk_fma_f32 v[{t}:{t+1}], v[{t}:{t+1}], s[62:63], v[{vT+6}:{vT+7}]")
            for p in range(4):
                u = a + 2*p; t = E + 2*p
                k(f"v_pk_mul_f32 v[{t}:{t+1}], v[{t}:{t+1}], v[{u}:{u+1}]")
            for p in range(8): k(f"v_exp_f32 v{E+p}, v{E+p}")
            for p in range(4):
                t = E + 2*p
                k(f"v_pk_add_f32 v[{t}:{t+1}], v[{t}:{t+1}], 1.0 op_sel_hi:[1,0]")
            for p in range(8): k(f"v_rcp_f32 v{E+p}, v{E+p}")
            for p in range(4):
                u = a + 2*p; t = E + 2*p
                k(f"v_pk_mul_f32 v[{t}:{t+1}], v[{t}:{t+1}], v[{u}:{u+1}]")
            for p in range(4):
                k(f"v_cvt_pk_bf16_f32 v{P+p}, v{E+2*p}, v{E+2*p+1}")
            k(f"buffer_store_dwordx4 v[{P}:{P+3}], v{vT}, s[{SRD_WS}:{SRD_WS+3}], s64 offen offset:{e*2048+stp*1024}{fl}")
        k.label(Lskip)
    stamp(k, 4, st)
    if tail_wait:
        k("s_waitcnt vmcnt(0)")
        stamp(k, 5, st)

FM = "v_fmamk_f32"
def fhex(f): return f"{f2u(f):#x}"

def p1(k, s_s2, s_db, st=False, sc1=False, lb=0, tail_wait=True, pre_epi=None):
    SX, SG = SRD_A, SRD_B
    fl = " sc1" if sc1 else ""
    k.srd(SX, S_PX, S_PX + 1, 2048 * 512 * 2)
    k.srd(SG, S_PGW, S_PGW + 1, 1024)
    vT = 2
    vXo = 16
    vAa = 17
    vGW = 20
    vCB = 36
    vAng = 68
    vA = 84
    ACC = 148
    vQ = 180
    vR = 196
    k.c("x DMA")
    k(f"v_lshrrev_b32 v{vT}, 4, v0")
    k(f"v_lshlrev_b32 v{vT+1}, 2, v{vT}")
    k(f"v_and_b32 v{vT+2}, 15, v0")
    k(f"v_xor_b32 v{vT+1}, v{vT+1}, v{vT+2}")
    k(f"v_lshlrev_b32 v{vT+1}, 4, v{vT+1}")
    k(f"v_lshl_add_u32 v{vXo}, v{vT}, 14, v{vT+1}")
    k(f"s_lshl_b32 s50, {s_s2}, 10")
    k(f"s_lshl_b32 s51, {s_db}, 8")
    k(f"s_add_u32 s50, s50, s51")
    k(f"s_lshl_b32 s51, s3, 18")
    k(f"s_add_u32 s50, s50, s51")
    k(f"s_lshl_b32 s52, s3, 12")
    if lb: k(f"s_add_u32 s52, s52, {lb}")
    for i in range(4):
        k(f"s_add_u32 m0, s52, {i*1024}")
        k(f"s_add_u32 s53, s50, {i*4*16384}")
        k(f"buffer_load_dwordx4 v{vXo}, s[{SX}:{SX+3}], s53 offen lds")
    k.c("gate weights: 64 contiguous bytes per thread")
    k(f"v_and_b32 v{vT}, 3, v0")
    k(f"v_lshlrev_b32 v{vT}, 6, v{vT}")
    k(f"s_lshl_b32 s51, {s_db}, 8")
    for e in range(4):
        k(f"buffer_load_dwordx4 v[{vGW+4*e}:{vGW+4*e+3}], v{vT}, s[{SG}:{SG+3}], s51 offen offset:{16*e}")
    stamp(k, 1, st)
    k.c("B constants")
    k("s_and_b32 s54, s3, 3")
    k("s_lshr_b32 s55, s3, 2")
    k(f"v_bfe_u32 v{vT}, v0, 1, 4")
    k("s_lshl_b32 s56, s54, 4")
    k(f"v_add_u32 v{vT}, s56, v{vT}")
    k(f"v_cvt_f32_u32 v{vT+1}, v{vT}")
    k(f"v_mul_f32 v{vT+2}, {fhex(1/128)}, v{vT+1}")
    k(f"v_cvt_f32_u32 v{vT+3}, {s_s2}")
    k(f"v_mul_f32 v{vT+3}, {fhex(1/2048)}, v{vT+3}")
    k(f"v_mul_f32 v{vT+3}, v{vT+3}, v{vT+1}")
    k(f"v_and_b32 v{vT+4}, 1, v0")
    k(f"v_cvt_f32_u32 v{vT+5}, v{vT+4}")
    k(f"v_fmac_f32 v{vT+3}, 0.25, v{vT+5}")
    k(f"v_lshl_or_b32 v{vT+6}, v{vT}, 1, v{vT+4}")
    k(f"v_cmp_eq_u32 vcc, 1, v{vT+6}")
    k(f"v_mov_b32 v{vT+7}, 0.5")
    k(f"v_cndmask_b32 v{vT+2}, v{vT+2}, v{vT+7}, vcc")
    k(f"v_mov_b32 v{vT+7}, 0")
    k(f"v_cndmask_b32 v{vT+3}, v{vT+3}, v{vT+7}, vcc")
    k(f"v_lshrrev_b32 v{vT+4}, 5, v0")
    k(f"v_lshlrev_b32 v{vT+4}, 3, v{vT+4}")
    k(f"v_cvt_f32_u32 v{vT+4}, v{vT+4}")
    k(f"v_fmac_f32 v{vT+3}, v{vT+4}, v{vT+2}")
    vD, vA0 = vT + 2, vT + 3
    for t in range(8):
        for j in range(8):
            kk = 16 * t + j
            if kk == 0: k(f"v_mov_b32 v{vAng+j}, v{vA0}")
            else: k(f"{FM} v{vAng+j}, v{vD}, {fhex(float(kk))}, v{vA0}")
        for j in range(8): k(f"v_cos_f32 v{vAng+j}, v{vAng+j}")
        for j in range(4): k(f"v_cvt_pk_bf16_f32 v{vCB+4*t+j}, v{vAng+2*j}, v{vAng+2*j+1}")
    k.c("A frag addresses")
    k(f"v_bfe_u32 v{vT}, v0, 2, 2")
    k(f"v_lshrrev_b32 v{vT+1}, 5, v0")
    k(f"v_lshl_add_u32 v{vT+1}, v{vT+1}, 3, v{vT}")
    k(f"v_lshlrev_b32 v{vT+1}, 8, v{vT+1}")
    k(f"v_bfe_u32 v{vT+4}, v0, 4, 1")
    k(f"v_bfe_u32 v{vT+5}, v0, 1, 1")
    k(f"v_lshl_add_u32 v{vT+4}, v{vT+4}, 1, v{vT+5}")
    k(f"v_and_b32 v{vT+5}, 1, v0")
    k(f"v_lshl_add_u32 v{vT+1}, v{vT+5}, 3, v{vT+1}")
    if lb: k(f"v_add_u32 v{vT+1}, {lb}, v{vT+1}")
    for e in range(2):
        k(f"s_lshl_b32 s58, s55, 1")
        k(f"s_add_u32 s58, s58, {e}")
        k(f"v_xor_b32 v{vT+6}, s58, v{vT}")
        k(f"v_lshl_add_u32 v{vT+6}, v{vT+6}, 2, v{vT+4}")
        k(f"v_lshl_add_u32 v{vAa+e}, v{vT+6}, 4, v{vT+1}")
    k("s_waitcnt vmcnt(4)")
    k("s_barrier")
    stamp(k, 2, st)
    def rd(t):
        for e in range(2):
            for h in range(2):
                r = vA + e*32 + t*4 + h*2
                k(f"ds_read_b64_tr_b16 v[{r}:{r+1}], v{vAa+e} offset:{t*4096 + h*1024}")
    def mf(t):
        for e in range(2):
            c = "0" if t == 0 else f"v[{ACC+16*e}:{ACC+16*e+15}]"
            k(f"v_mfma_f32_32x32x16_bf16 v[{ACC+16*e}:{ACC+16*e+15}], v[{vA+e*32+t*4}:{vA+e*32+t*4+3}], v[{vCB+4*t}:{vCB+4*t+3}], {c}")
    rd(0); rd(1); rd(2)
    for t in range(8):
        if t + 3 < 8:
            k("s_waitcnt lgkmcnt(8)"); mf(t); rd(t + 3)
        else:
            k(f"s_waitcnt lgkmcnt({4*(7-t)})"); mf(t)
    stamp(k, 3, st)
    if pre_epi: pre_epi()
    k.c("pack, transpose through LDS")
    k(f"v_and_b32 v{vT}, 31, v0")
    k(f"s_lshl_b32 s58, s54, 5")
    k(f"v_add_u32 v{vT}, s58, v{vT}")
    k(f"v_mul_u32_u24 v{vT}, 272, v{vT}")
    k(f"v_lshrrev_b32 v{vT+1}, 5, v0")
    k(f"v_lshl_add_u32 v{vT}, v{vT+1}, 4, v{vT}")
    k(f"s_lshl_b32 s58, s55, 7")
    k(f"s_add_u32 s58, s58, {32768+lb}")
    k(f"v_add_u32 v{vT}, s58, v{vT}")
    for e in range(2):
        for g in range(4):
            for h in range(2):
                k(f"v_cvt_pk_bf16_f32 v{vQ+e*8+g*2+h}, v{ACC+16*e+4*g+2*h}, v{ACC+16*e+4*g+2*h+1}")
        for pr in range(2):
            q = vQ + e*8 + pr*4
            k(f"v_permlane32_swap_b32 v{q}, v{q+2}")
            k(f"v_permlane32_swap_b32 v{q+1}, v{q+3}")
            k(f"ds_write_b128 v{vT}, v[{q}:{q+3}] offset:{e*64 + pr*32}")
    k("s_waitcnt lgkmcnt(0)")
    k("s_barrier")
    k(f"v_lshrrev_b32 v{vT}, 4, v0")
    k(f"s_lshl_b32 s58, s3, 4")
    k(f"v_add_u32 v{vT+1}, s58, v{vT}")
    k(f"v_mul_u32_u24 v{vT+1}, 272, v{vT+1}")
    k(f"v_and_b32 v{vT+2}, 15, v0")
    k(f"v_lshl_add_u32 v{vT+1}, v{vT+2}, 4, v{vT+1}")
    k(f"v_add_u32 v{vT+1}, {32768+lb}, v{vT+1}")
    for i in range(4):
        k(f"ds_read_b128 v[{vR+4*i}:{vR+4*i+3}], v{vT+1} offset:{i*4*272}")
    k(f"v_lshrrev_b32 v{vT+3}, 1, v{vT}")
    k(f"v_lshlrev_b32 v{vT+3}, 15, v{vT+3}")
    k(f"v_and_b32 v{vT+4}, 1, v{vT}")
    k(f"v_lshl_add_u32 v{vT+3}, v{vT+4}, 10, v{vT+3}")
    k(f"v_lshl_add_u32 v{vT+3}, v{vT+2}, 4, v{vT+3}")
    k(f"s_lshl_b32 s58, s3, 18")
    k(f"s_lshl_b32 s59, {s_s2}, 11")
    k(f"s_add_u32 s58, s58, s59")
    k(f"s_lshl_b32 s59, {s_db}, 8")
    k(f"s_add_u32 s58, s58, s59")
    k(f"s_add_u32 s58, s58, {R_OFF}")
    for i in range(4):
        k(f"s_waitcnt lgkmcnt({3-i})")
        k(f"s_add_u32 s59, s58, {i*2*32768}")
        k(f"buffer_store_dwordx4 v[{vR+4*i}:{vR+4*i+3}], v{vT+3}, s[{SRD_WS}:{SRD_WS+3}], s59 offen{fl}")
    stamp(k, 4, st)
    k.c("gate partials")
    k(f"v_lshrrev_b32 v{vT}, 2, v0")
    k(f"s_lshl_b32 s58, s3, 4")
    k(f"v_add_u32 v{vT}, s58, v{vT}")
    k(f"v_and_b32 v{vT+1}, 3, v0")
    k(f"v_and_b32 v{vT+2}, 3, v{vT}")
    k(f"v_xor_b32 v{vT+1}, v{vT+1}, v{vT+2}")
    k(f"v_lshlrev_b32 v{vT+1}, 6, v{vT+1}")
    k(f"v_lshl_add_u32 v{vT+1}, v{vT}, 8, v{vT+1}")
    if lb: k(f"v_add_u32 v{vT+1}, {lb}, v{vT+1}")
    for e in range(4):
        k(f"ds_read_b128 v[{vA+4*e}:{vA+4*e+3}], v{vT+1} offset:{16*e}")
    k(f"v_mov_b32 v{vT+2}, 0")
    k("s_waitcnt lgkmcnt(0)")
    for e in range(16):
        k(f"v_dot2_f32_bf16 v{vT+2}, v{vA+e}, v{vGW+e}, v{vT+2}")
    k(f"v_add_f32_dpp v{vT+2}, v{vT+2}, v{vT+2} quad_perm:[1,0,3,2] row_mask:0xf bank_mask:0xf")
    k(f"v_add_f32_dpp v{vT+2}, v{vT+2}, v{vT+2} quad_perm:[2,3,0,1] row_mask:0xf bank_mask:0xf")
    k(f"s_lshl_b32 s58, {s_db}, 4")
    k(f"s_add_u32 s58, s58, {s_s2}")
    k(f"s_lshl_b32 s58, s58, 9")
    k(f"s_add_u32 s58, s58, {GP_OFF}")
    k(f"v_lshlrev_b32 v{vT}, 2, v{vT}")
    k(f"v_and_b32 v{vT+1}, 3, v0")
    k(f"v_cmp_eq_u32 vcc, 0, v{vT+1}")
    k("s_and_saveexec_b64 s[60:61], vcc")
    k(f"buffer_store_dword v{vT+2}, v{vT}, s[{SRD_WS}:{SRD_WS+3}], s58 offen{fl}")
    k("s_mov_b64 exec, s[60:61]")
    if tail_wait:
        k("s_waitcnt vmcnt(0)")
        stamp(k, 5, st)


def interleave(a, b):
    out = []; na, nb = len(a), len(b); j = 0
    for i, x in enumerate(a):
        out.append(x)
        tgt = (i + 1) * nb // na
        while j < tgt:
            out.append(b[j]); j += 1
    out += b[j:]
    return out

def sincos_set(k, vang0, vdelta, vt, dst_c, dst_s, scale=None):
    pass

PK = False
EXP = None
P2_SLAB = 0; P2_E1 = 32768; P2_E2 = 65536; P2_PITCH = 1056

def p2_pre(k, s_task, R):
    SWR, SWI = SRD_A, SRD_B
    k.srd(SWR, S_PWR, S_PWR + 1, 2048 * 514)
    k.srd(SWI, S_PWI, S_PWI + 1, 2048 * 514)
    vT = R["T"]; W = R["W"]; WX = R["WX"]; WA = R["work"]
    vN, vQ = R["n"], R["q"]
    k(f"v_and_b32 v{vN}, 15, v0")
    k(f"v_lshrrev_b32 v{vQ}, 4, v0")
    k.c("W loads")
    k(f"v_lshlrev_b32 v{vT}, 1, v{vN}")
    k(f"v_lshl_add_u32 v{vT}, v{vQ}, 8, v{vT}")
    k(f"v_sub_u32 v{vT+1}, 1024, v{vT}")
    k(f"v_cmp_gt_u32 vcc, 32, v0")
    k(f"v_mov_b32 v{vT+2}, -32")
    k(f"v_mov_b32 v{vT+3}, 32")
    k(f"v_cndmask_b32 v{vT+2}, v{vT+2}, v{vT+3}, vcc")
    k(f"v_and_b32 v{vT+3}, 31, v0")
    k(f"v_cmp_eq_u32 s[62:63], 0, v{vT+3}")
    for row in range(2):
        k(f"s_lshl_b32 s50, s3, 1")
        k(f"s_add_u32 s50, s50, {row}")
        k(f"s_lshl_b32 s50, s50, 7")
        k(f"s_add_u32 s50, s50, {s_task}")
        k(f"s_sub_u32 s51, 2048, s50")
        k(f"s_and_b32 s51, s51, 2047")
        k(f"s_mul_i32 s50, s50, 514")
        k(f"s_mul_i32 s51, s51, 514")
        k(f"v_add_u32 v{vT+4}, s50, v{vT}")
        k(f"v_add_u32 v{vT+5}, s51, v{vT+1}")
        k(f"v_cndmask_b32 v{vT+4}, v{vT+5}, v{vT+4}, vcc")
        k(f"s_add_u32 s52, s50, 512")
        k(f"v_mov_b32 v{vT+5}, s52")
        k(f"v_mov_b32 v{vT+6}, s51")
        k(f"v_cndmask_b32 v{vT+5}, v{vT+5}, v{vT+6}, vcc")
        k(f"v_cndmask_b32 v{vT+5}, v{vT+4}, v{vT+5}, s[62:63]")
        for m in range(1, 8):
            k(f"v_mad_i32_i24 v{WA+8*row+m}, v{vT+2}, {m}, v{vT+4}")
        for t in range(2):
            for i in range(4):
                m = t + 2 * i
                a = vT + 4 if m == 0 else WA + 8*row + m
                k(f"buffer_load_ushort v{W+16*row+8*t+i}, v{a}, s[{SWR}:{SWR+3}], 0 offen")
                k(f"buffer_load_ushort v{W+16*row+8*t+4+i}, v{a}, s[{SWI}:{SWI+3}], 0 offen")
        k(f"buffer_load_ushort v{WX+2*row}, v{vT+5}, s[{SWR}:{SWR+3}], 0 offen")
        k(f"buffer_load_ushort v{WX+2*row+1}, v{vT+5}, s[{SWI}:{SWI+3}], 0 offen")

def p2_consts(k, s_task, R):
    vT = R["T"]; vN, vQ = R["n"], R["q"]; WA = R["work"]
    FS, F16, A1, B5 = R["FS"], R["F16"], R["A1"], R["B5"]
    TW1C, TW1S, TW2C, TW2S = R["TW1C"], R["TW1S"], R["TW2C"], R["TW2S"]
    nf, q4 = vT, vT + 1
    k(f"v_cvt_f32_u32 v{nf}, v{vN}")
    k(f"v_lshlrev_b32 v{q4}, 2, v{vQ}")
    k(f"v_cvt_f32_u32 v{q4}, v{q4}")
    k(f"s_cmp_eq_u32 {s_task}, 64")
    k(f"s_cselect_b32 s54, 0x3f800000, 0")
    an = WA; cs = WA + 4; sn = WA + 8
    def cset(vdelta, va0, C01, C23, S01, S23):
        for j in range(4):
            if j == 0: k(f"v_mov_b32 v{an}, v{va0}")
            else: k(f"v_fma_f32 v{an+j}, v{vdelta}, {float(j)}, v{va0}" if j != 3 else f"v_fmamk_f32 v{an+j}, v{vdelta}, {fhex(3.0)}, v{va0}")
        for j in range(4): k(f"v_cos_f32 v{cs+j}, v{an+j}")
        for j in range(4): k(f"v_sin_f32 v{sn+j}, v{an+j}")
        k(f"v_cvt_pk_bf16_f32 v{C01}, v{cs}, v{cs+1}")
        k(f"v_cvt_pk_bf16_f32 v{C23}, v{cs+2}, v{cs+3}")
        k(f"v_cvt_pk_bf16_f32 v{S01}, v{sn}, v{sn+1}")
        k(f"v_cvt_pk_bf16_f32 v{S23}, v{sn+2}, v{sn+3}")
    d, a0 = vT + 2, vT + 3
    k.c("F32 sets")
    k(f"v_mul_f32 v{d}, {fhex(1/32)}, v{nf}")
    k(f"v_mul_f32 v{a0}, v{d}, v{q4}")
    cset(d, a0, FS + 2, FS + 3, FS + 4, FS + 5)
    k(f"v_xor_b32 v{FS}, 0x80008000, v{FS+4}")
    k(f"v_xor_b32 v{FS+1}, 0x80008000, v{FS+5}")
    k(f"v_and_b32 v{vT+4}, 1, v{vN}")
    k(f"v_mul_u32_u24 v{vT+4}, 0x8000, v{vT+4}")
    k(f"v_lshl_or_b32 v{vT+4}, v{vT+4}, 16, v{vT+4}")
    k(f"v_xor_b32 v{vT+5}, 0x80000000, v{vT+4}")
    for r in range(6):
        k(f"v_xor_b32 v{FS+6+r}, v{vT+4}, v{FS+r}")
        k(f"v_xor_b32 v{FS+12+r}, 0x80000000, v{FS+r}")
        k(f"v_xor_b32 v{FS+18+r}, v{vT+5}, v{FS+r}")
    k.c("F16 set")
    k(f"v_mul_f32 v{d}, {fhex(1/16)}, v{nf}")
    k(f"v_mul_f32 v{a0}, v{d}, v{q4}")
    cset(d, a0, F16 + 2, F16 + 3, F16 + 4, F16 + 5)
    k(f"v_xor_b32 v{F16}, 0x80008000, v{F16+4}")
    k(f"v_xor_b32 v{F16+1}, 0x80008000, v{F16+5}")
    k.c("A1: angle (4q+j)(2n+e)/32")
    k(f"v_fma_f32 v{d}, v{nf}, 2.0, s54")
    k(f"v_mul_f32 v{d}, {fhex(1/32)}, v{d}")
    k(f"v_mul_f32 v{a0}, v{d}, v{q4}")
    t0 = WA + 12
    cset(d, a0, t0, t0 + 1, t0 + 2, t0 + 3)
    k(f"v_xor_b32 v{t0+4}, 0x80008000, v{t0+2}")
    k(f"v_xor_b32 v{t0+5}, 0x80008000, v{t0+3}")
    L0, L64, Lj = k.newlabel("a1_0"), k.newlabel("a1_64"), k.newlabel("a1_j")
    C01, C23, S01, S23, N01, N23 = [f"v{t0+i}" for i in range(6)]
    def setA(vals):
        for r, x in enumerate(vals): k(f"v_mov_b32 v{A1+r}, {x}")
    k(f"s_cmp_eq_u32 {s_task}, 0"); k(f"s_cbranch_scc1 {L0}")
    k(f"s_cmp_eq_u32 {s_task}, 64"); k(f"s_cbranch_scc1 {L64}")
    setA([C01, C23, S01, S23, N01, N23, C01, C23]); k(f"s_branch {Lj}")
    k.label(L0); setA([C01, C23, 0, 0, N01, N23, 0, 0]); k(f"s_branch {Lj}")
    k.label(L64); setA([0, 0, C01, C23, 0, 0, N01, N23])
    k.label(Lj)
    k.c("B5: angle n(2u2+e)/32")
    k(f"v_mul_f32 v{d}, {fhex(1/16)}, v{nf}")
    k(f"v_mul_f32 v{a0}, s54, v{nf}")
    k(f"v_mul_f32 v{a0}, {fhex(1/32)}, v{a0}")
    k(f"v_fmac_f32 v{a0}, v{d}, v{q4}")
    cset(d, a0, B5, B5 + 2, B5 + 1, B5 + 3)
    k(f"v_mov_b32 v{B5+4}, v{B5+1}")
    k(f"v_xor_b32 v{B5+5}, 0x80008000, v{B5}")
    k(f"v_mov_b32 v{B5+6}, v{B5+3}")
    k(f"v_xor_b32 v{B5+7}, 0x80008000, v{B5+2}")
    k.c("twiddles")
    k(f"s_and_b32 s55, {s_task}, 63")
    k(f"s_cmp_eq_u32 s55, 0")
    k(f"s_mov_b32 s56, {fhex(2.0**-19)}")
    k(f"s_cselect_b32 s55, {fhex(2.0**-20)}, s56")
    for t in range(2):
        k(f"v_add_f32 v{d}, {fhex(16.0*t)}, v{nf}" if t else f"v_mov_b32 v{d}, v{nf}")
        k(f"v_mul_f32 v{d}, {fhex(1/512)}, v{d}")
        k(f"v_mul_f32 v{a0}, v{d}, v{q4}")
        for j in range(4):
            if j == 0: k(f"v_mov_b32 v{an}, v{a0}")
            elif j == 3: k(f"v_fmamk_f32 v{an+j}, v{d}, {fhex(3.0)}, v{a0}")
            else: k(f"v_fma_f32 v{an+j}, v{d}, {float(j)}, v{a0}")
        for j in range(4): k(f"v_cos_f32 v{TW1C+4*t+j}, v{an+j}")
        for j in range(4): k(f"v_sin_f32 v{TW1S+4*t+j}, v{an+j}")
        k(f"v_mul_f32 v{d}, {fhex(1/512)}, v{nf}")
        k(f"v_add_f32 v{a0}, {fhex(16.0*t)}, v{q4}" if t else f"v_mov_b32 v{a0}, v{q4}")
        k(f"v_mul_f32 v{a0}, v{a0}, v{d}")
        for j in range(4):
            if j == 0: k(f"v_mov_b32 v{an}, v{a0}")
            elif j == 3: k(f"v_fmamk_f32 v{an+j}, v{d}, {fhex(3.0)}, v{a0}")
            else: k(f"v_fma_f32 v{an+j}, v{d}, {float(j)}, v{a0}")
        for j in range(4): k(f"v_cos_f32 v{cs+j}, v{an+j}")
        for j in range(4): k(f"v_sin_f32 v{sn+j}, v{an+j}")
        for j in range(4): k(f"v_mul_f32 v{TW2C+4*t+j}, s55, v{cs+j}")
        for j in range(4): k(f"v_mul_f32 v{TW2S+4*t+j}, s55, v{sn+j}")

def p2_wfix(k, R):
    vT = R["T"]; W = R["W"]; WX = R["WX"]
    k(f"v_cmp_gt_u32 vcc, 32, v0")
    k(f"v_mov_b32 v{vT}, 0x80000000")
    k(f"v_mov_b32 v{vT+1}, 0")
    k(f"v_cndmask_b32 v{vT}, v{vT}, v{vT+1}, vcc")
    k(f"v_and_b32 v{vT+1}, 31, v0")
    k(f"v_cmp_eq_u32 vcc, 0, v{vT+1}")
    k(f"v_xor_b32 v{vT+1}, 0x80000000, v{vT}")
    k(f"v_cndmask_b32 v{vT+1}, v{vT}, v{vT+1}, vcc")
    for row in range(2):
        for t in range(2):
            for i in range(4):
                r = W + 16*row + 8*t + i
                k(f"v_lshlrev_b32 v{r}, 16, v{r}")
                k(f"v_lshl_add_u32 v{r+4}, v{r+4}, 16, v{vT}")
        k(f"v_lshlrev_b32 v{WX+2*row}, 16, v{WX+2*row}")
        k(f"v_lshl_add_u32 v{WX+2*row+1}, v{WX+2*row+1}, 16, v{vT+1}")
        r = W + 16*row
        k(f"v_add_f32 v{r}, v{r}, v{WX+2*row}")
        k(f"v_add_f32 v{r+4}, v{r+4}, v{WX+2*row+1}")
        k(f"v_mul_f32 v{r}, 0.5, v{r}")
        k(f"v_mul_f32 v{r+4}, 0.5, v{r+4}")

def p2_regs():
    R = dict(T=2, n=16, q=17, FS=20, F16=44, A1=50, B5=58, TW1C=66, TW1S=74, TW2C=82, TW2S=90, W=98, WX=130,
             dma=134, tr=136, e1w=140, e1r=141, e2w=142, e2r=143, t3=145, work=148)
    return R

def p2_addr(k, s_task, R):
    vT = R["T"]; vN, vQ = R["n"], R["q"]
    k.c("LDS addresses")
    k(f"v_bfe_u32 v{vT}, v0, 2, 2")
    k(f"v_lshl_add_u32 v{vT}, v{vQ}, 2, v{vT}")
    k(f"v_and_b32 v{vT+1}, 7, v{vT}")
    k(f"v_lshlrev_b32 v{vT+1}, 1, v{vT+1}")
    k(f"v_bfe_u32 v{vT+2}, v0, 1, 1")
    k(f"s_lshl_b32 s50, s3, 3")
    k(f"v_or_b32 v{vT+2}, s50, v{vT+2}")
    k(f"v_xor_b32 v{vT+2}, v{vT+2}, v{vT+1}")
    k(f"v_lshlrev_b32 v{vT+2}, 4, v{vT+2}")
    k(f"v_lshl_add_u32 v{vT+2}, v{vT}, 11, v{vT+2}")
    k(f"v_and_b32 v{vT+3}, 1, v0")
    k(f"v_lshl_add_u32 v{R['tr']}, v{vT+3}, 3, v{vT+2}")
    if P2_SLAB: k(f"v_add_u32 v{R['tr']}, {P2_SLAB}, v{R['tr']}")
    for dd in range(1, 4):
        k(f"v_xor_b32 v{R['tr']+dd}, {dd*32}, v{R['tr']}")
    k(f"v_lshlrev_b32 v{vT}, 13, v{vQ}")
    k(f"v_lshl_add_u32 v{vT}, v{vN}, 4, v{vT}")
    k(f"s_lshl_b32 s50, s3, 8")
    k(f"s_add_u32 s50, s50, {P2_E1}")
    k(f"v_add_u32 v{R['e1w']}, s50, v{vT}")
    k(f"s_lshl_b32 s50, s3, 12")
    k(f"s_add_u32 s50, s50, {P2_E1}")
    k(f"v_lshl_add_u32 v{R['e1r']}, v0, 4, s50")
    k(f"v_mul_u32_u24 v{vT}, {4*P2_PITCH}, v{vQ}")
    k(f"v_lshl_add_u32 v{vT}, v{vN}, 3, v{vT}")
    k(f"s_lshl_b32 s50, s3, 7")
    k(f"s_add_u32 s50, s50, {P2_E2}")
    k(f"v_add_u32 v{R['e2w']}, s50, v{vT}")
    k(f"v_lshrrev_b32 v{vT}, 3, v{vN}")
    k(f"s_lshl_b32 s50, s3, 2")
    k(f"v_add_u32 v{vT}, s50, v{vT}")
    k(f"v_mul_u32_u24 v{vT}, {P2_PITCH}, v{vT}")
    k(f"v_lshl_add_u32 v{vT}, v{vQ}, 8, v{vT}")
    k(f"v_bfe_u32 v{vT+1}, v0, 2, 1")
    k(f"v_lshl_add_u32 v{vT}, v{vT+1}, 6, v{vT}")
    k(f"v_and_b32 v{vT+1}, 3, v0")
    k(f"v_lshl_add_u32 v{vT}, v{vT+1}, 3, v{vT}")
    k(f"v_add_u32 v{R['e2r']}, {P2_E2}, v{vT}")
    k(f"v_add_u32 v{R['e2r']+1}, {P2_E2 + 2*P2_PITCH}, v{vT}")
    k(f"v_lshlrev_b32 v{vT}, 17, v{vN}")
    k(f"v_lshl_add_u32 v{vT}, v{vQ}, 4, v{vT}")
    k(f"s_lshl_b32 s50, s3, 7")
    k(f"v_add_u32 v{R['t3']}, s50, v{vT}")

def p2_slab_dma(k, s_task, R, sc1=False, part=None):
    vT = R["T"]
    fl = " sc1" if sc1 else ""
    k.c("R slab DMA")
    if part == "issue":
        for r in range(4):
            k(f"s_add_u32 m0, s52, {r*1024}")
            k(f"s_add_u32 s50, s53, {r*1024}")
            k(f"buffer_load_dwordx4 v{R['dma']+(r>>1)}, s[{SRD_WS}:{SRD_WS+3}], s50 offen lds{fl}")
        return
    k(f"s_and_b32 s50, {s_task}, 63")
    k(f"s_lshl_b32 s50, s50, 15")
    k(f"s_add_u32 s50, s50, {R_OFF}")
    k(f"s_lshl_b32 s51, s3, 12")
    k(f"s_add_u32 s50, s50, s51")
    k(f"s_add_u32 s51, s51, {P2_SLAB}")
    for h in range(2):
        k(f"s_lshl_b32 s52, s3, 1")
        k(f"s_add_u32 s52, s52, {h}")
        k(f"s_and_b32 s52, s52, 7")
        k(f"s_lshl_b32 s52, s52, 1")
        k(f"v_xor_b32 v{R['dma']+h}, s52, v0")
        k(f"v_lshlrev_b32 v{R['dma']+h}, 4, v{R['dma']+h}")
    if part == "pre":
        k("s_mov_b32 s52, s51")
        k("s_mov_b32 s53, s50")
        return
    for r in range(4):
        k(f"s_add_u32 m0, s51, {r*1024}")
        k(f"s_add_u32 s53, s50, {r*1024}")
        k(f"buffer_load_dwordx4 v{R['dma']+(r>>1)}, s[{SRD_WS}:{SRD_WS+3}], s53 offen lds{fl}")

def p2_main(k, s_task, R, st=False, sc1=False, stbase=3):
    fl = " sc1" if sc1 else ""
    FS, F16, A1, B5 = R["FS"], R["F16"], R["A1"], R["B5"]
    TW1C, TW1S, TW2C, TW2S = R["TW1C"], R["TW1S"], R["TW2C"], R["TW2S"]
    W = R["W"]; WA = R["work"]
    BF = WA; D = WA + 16; P = WA + 48; X = WA + 64
    def fs(t, g, cp): return FS + 6*(2*t+g) + (2 if cp == 0 else 0)
    def f16(cp): return F16 + (2 if cp == 0 else 0)
    def mf(d, a, b, c=None):
        cc = "0" if c is None else f"v[{c}:{c+3}]"
        return f"v_mfma_f32_16x16x32_bf16 v[{d}:{d+3}], v[{a}:{a+3}], v[{b}:{b+3}], {cc}"
    k.c("stage (i)")
    for dd in range(4):
        for c in range(2):
            r = BF + 4*dd + 2*c
            k(f"ds_read_b64_tr_b16 v[{r}:{r+1}], v{R['tr']+dd} offset:{c*1024}")
    for dd in range(4):
        k(f"s_waitcnt lgkmcnt({6-2*dd})")
        for cp in range(2):
            k(mf(D + 8*dd + 4*cp, A1 + 4*cp, BF + 4*dd))
    for i in range(4):
        for cp in range(2):
            for h in range(2):
                k(f"v_cvt_pk_bf16_f32 v{P+4*i+2*cp+h}, v{D+8*(2*h)+4*cp+i}, v{D+8*(2*h+1)+4*cp+i}")
        k(f"ds_write_b128 v{R['e1w']}, v[{P+4*i}:{P+4*i+3}] offset:{i*2048}")
    k("s_waitcnt lgkmcnt(0)")
    k("s_barrier")
    stamp(k, stbase, st == 1)
    stamp(k, 7, st == 2)
    k.c("step A")
    AF = WA
    for row in range(2):
        for g in range(2):
            r = AF + 8*row + 4*g
            k(f"ds_read_b128 v[{r}:{r+3}], v{R['e1r']} offset:{row*2048 + g*1024}")
    def d1(row, t, cp): return D + 16*row + 8*t + 4*cp
    def frag(row, t): return P + 8*row + 4*t
    def stepA(row):
        o = []
        for g in range(2):
            for t in range(2):
                for cp in range(2):
                    o.append(mf(d1(row, t, cp), AF + 8*row + 4*g, fs(t, g, cp), None if g == 0 else d1(row, t, cp)))
        return o
    def cmul(row, C, S, kind):
        o = []
        for t in range(2):
            re, im = d1(row, t, 0), d1(row, t, 1)
            x = X + 8*t
            c_, s_ = C(t), S(t)
            def pr(a, h): return f"v[{a+2*h}:{a+2*h+1}]"
            if not PK:
                if kind == "tw":
                    for i in range(4): o.append(f"v_mul_f32 v{x+i}, v{re+i}, v{c_+i}")
                    for i in range(4): o.append(f"v_mul_f32 v{x+4+i}, v{im+i}, v{c_+i}")
                    for i in range(4): o.append(f"v_fmac_f32 v{x+i}, v{im+i}, v{s_+i}")
                    for i in range(4): o.append(f"v_fma_f32 v{x+4+i}, -v{re+i}, v{s_+i}, v{x+4+i}")
                else:
                    for i in range(4): o.append(f"v_mul_f32 v{x+i}, v{re+i}, v{c_+i}")
                    for i in range(4): o.append(f"v_mul_f32_e64 v{x+4+i}, -v{re+i}, v{s_+i}")
                    for i in range(4): o.append(f"v_fma_f32 v{x+i}, -v{im+i}, v{s_+i}, v{x+i}")
                    for i in range(4): o.append(f"v_fma_f32 v{x+4+i}, -v{im+i}, v{c_+i}, v{x+4+i}")
            elif kind == "tw":
                for h in range(2): o.append(f"v_pk_mul_f32 {pr(x,h)}, {pr(re,h)}, {pr(c_,h)}")
                for h in range(2): o.append(f"v_pk_mul_f32 {pr(x+4,h)}, {pr(im,h)}, {pr(c_,h)}")
                for h in range(2): o.append(f"v_pk_fma_f32 {pr(x,h)}, {pr(im,h)}, {pr(s_,h)}, {pr(x,h)}")
                for h in range(2): o.append(f"v_pk_fma_f32 {pr(x+4,h)}, {pr(re,h)}, {pr(s_,h)}, {pr(x+4,h)} neg_lo:[1,0,0] neg_hi:[1,0,0]")
            else:
                for h in range(2): o.append(f"v_pk_mul_f32 {pr(x,h)}, {pr(re,h)}, {pr(c_,h)}")
                for h in range(2): o.append(f"v_pk_mul_f32 {pr(x+4,h)}, {pr(re,h)}, {pr(s_,h)} neg_lo:[1,0] neg_hi:[1,0]")
                for h in range(2): o.append(f"v_pk_fma_f32 {pr(x,h)}, {pr(im,h)}, {pr(s_,h)}, {pr(x,h)} neg_lo:[1,0,0] neg_hi:[1,0,0]")
                for h in range(2): o.append(f"v_pk_fma_f32 {pr(x+4,h)}, {pr(im,h)}, {pr(c_,h)}, {pr(x+4,h)} neg_lo:[1,0,0] neg_hi:[1,0,0]")
            f = frag(row, t)
            for h in range(2): o.append(f"v_cvt_pk_bf16_f32 v{f+h}, v{x+2*h}, v{x+2*h+1}")
            for h in range(2): o.append(f"v_cvt_pk_bf16_f32 v{f+2+h}, v{x+4+2*h}, v{x+4+2*h+1}")
        return o
    tw1 = lambda row: cmul(row, lambda t: TW1C + 4*t, lambda t: TW1S + 4*t, "tw")
    wm = lambda row: cmul(row, lambda t: W + 16*row + 8*t, lambda t: W + 16*row + 8*t + 4, "w")
    tw2 = lambda row: cmul(row, lambda t: TW2C + 4*t, lambda t: TW2S + 4*t, "tw")
    def stepB(row):
        return [mf(d1(row, t, cp), f16(cp), frag(row, t)) for t in range(2) for cp in range(2)]
    def stepBp(row):
        return [mf(d1(row, t, cp), frag(row, t), f16(cp)) for t in range(2) for cp in range(2)]
    def stepAp(row):
        o = []
        for t in range(2):
            for tp in range(2):
                for cp in range(2):
                    o.append(mf(d1(row, tp, cp), fs(tp, t, cp), frag(row, t), None if t == 0 else d1(row, tp, cp)))
        return o
    def emit(l):
        for x in l:
            if EXP == "nomfma" and "mfma" in x: continue
            if EXP == "novalu" and "mfma" not in x: continue
            k(x)
    k("s_waitcnt lgkmcnt(2)")
    emit(stepA(0))
    k("s_waitcnt lgkmcnt(0)")
    emit(interleave(stepA(1), tw1(0)))
    emit(interleave(stepB(0), tw1(1)))
    emit(interleave(stepB(1), wm(0)))
    emit(interleave(stepBp(0), wm(1)))
    emit(interleave(stepBp(1), tw2(0)))
    emit(interleave(stepAp(0), tw2(1)))
    emit(stepAp(1))
    stamp(k, stbase + 1, st)
    k.c("E2 write")
    for tp in range(2):
        for i in range(4):
            p = P + 2*(4*tp + i)
            k(f"v_cvt_pk_bf16_f32 v{p}, v{d1(0,tp,0)+i}, v{d1(1,tp,0)+i}")
            k(f"v_cvt_pk_bf16_f32 v{p+1}, v{d1(0,tp,1)+i}, v{d1(1,tp,1)+i}")
            k(f"ds_write_b64 v{R['e2w']}, v[{p}:{p+1}] offset:{(16*tp+i)*P2_PITCH}")
    k("s_waitcnt lgkmcnt(0)")
    stamp(k, 1, st == 2)
    k("s_barrier")
    stamp(k, 2, st == 2)
    k.c("stage (v)")
    for r in range(4):
        o = 4*(r & 1)
        k(f"ds_read2_b64 v[{AF+4*r}:{AF+4*r+3}], v{R['e2r']+(r>>1)} offset0:{o} offset1:{o+16}")
    for r in range(4):
        k(f"s_waitcnt lgkmcnt({3-r})")
        for cp in range(2):
            k(mf(D + 8*r + 4*cp, AF + 4*r, B5 + 4*cp))
    stamp(k, 3, st == 2)
    k(f"s_and_b32 s50, {s_task}, 63")
    k(f"s_lshl_b32 s50, s50, 11")
    k(f"s_lshr_b32 s51, {s_task}, 6")
    k(f"s_lshl_b32 s51, s51, 10")
    k(f"s_add_u32 s50, s50, s51")
    k(f"s_add_u32 s50, s50, {T3_OFF}")
    Lsk = k.newlabel("p2sk")
    for cp in range(2):
        if cp == 1:
            k(f"s_and_b32 s51, {s_task}, 63")
            k(f"s_cmp_eq_u32 s51, 0")
            k(f"s_cbranch_scc1 {Lsk}")
        for hb in range(2):
            p = P + 8*cp + 4*hb
            for rr in range(2):
                r = 2*hb + rr
                for h in range(2):
                    k(f"v_cvt_pk_bf16_f32 v{p+2*rr+h}, v{D+8*r+4*cp+2*h}, v{D+8*r+4*cp+2*h+1}")
            k(f"buffer_store_dwordx4 v[{p}:{p+3}], v{R['t3']}, s[{SRD_WS}:{SRD_WS+3}], s50 offen offset:{cp*1024+hb*64}{fl}")
    k.label(Lsk)
    stamp(k, stbase + 2, st)

def p2(k, s_task, st=False, sc1=False):
    R = p2_regs()
    k(f"v_and_b32 v{R['n']}, 15, v0")
    p2_slab_dma(k, s_task, R, sc1)
    p2_pre(k, s_task, R)
    stamp(k, 1, st == 1)
    p2_consts(k, s_task, R)
    p2_addr(k, s_task, R)
    k("s_waitcnt vmcnt(0)")
    p2_wfix(k, R)
    k("s_barrier")
    stamp(k, 2, st == 1)
    p2_main(k, s_task, R, st, sc1)
    k("s_waitcnt vmcnt(0)")
    stamp(k, 6, st)


class VM:
    def __init__(self, k): self.k = k; self.q = []; self.seen = set()
    def issue(self, text, tag):
        self.k(text); self.q.append(tag); self.seen.add(tag)
    def wait(self, tag):
        assert tag in self.seen, tag
        if tag not in self.q: return
        idx = max(i for i, t in enumerate(self.q) if t == tag)
        n = len(self.q) - 1 - idx
        self.k(f"s_waitcnt vmcnt({min(n, 63)})")
        self.q = self.q[idx + 1:]
    def wait_all(self):
        self.k("s_waitcnt vmcnt(0)"); self.q = []

LOG2E = 1.4426950408889634

def final_regs():
    return dict(T=2, g=16, og=17, dma=18, h=19, tr=20, xw=26, xr=27, out=28, b2=30, gp=34, TB=40, AF=48, ACC=72, HB=104, XR=192)

def final_setup(k, s_cls, s_hf, s_db, R):
    vT = R["T"]
    SW2 = SRD_C
    k.srd(SW2, S_PW2, S_PW2 + 1, 1376 * 1024)
    k("s_and_b32 s64, s3, 1")
    k("s_lshr_b32 s65, s3, 1")
    k(f"v_lshrrev_b32 v{vT}, 3, v0")
    k(f"v_bfe_u32 v{vT+1}, v0, 4, 1")
    k(f"v_lshlrev_b32 v{vT+1}, 2, v{vT+1}")
    k(f"v_and_b32 v{vT+2}, 7, v0")
    k(f"v_xor_b32 v{vT+1}, v{vT+1}, v{vT+2}")
    k(f"v_lshlrev_b32 v{vT+1}, 4, v{vT+1}")
    k(f"v_lshl_add_u32 v{R['dma']}, v{vT}, 10, v{vT+1}")
    k("s_mul_i32 s66, s65, 352")
    k("s_lshl_b32 s67, s64, 4")
    k("s_add_u32 s66, s66, s67")
    k("s_lshl_b32 s66, s66, 10")
    k(f"s_lshl_b32 s67, {s_db}, 7")
    k("s_add_u32 s66, s66, s67")
    k("s_lshl_b32 s68, s65, 12")
    k("s_lshl_b32 s67, s64, 11")
    k("s_add_u32 s68, s68, s67")

def final_w2_dma(k, vm, R, j, slot):
    for ii in range(2):
        k(f"s_add_u32 m0, s68, {slot*16384 + ii*1024}")
        k(f"s_add_u32 s67, s66, {j*32768 + ii*8192}")
        vm.issue(f"buffer_load_dwordx4 v{R['dma']}, s[{SRD_C}:{SRD_C+3}], s67 offen lds", f"w2_{j}")

def final_addr(k, s_cls, s_hf, s_db, R):
    vT = R["T"]
    k.c("tr-read addresses")
    k(f"v_bfe_u32 v{vT}, v0, 2, 2")
    k(f"v_lshrrev_b32 v{vT+1}, 5, v0")
    k(f"v_lshl_add_u32 v{vT+1}, v{vT+1}, 2, v{vT}")
    k(f"v_lshlrev_b32 v{vT+1}, 7, v{vT+1}")
    k(f"v_bfe_u32 v{vT+2}, v0, 4, 1")
    k(f"v_and_b32 v{vT+3}, 1, v0")
    k(f"v_lshl_add_u32 v{vT+2}, v{vT+2}, 1, v{vT+3}")
    k(f"v_bfe_u32 v{vT+3}, v0, 3, 1")
    k(f"v_lshl_add_u32 v{vT+2}, v{vT+3}, 2, v{vT+2}")
    k(f"v_lshl_add_u32 v{vT+1}, v{vT+2}, 4, v{vT+1}")
    k(f"v_bfe_u32 v{vT+3}, v0, 1, 1")
    k(f"v_lshl_add_u32 v{vT+1}, v{vT+3}, 3, v{vT+1}")
    k("s_lshl_b32 s67, s65, 12")
    k(f"v_add_u32 v{R['tr']}, s67, v{vT+1}")
    k(f"v_xor_b32 v{R['tr']+1}, 64, v{R['tr']}")
    for grp in range(1, 3):
        for e in range(2):
            k(f"v_add_u32 v{R['tr']+2*grp+e}, {grp*65536}, v{R['tr']+e}")
    k(f"v_lshlrev_b32 v{R['h']}, 4, v0")
    k("s_mul_i32 s67, s64, 24576")
    k("s_add_u32 s67, s67, 32768")
    k(f"v_add_u32 v{R['xw']}, s67, v{R['h']}")
    k("s_mul_i32 s69, s65, 6144")
    k(f"v_add_u32 v{R['xr']}, s69, v{R['xw']}")
    k(f"s_lshl_b32 s69, {s_hf}, 6")
    k("s_lshl_b32 s67, s64, 5")
    k("s_add_u32 s69, s69, s67")
    k(f"v_and_b32 v{vT}, 31, v0")
    k(f"v_add_u32 v{vT}, s69, v{vT}")
    k(f"v_lshlrev_b32 v{R['gp']}, 2, v{vT}")
    k(f"v_lshlrev_b32 v{vT+1}, 4, v{vT}")
    k(f"v_add_u32 v{vT+1}, {s_cls}, v{vT+1}")
    k(f"v_cvt_f32_u32 v{R['out']+1}, v{vT+1}")
    k(f"v_lshlrev_b32 v{vT+1}, 10, v{vT+1}")
    k(f"v_lshrrev_b32 v{vT+2}, 5, v0")
    k(f"v_lshlrev_b32 v{vT+2}, 4, v{vT+2}")
    k(f"s_lshl_b32 s67, {s_db}, 7")
    k("s_lshl_b32 s69, s65, 5")
    k("s_add_u32 s67, s67, s69")
    k(f"v_add_u32 v{vT+2}, s67, v{vT+2}")
    k(f"v_add_u32 v{R['out']}, v{vT+1}, v{vT+2}")
    k(f"v_mov_b32 v{R['b2']}, v{vT+2}")

def final_small_loads(k, vm, s_cls, R, sc1=False):
    fl = " sc1" if sc1 else ""
    k.srd(SRD_B, S_PB2, S_PB2 + 1, 1024)
    vm.issue(f"buffer_load_dwordx4 v[{R['b2']}:{R['b2']+3}], v{R['b2']}, s[{SRD_B}:{SRD_B+3}], 0 offen", "b2")

def final_gp_loads(k, vm, s_cls, R, sc1=False):
    fl = " sc1" if sc1 else ""
    k(f"s_lshl_b32 s67, {s_cls}, 9")
    k(f"s_add_u32 s67, s67, {GP_OFF}")
    k(f"v_mov_b32 v{R['T']}, v{R['gp']}")
    for d in range(4):
        if d: k("s_add_u32 s67, s67, 8192")
        vm.issue(f"buffer_load_dword v{R['gp']+d}, v{R['T']}, s[{SRD_WS}:{SRD_WS+3}], s67 offen{fl}", "gp")

def final_gate(k, R):
    vT = R["T"]; G = R["gp"]; TB = R["TB"]; sf = R["out"] + 1
    k(f"v_add_f32 v{G}, v{G}, v{G+1}")
    k(f"v_add_f32 v{G+2}, v{G+2}, v{G+3}")
    k(f"v_add_f32 v{G}, v{G}, v{G+2}")
    k(f"v_mul_f32 v{G}, {fhex(-LOG2E)}, v{G}")
    k(f"v_exp_f32 v{G}, v{G}")
    k(f"v_add_f32 v{G}, 1.0, v{G}")
    k(f"v_rcp_f32 v{R['g']}, v{G}")
    k(f"v_sub_f32 v{R['og']}, 1.0, v{R['g']}")
    k(f"v_mul_f32 v{vT}, {fhex(1/2048)}, v{sf}")
    k(f"v_lshrrev_b32 v{vT+1}, 5, v0")
    k(f"v_lshlrev_b32 v{vT+1}, 1, v{vT+1}")
    k("s_lshl_b32 s67, s65, 4")
    k(f"v_add_u32 v{vT+1}, s67, v{vT+1}")
    k(f"v_cvt_f32_u32 v{vT+1}, v{vT+1}")
    k(f"v_mul_f32 v{vT+1}, v{vT+1}, v{vT}")
    k(f"v_sub_f32 v{vT+2}, 0, v{R['g']}")
    an = vT + 4
    C = R["XR"]; S = R["XR"] + 8
    idx = 0
    for st in range(2):
        for h in range(2):
            for p in range(2):
                off = 8*st + 4*h + p
                if off == 0: k(f"v_mov_b32 v{an+idx}, v{vT+1}")
                else: k(f"v_fmamk_f32 v{an+idx}, v{vT}, {fhex(float(off))}, v{vT+1}")
                idx += 1
    for i in range(8): k(f"v_cos_f32 v{C+i}, v{an+i}")
    for i in range(8): k(f"v_sin_f32 v{S+i}, v{an+i}")
    for i in range(8): k(f"v_mul_f32 v{C+i}, v{R['g']}, v{C+i}")
    for i in range(8): k(f"v_mul_f32 v{S+i}, v{vT+2}, v{S+i}")
    L = k.newlabel("nosp")
    k("s_cmp_lg_u32 s65, 0")
    k(f"s_cbranch_scc1 {L}")
    k(f"v_lshlrev_b32 v{vT+3}, 31, v0")
    k(f"v_xor_b32 v{vT+3}, v{vT+3}, v{R['g']}")
    k("v_cmp_gt_u32 vcc, 32, v0")
    k(f"v_cndmask_b32 v{S}, v{S}, v{vT+3}, vcc")
    k.label(L)
    for i in range(8):
        k(f"v_cvt_pk_bf16_f32 v{TB+i}, v{C+i}, v{S+i}")

def t3_addr(k, s_cls, s_db):
    k(f"s_lshl_b32 s70, {s_cls}, 17")
    k("s_lshl_b32 s71, s65, 15")
    k("s_add_u32 s70, s70, s71")
    k("s_lshl_b32 s71, s64, 14")
    k("s_add_u32 s70, s70, s71")
    k(f"s_lshl_b32 s71, {s_db}, 7")
    k("s_add_u32 s70, s70, s71")
    k(f"s_add_u32 s70, s70, {T3_OFF}")

def final_main(k, s_cls, s_hf, s_db, R, vm, st=False, hook_t3=None, sc1=False, stb=2, after_h=None, t3merge=False, hthr=0, t3pre=False):
    fl = " sc1" if sc1 else ""
    AF, ACC, HB = R["AF"], R["ACC"], R["HB"]
    k.c("h fragment loads")
    k(f"s_mul_i32 s70, {s_cls}, {H_CLS}")
    k(f"s_lshl_b32 s71, {s_hf}, 1")
    k("s_add_u32 s71, s71, s64")
    k(f"s_mul_i32 s71, s71, {43*2048}")
    k("s_add_u32 s70, s70, s71")
    k(f"s_mul_i32 s71, s65, {11*2048}")
    k("s_add_u32 s70, s70, s71")
    if H_OFF: k(f"s_add_u32 s70, s70, {H_OFF}")
    def hissue(j):
        if j == 10:
            k("s_cmp_eq_u32 s65, 3")
            k(f"s_mov_b32 s71, {10*2048}")
            k(f"s_cselect_b32 s71, {9*2048}, s71")
            k("s_add_u32 s71, s70, s71")
        else:
            k(f"s_add_u32 s71, s70, {j*2048}")
        for stp in range(2):
            vm.issue(f"buffer_load_dwordx4 v[{HB+8*j+4*stp}:{HB+8*j+4*stp+3}], v{R['h']}, s[{SRD_WS}:{SRD_WS+3}], s71 offen offset:{stp*1024}{fl}", f"h_{j}")
    for j in range(min(hthr or 11, 11)): hissue(j)
    stamp(k, stb, st)
    if after_h: after_h()
    steps = [(j, s) for j in range(11) for s in range(2)]
    def slot_of(j): return 0 if j == 10 else j
    def reads(idx, slot, stp):
        buf = AF + 8*(idx % 3)
        grp, so = slot // 4, (slot % 4) * 16384
        for e in range(2):
            for h in range(2):
                r = buf + 4*e + 2*h
                k(f"ds_read_b64_tr_b16 v[{r}:{r+1}], v{R['tr']+2*grp+e} offset:{so + stp*2048 + h*1024}")
    def mfm(idx, b, first=False):
        buf = AF + 8*(idx % 3)
        for e in range(2):
            c = "0" if first else f"v[{ACC+16*e}:{ACC+16*e+15}]"
            k(f"v_mfma_f32_32x32x16_bf16 v[{ACC+16*e}:{ACC+16*e+15}], v[{buf+4*e}:{buf+4*e+3}], v[{b}:{b+3}], {c}")
    vm.wait("w2_9")
    k("s_barrier")
    stamp(k, stb + 1, st)
    def run(seq, first):
        n = len(seq)
        for a in range(min(2, n)): reads(seq[a][0], seq[a][1], seq[a][2])
        for a in range(n):
            idx, slot, stp, b, htag = seq[a]
            if a + 2 < n: reads(*seq[a + 2][:3])
            rem = min(2, n - 1 - a)
            if htag and stp == 0:
                vm.wait(htag)
                if hthr and int(htag[2:]) + hthr <= 10: hissue(int(htag[2:]) + hthr)
            k(f"s_waitcnt lgkmcnt({4*rem})")
            mfm(idx, b, first and a == 0)
    seq = [(2*j + s, j, s, HB + 8*j + 4*s, f"h_{j}") for j in range(2) for s in range(2)]
    run(seq, True)
    k("s_barrier")
    k("s_cmp_eq_u32 s65, 3")
    k(f"s_mov_b32 s71, {10*32768}")
    k(f"s_cselect_b32 s71, {9*32768}, s71")
    for ii in range(2):
        k(f"s_add_u32 m0, s68, {ii*1024}")
        k(f"s_add_u32 s67, s66, s71")
        if ii: k("s_add_u32 s67, s67, 8192")
        vm.issue(f"buffer_load_dwordx4 v{R['dma']}, s[{SRD_C}:{SRD_C+3}], s67 offen lds", "w2_10")
    seq = [(2*j + s, j, s, HB + 8*j + 4*s, f"h_{j}") for j in range(2, 10) for s in range(2)]
    run(seq, False)
    stamp(k, stb + 2, st)
    if hook_t3: hook_t3()
    if not t3merge:
        if hthr: vm.wait_all()
        else: vm.wait("w2_10")
        k("s_barrier")
    k.c("T3 tile DMA -> slot 1")
    if not t3pre: t3_addr(k, s_cls, s_db)
    for ii in range(2):
        k(f"s_add_u32 m0, s68, {16384 + ii*1024}")
        k(f"s_add_u32 s67, s70, {ii*8192}")
        vm.issue(f"buffer_load_dwordx4 v{R['dma']}, s[{SRD_WS}:{SRD_WS+3}], s67 offen lds{fl}", "t3")
    L = k.newlabel("no10")
    k("s_cmp_eq_u32 s65, 3")
    k(f"s_cbranch_scc1 {L}")
    seq = [(20 + s, 0, s, HB + 80 + 4*s, None) for s in range(2)]
    run(seq, False)
    k.label(L)
    for r in range(32):
        k(f"v_mul_f32 v{ACC+r}, v{R['og']}, v{ACC+r}")
    vm.wait("t3")
    k("s_barrier")
    stamp(k, stb + 3, st)
    seq = [(22 + s, 1, s, R["TB"] + 4*s, None) for s in range(2)]
    run(seq, False)
    k.c("reduction")
    Ls = [k.newlabel("red") for _ in range(4)]; Lj = k.newlabel("redj")
    OWN = AF
    for q in range(4):
        if q < 3:
            k(f"s_cmp_lg_u32 s65, {q}")
            k(f"s_cbranch_scc1 {Ls[q+1]}")
        for x in range(1, 4):
            dst = q ^ x
            src = ACC + 16*(dst >> 1) + 8*(dst & 1)
            for h in range(2):
                k(f"ds_write_b128 v{R['xw']}, v[{src+4*h}:{src+4*h+3}] offset:{dst*6144 + (x-1)*2048 + h*1024}")
        own = ACC + 16*(q >> 1) + 8*(q & 1)
        for i in range(8): k(f"v_mov_b32 v{OWN+i}, v{own+i}")
        if q < 3:
            k(f"s_branch {Lj}")
            k.label(Ls[q+1])
    k.label(Lj)
    k("s_waitcnt lgkmcnt(0)")
    k("s_barrier")
    XR = R["XR"]
    for x in range(3):
        for h in range(2):
            k(f"ds_read_b128 v[{XR+8*x+4*h}:{XR+8*x+4*h+3}], v{R['xr']} offset:{x*2048 + h*1024}")
    B2 = R["HB"]
    for i in range(4):
        k(f"v_lshlrev_b32 v{B2+2*i}, 16, v{R['b2']+i}")
        k(f"v_and_b32 v{B2+2*i+1}, 0xffff0000, v{R['b2']+i}")
    for i in range(8): k(f"v_fmac_f32 v{OWN+i}, v{R['og']}, v{B2+i}")
    for x in range(3):
        k(f"s_waitcnt lgkmcnt({4-2*x})")
        for i in range(8): k(f"v_add_f32 v{OWN+i}, v{OWN+i}, v{XR+8*x+i}")
    for i in range(4): k(f"v_cvt_pk_bf16_f32 v{XR+i}, v{OWN+2*i}, v{OWN+2*i+1}")
    k.srd(SRD_B, S_POUT, S_POUT + 1, 2048 * 1024)
    k(f"buffer_store_dwordx4 v[{XR}:{XR+3}], v{R['out']}, s[{SRD_B}:{SRD_B+3}], 0 offen")
    stamp(k, stb + 4, st)

def final(k, s_cls, s_hf, s_db, st=False):
    R = final_regs(); vm = VM(k)
    final_setup(k, s_cls, s_hf, s_db, R)
    for j in range(10): final_w2_dma(k, vm, R, j, j)
    final_addr(k, s_cls, s_hf, s_db, R)
    final_small_loads(k, vm, s_cls, R)
    final_gp_loads(k, vm, s_cls, R)
    stamp(k, 1, st)
    vm.wait("gp")
    final_gate(k, R)
    final_main(k, s_cls, s_hf, s_db, R, vm, st)
    k("s_waitcnt vmcnt(0)")
    stamp(k, 7, st)
```

```python
import fused4, sys, roles
e7 = ((0,1,2),(3,4),(5,6),())
O = ("touch", "w2early", "rflag", "g1defer", "cshare", "p1c", "ws3", "v3", "wrm", "g1post", "wsh0")
base = dict(w56=True, nshadow=3, pos=(3,6,9), g1=dict(D=2, inloop=1), dbmap=((27,6),(30,3)))
fused4.build("f7_1.s", None, opts=O, esched=e7, slp=(0,(58,16),((32,16),(56,10))), **base)
```
